```python
import torch

def _softmax(x, axis=-1):
    return torch.softmax(x, dim=axis)
def _gelu(x):
    return torch.nn.functional.gelu(x, approximate="tanh")
def _silu(x):
    return torch.nn.functional.silu(x)
def _sigmoid(x):
    return torch.sigmoid(x)
def _layernorm(x, axis=-1, eps=1e-5):
    m = x.mean(dim=axis, keepdim=True)
    v = x.var(dim=axis, keepdim=True, unbiased=False)
    return (x - m) / torch.sqrt(v + eps)
def _scatter_add(tgt, idx, src, axis=0):
    return tgt.clone().index_add_(axis, idx, src)
def _segment_sum(src, seg, n):
    out = torch.zeros((n,) + src.shape[1:], dtype=src.dtype)
    return out.index_add_(0, seg, src)
def _pad(x, pw):
    flat = tuple(v for pair in reversed(pw) for v in pair)
    return torch.nn.functional.pad(x, flat)

kernel_name = 'parallel_sum__sliding_block__dense_activation_relu__prompt'

def setup_inputs():

    _w = (lambda a: (lambda t: t.to(torch.bfloat16) if t.is_floating_point() else t)(torch.as_tensor(a)))
    def _A_setup():
        B, S, D = 1, 2048, 512
        return {
            "x": _w((lambda *s: torch.randn(*s, dtype=torch.bfloat16) * 0.05)(B, S, D)),
            "wqkv": _w((lambda *s: torch.randn(*s, dtype=torch.bfloat16) * 0.05)(D, 3 * D)),
            "wo": _w((lambda *s: torch.randn(*s, dtype=torch.bfloat16) * 0.05)(D, D)),
        }
    _A_in = _A_setup()

    def _B_setup():
        B, S, D, Dff = 1, 2048, 512, 1376
        return {
            "x": _w((lambda *s: torch.randn(*s, dtype=torch.bfloat16) * 0.05)(B, S, D)),
            "w1": _w((lambda *s: torch.randn(*s, dtype=torch.bfloat16) * 0.05)(D, Dff)),
            "w2": _w((lambda *s: torch.randn(*s, dtype=torch.bfloat16) * 0.05)(Dff, D)),
        }
    _B_in = _B_setup()

    return {
        "A_x": _A_in["x"],
        "A_wqkv": _A_in["wqkv"],
        "A_wo": _A_in["wo"],
        "B_x": _B_in["x"],
        "B_w1": _B_in["w1"],
        "B_w2": _B_in["w2"],
    }

def reference(A_x, A_wqkv, A_wo, B_x, B_w1, B_w2):
    def _A_ref(x, wqkv, wo):
        B, S, D = x.shape
        H = 32; Dh = D // H; W = 256
        qkv = (lambda x, *d: x.permute(*d))((x @ wqkv).reshape(B, S, 3, H, Dh), 2, 0, 3, 1, 4)
        q, k, v = qkv[0], qkv[1], qkv[2]
        scores = torch.einsum("bhqd,bhkd->bhqk", q, k) * (Dh ** -0.5)
        idx = torch.arange(S)
        mask = (idx[:, None] - idx[None, :] >= 0) & (idx[:, None] - idx[None, :] < W)
        scores = torch.where(mask[None, None], scores, -1e9)
        p = _softmax(scores, axis=-1)
        o = torch.einsum("bhqk,bhkd->bhqd", p, v)
        return (lambda x, *d: x.permute(*d))(o, 0, 2, 1, 3).reshape(B, S, D) @ wo

    def _B_ref(x, w1, w2):
        h = torch.einsum("bsd,df->bsf", x, w1)
        zero = torch.zeros_like(h)
        h = torch.maximum(h, zero)
        return torch.einsum("bsf,fd->bsd", h, w2)

    x = A_x
    xn = _layernorm(x, axis=-1)
    return x + _A_ref(xn, A_wqkv, A_wo) + _B_ref(xn, B_w1, B_w2)
```

```python
import re, sys
TRANS = ("v_exp_f32","v_log_f32","v_rcp_f32","v_rsq_f32","v_sqrt_f32","v_sin_f32","v_cos_f32")
def split_ops(s):
    out=[]; d=0; cur=""
    for ch in s:
        if ch in "[(": d+=1
        if ch in "])": d-=1
        if ch=="," and d==0: out.append(cur.strip()); cur=""
        else: cur+=ch
    if cur.strip(): out.append(cur.strip())
    return out
RV = re.compile(r'^-?(?:abs\()?\|?([vsa])(\d+)\)?\|?$')
RR = re.compile(r'^-?([vsa])\[(\d+):(\d+)\]$')
def regs(op):
    op = op.split()[0] if op else op
    m = RV.match(op)
    if m: return [(m.group(1), int(m.group(2)))]
    m = RR.match(op)
    if m: return [(m.group(1), i) for i in range(int(m.group(2)), int(m.group(3))+1)]
    if op=="vcc": return [("s",106),("s",107)]
    if op=="vcc_lo": return [("s",106)]
    if op=="vcc_hi": return [("s",107)]
    if op=="exec": return [("s",126),("s",127)]
    if op=="exec_lo": return [("s",126)]
    if op=="exec_hi": return [("s",127)]
    if op=="m0": return [("s",124)]
    return []
class Ins:
    def __init__(self, text, ln):
        self.text=text; self.ln=ln
        code, _, com = text.partition(";")
        self.com = com
        code = code.strip()
        p = code.split(None,1)
        self.mn = p[0]
        rest = p[1] if len(p)>1 else ""
        self.ops = split_ops(rest)
        self.rest = rest
        mn=self.mn; ops=self.ops
        self.w=[]; self.r=[]; self.kind="other"
        R=lambda i: regs(ops[i]) if i < len(ops) else []
        al = lambda lo: [x for o in ops[lo:] for x in regs(o)]
        if mn.startswith("v_mfma"):
            self.kind="mfma"; self.w=R(0); self.A=R(1); self.B=R(2); self.C=R(3); self.r=self.A+self.B+self.C
            self.passes = 8 if "32x32" in mn else 4
        elif mn.startswith("v_"):
            self.kind="valu"
            self.dpp = any(k in rest for k in ("row_","quad_perm","wave_"))
            self.trans = mn.replace("_e32","").replace("_e64","") in TRANS
            b = mn.replace("_e32","").replace("_e64","").replace("_dpp","").replace("_sdwa","")
            if b.startswith("v_cmp"):
                self.w=R(0); self.r=al(1)
            elif b in ("v_readfirstlane_b32","v_readlane_b32"):
                self.w=R(0); self.r=al(1); self.kind="valu"; self.rdlane=True
            elif b.startswith("v_permlane") and "swap" in b:
                self.w=R(0)+R(1); self.r=R(0)+R(1); self.perm=True
            elif b in ("v_add_co_u32","v_sub_co_u32","v_subrev_co_u32"):
                self.w=R(0)+R(1); self.r=al(2)
            elif b in ("v_addc_co_u32","v_subb_co_u32"):
                self.w=R(0)+R(1); self.r=al(2)
            elif b in ("v_fmac_f32","v_dot2c_f32_bf16","v_writelane_b32"):
                self.w=R(0); self.r=R(0)+al(1)
            else:
                self.w=R(0); self.r=al(1)
                if self.dpp and ("bound_ctrl" not in rest or "row_mask:0xf" not in rest): self.r = self.r + R(0)
        elif mn.startswith("ds_"):
            self.kind="ds"
            if mn.startswith("ds_read") or "_rtn" in mn or mn.startswith("ds_bpermute") or mn.startswith("ds_swizzle"):
                self.w=R(0); self.r=al(1)
            else: self.r=al(0)
        elif mn.startswith("buffer_") or mn.startswith("global_"):
            self.kind="vmem"
            toks = rest.replace(","," ").split()
            self.lds = "lds" in toks
            if mn in ("buffer_inv","buffer_wbl2"): self.r=[]
            elif "load" in mn and not self.lds:
                self.w=R(0); self.r=al(1)
            elif "load" in mn: self.r=al(0)+[("s",124)]
            elif "atomic" in mn and "sc0" in toks:
                self.w=R(0); self.r=al(0)
            else:
                self.r=al(0); self.store=True
                self.wide = ("x4" in mn or "x3" in mn)
                self.sdata = R(0) if mn.startswith("buffer_") else R(1)
        elif mn.startswith("s_load") :
            self.kind="smem"; self.w=R(0); self.r=al(1)
        elif mn in ("s_memtime","s_memrealtime"):
            self.kind="smem"; self.w=R(0)
        elif mn in ("s_waitcnt","s_nop","s_barrier","s_endpgm","s_sleep","s_setprio","s_branch") or mn.startswith("s_cbranch"):
            self.kind="ctl"
            if mn in ("s_cbranch_vccz","s_cbranch_vccnz"): self.r=[("s",106),("s",107)]
        elif mn.startswith("s_cmp") or mn.startswith("s_bitcmp"):
            self.kind="salu"; self.r=al(0)
        elif mn.startswith("s_"):
            self.kind="salu"; self.w=R(0); self.r=al(1)
            if mn in ("s_and_saveexec_b64","s_or_saveexec_b64"): self.w=self.w+[("s",126),("s",127)]
class St:
    def __init__(s):
        s.h={}
        s.vm={}
        s.lg={}
        s.sm=set()
    def copy(s):
        n=St(); n.h=dict(s.h); n.vm=dict(s.vm); n.lg=dict(s.lg); n.sm=set(s.sm); return n
    def merge(s,o):
        for k,v in o.h.items(): s.h[k]=min(s.h.get(k,99),v)
        for k,v in o.vm.items(): s.vm[k]=min(s.vm.get(k,999),v)
        for k,v in o.lg.items(): s.lg[k]=min(s.lg.get(k,999),v)
        s.sm|=o.sm
    def age(s,n):
        s.h={k:v+n for k,v in s.h.items() if v+n<40}
def lint(lines, verbose=True):
    prog=[]; labels={}
    for i,l in enumerate(lines):
        t=l.strip()
        if not t or t.startswith(".") or t.startswith("//"): continue
        if t.startswith(";"):
            if t.startswith(";@"): prog.append(("ann",t,i))
            continue
        m=re.match(r'^([\w.$]+):\s*$',t)
        if m: labels[m.group(1)]=len(prog); prog.append(("label",m.group(1),i)); continue
        prog.append(("ins",Ins(t,i),i))
    errs=[]
    def err(ins,msg): errs.append(f"line {ins.ln+1}: {ins.text.strip()}  -> {msg}")
    def need(st,ins,key,n,msg):
        a=st.h.get(key)
        if a is not None and a<n: err(ins,f"{msg}: have {a} need {n}")
    def step(st,ins):
        k=ins.kind
        vr=[x for x in ins.r if x[0]=="v"]; vw=[x for x in ins.w if x[0]=="v"]
        sr=[x for x in ins.r if x[0]=="s"]
        for x in ins.r+ins.w:
            if x in st.vm: err(ins,f"reg {x} has pending vmem load (younger={st.vm[x]})")
            if x in st.lg: err(ins,f"reg {x} has pending lds load (younger={st.lg[x]})")
            if x in st.sm: err(ins,f"reg {x} has pending smem load")
        if k=="mfma":
            for x in vr: need(st,ins,("valu",x),2,"VALU write -> MFMA read")
            for x in ins.A+ins.B:
                a=st.h.get(("mfma",x))
                if a is not None:
                    p=st.h_p.get(x,8) if hasattr(st,"h_p") else 8
                    need(st,ins,("mfma",x),12,"MFMA D -> MFMA A/B")
            if ins.C:
                for x in ins.C:
                    a=st.h.get(("mfma",x))
                    if a is not None and a<10:
                        key=("mfmarange",ins.C[0],len(ins.C))
                        if st.h.get(key)!=a: err(ins,f"MFMA D -> MFMA C overlap not exact: have {a} need 10")
            for x in ins.w:
                a=st.h.get(("mfma",x))
                if a is not None and a<10 and x not in ins.C: err(ins,f"MFMA D WAW w/o C chain have {a}")
        elif k in("valu","ds","vmem"):
            for x in vr:
                need(st,ins,("mfma",x),12,"MFMA D -> read")
                if k=="valu" and not ins.trans: need(st,ins,("trans",x),1,"trans -> VALU")
                if k=="valu" and ins.dpp: need(st,ins,("valu",x),2,"VALU -> DPP read")
                if k=="valu" and getattr(ins,"perm",False): need(st,ins,("valu",x),2,"VALU -> permlane")
                if k=="valu" and getattr(ins,"rdlane",False): need(st,ins,("valu",x),1,"VALU -> readlane")
            for x in vw:
                need(st,ins,("mfma",x),12,"MFMA D -> write(WAW)")
                if k=="valu":
                    need(st,ins,("mfmac",x),7,"MFMA srcC read -> VALU write")
                    need(st,ins,("stdata",x),2,"wide store data -> VALU write")
                else: need(st,ins,("stdata",x),1,"wide store data -> write")
            if k=="valu":
                for x in sr: need(st,ins,("valus",x),2,"VALU sgpr write -> VALU read")
                if getattr(ins,"rdlane",False) and ins.mn.startswith("v_readlane"):
                    for x in sr: need(st,ins,("valus",x),4,"VALU sgpr -> lane select")
            if k=="vmem":
                for x in sr:
                    need(st,ins,("valus",x),5,"VALU sgpr write -> VMEM read")
                if getattr(ins,"lds",False): need(st,ins,("m0",),1,"M0 write -> LDS DMA")
        elif k in ("salu","ctl","smem"):
            for x in sr: need(st,ins,("valus",x),1,"VALU sgpr write -> SALU read (pad)")
        n=1
        if ins.mn=="s_nop": n=int(ins.ops[0],0)+1
        st.age(n)
        if k=="mfma":
            for x in ins.w: st.h[("mfma",x)]=0; st.h.pop(("valu",x),None)
            st.h[("mfmarange",ins.w[0],len(ins.w))]=0
            for x in ins.C: st.h[("mfmac",x)]=0
        elif k=="valu":
            for x in ins.w:
                if x[0]=="v":
                    st.h[("valu",x)]=0
                    st.h.pop(("mfma",x),None)
                    if ins.trans: st.h[("trans",x)]=0
                    else: st.h.pop(("trans",x),None)
                else: st.h[("valus",x)]=0
        elif k=="salu":
            for x in ins.w:
                st.h.pop(("valus",x),None)
                if x==("s",124): st.h[("m0",)]=0
        if k=="vmem":
            for key in st.vm: st.vm[key]+=1
            for x in ins.w: st.vm[x]=0
            m=re.search(r'@tag\s+(\S+)',ins.com)
            if m: st.vm[("tag",m.group(1))]=0
            if getattr(ins,"store",False) and getattr(ins,"wide",False):
                for x in ins.sdata: st.h[("stdata",x)]=0
        elif k=="ds":
            for key in st.lg: st.lg[key]+=1
            for x in ins.w: st.lg[x]=0
            m=re.search(r'@tag\s+(\S+)',ins.com)
            if m: st.lg[("tag",m.group(1))]=0
        elif k=="smem":
            for x in ins.w: st.sm.add(x)
            st.smem_out=True
        if ins.mn=="s_waitcnt":
            m=re.search(r'vmcnt\((\d+)\)',ins.rest)
            if m:
                N=int(m.group(1)); st.vm={a:b for a,b in st.vm.items() if b<N}
            m=re.search(r'lgkmcnt\((\d+)\)',ins.rest)
            if m:
                N=int(m.group(1))
                if N==0: st.lg={}; st.sm=set()
                else:
                    if st.sm: pass
                    else: st.lg={a:b for a,b in st.lg.items() if b<N}
    pend={}
    def run(lo,hi,st,depth):
        i=lo
        alive = st is not None
        while i<hi:
            typ,x,ln=prog[i]
            if typ=="label":
                if x in pend and depth==0:
                    if alive:
                        for o in pend[x]: st.merge(o)
                    else:
                        st=pend[x][0].copy()
                        for o in pend[x][1:]: st.merge(o)
                        alive=True
            elif typ=="ann" and alive:
                m=re.match(r';@need\s+(\S+)',x)
                if m:
                    for tg in m.group(1).split(","):
                        if ("tag",tg) in st.vm: errs.append(f"line {ln+1}: @need {tg} but vm pending younger={st.vm[('tag',tg)]}")
                        if ("tag",tg) in st.lg: errs.append(f"line {ln+1}: @need {tg} but lgkm pending younger={st.lg[('tag',tg)]}")
            elif typ=="ins" and alive:
                step(st,x)
                if x.mn=="s_branch" or x.mn.startswith("s_cbranch"):
                    tgt=x.ops[0]
                    if tgt not in labels: errs.append(f"unknown label {tgt}")
                    elif labels[tgt]>i:
                        if depth==0: pend.setdefault(tgt,[]).append(st.copy())
                    elif depth==0:
                        s2=st.copy(); run(labels[tgt],i+1,s2,1)
                        st.merge(s2)
                    if x.mn=="s_branch": alive=False
                elif x.mn=="s_endpgm": alive=False
            i+=1
        return st
    run(0,len(prog),St(),0)
    seen=set(); out=[]
    for e in errs:
        if e not in seen: seen.add(e); out.append(e)
    return out
if __name__=="__main__":
    e=lint(open(sys.argv[1]).read().split("\n"))
    for x in e[:80]: print(x)
    print(len(e),"lint errors")
```

```python
import sys
from lint import lint

KNAME = "parallel_sum__sliding_block__dense_activation_relu__prompt_kernel"
OPT = dict(ts=False, spin=1<<22)

def XST(s): return s*16384
def WAST(s): return 49152 + s*12288
def WBST(s): return 86016 + s*12288
KVL = 0; SLOT = 6144
QL = 73728
RING = 81920
NM = 159744; RL = 160256; SL = 160768; CNT = 161536
LDS_TOTAL = 163840
WS_NONCE=0; FPR=0x1000; FPC=0x2000; FP1=0x3000; FO=0x4000
ST=0x8000; CS=0x10000; KV=0x100000; AH=0x800000; TS=0xF80000; WS_SIZE=0x1000000
NSTEP=118
TAGC=0x9E3779B9
sX="s[40:43]"; sWQ="s[44:47]"; sW1="s[48:51]"; sW2="s[52:55]"; sWO="s[56:59]"; sOUT="s[60:63]"; sWS="s[64:67]"
sW=26; sRB=27; sCS=28; sJ=29; sIDX=30; sTAG=31; sKB0=32; sU0=33; sWID=34; sA3=35; sCT=36; sRB3=37; sHW=38; sSPIN=39

class G:
    def __init__(s):
        s.L=[]; s.vm=[]; s.nlab=0
    def I(s,t): s.L.append(" "+t)
    def C(s,t): s.L.append(" ; "+t)
    def lab(s,n): s.L.append(n+":")
    def newlab(s,p="L"):
        s.nlab+=1; return f"{p}_{s.nlab}"
    def vmem(s,t,tag=None,cond=False):
        s.L.append(" "+t+(f" ;@tag {tag}" if tag else ""))
        if not cond: s.vm.append(tag)
        elif tag: s.vm.append(("cond",tag))
    def nyounger(s,tag):
        n=0
        for x in reversed(s.vm):
            if x==tag or x==("cond",tag): return n
            if not (isinstance(x,tuple)): n+=1
        return None
    def wait_vm(s,*tags,extra=""):
        ns=[s.nyounger(t) for t in tags]
        ns=[n for n in ns if n is not None]
        n=min(ns) if ns else 63
        n=min(n,63)
        s.I(f"s_waitcnt vmcnt({n}){extra}")
        s.L.append(" ;@need "+",".join(tags))
    def drain(s):
        s.I("s_waitcnt vmcnt(0)"); s.vm=[]
    def nop(s,n):
        while n>0:
            k=min(n,16); s.I(f"s_nop {k-1}"); n-=k
    def ts(s,i):
        if not OPT["ts"]: return
        s.I("s_memrealtime s[90:91]")
        s.I("s_waitcnt lgkmcnt(0)")
        s.I(f"v_mov_b32 v254, s90")
        s.I(f"v_mov_b32 v255, s92")
        s.vmem(f"buffer_store_dword v254, v255, {sWS}, 0 offen offset:{i*4}", tag=None)

def v(a,n=1): return f"v{a}" if n==1 else f"v[{a}:{a+n-1}]"

def poll(g, vaddr, vtmp, errcode):
    L=g.newlab("POLL"); D=g.newlab("PDONE")
    g.I(f"s_mov_b32 s{sSPIN}, {OPT['spin']}")
    g.lab(L)
    g.vmem(f"buffer_load_dword {v(vtmp)}, {v(vaddr)}, {sWS}, 0 offen sc1")
    g.I("s_waitcnt vmcnt(0)")
    g.I(f"v_cmp_ne_u32 vcc, s{sTAG}, {v(vtmp)}")
    g.I("s_nop 0")
    g.I(f"s_cbranch_vccz {D}")
    g.I("s_sleep 1")
    g.I(f"s_sub_u32 s{sSPIN}, s{sSPIN}, 1")
    g.I(f"s_cbranch_scc0 {L}")
    g.I(f"v_mov_b32 {v(vtmp)}, {errcode}")
    g.I(f"v_mov_b32 {v(vtmp+1)}, 0")
    g.vmem(f"global_store_dword {v(vtmp+1)}, {v(vtmp)}, s[68:69]")
    g.I("s_waitcnt vmcnt(0)")
    g.lab(D)
    g.vm=[]

def lds_spin(g, vaddr, vtmp, target, errcode):
    L=g.newlab("LSP"); D=g.newlab("LSD")
    g.I(f"s_mov_b32 s{sSPIN}, {OPT['spin']}")
    g.lab(L)
    g.I(f"ds_read_b32 {v(vtmp)}, {v(vaddr)}")
    g.I("s_waitcnt lgkmcnt(0)")
    g.I(f"v_cmp_ne_u32 vcc, {target}, {v(vtmp)}")
    g.I("s_nop 0")
    g.I(f"s_cbranch_vccz {D}")
    g.I(f"s_sub_u32 s{sSPIN}, s{sSPIN}, 1")
    g.I(f"s_cbranch_scc0 {L}")
    g.I(f"v_mov_b32 {v(vtmp)}, {errcode}")
    g.I(f"v_mov_b32 {v(vtmp+1)}, 0")
    g.vmem(f"global_store_dword {v(vtmp+1)}, {v(vtmp)}, s[68:69]")
    g.I("s_waitcnt vmcnt(0)")
    g.lab(D)
    g.vm=[]

def prologue(g):
    g.I("s_cmp_ge_u32 s2, 256")
    g.I("s_cbranch_scc1 L_END")
    g.I("s_load_dwordx2 s[40:41], s[0:1], 0")
    g.I("s_load_dwordx2 s[64:65], s[0:1], 64")
    g.I("s_load_dwordx2 s[44:45], s[0:1], 8")
    g.I("s_load_dwordx2 s[48:49], s[0:1], 32")
    g.I("s_load_dwordx2 s[52:53], s[0:1], 40")
    g.I("s_load_dwordx2 s[56:57], s[0:1], 16")
    g.I("s_load_dwordx2 s[60:61], s[0:1], 48")
    g.I("s_load_dwordx2 s[68:69], s[0:1], 56")
    g.I("v_lshrrev_b32 v1, 6, v0")
    g.I("v_and_b32 v0, 63, v0")
    g.I(f"v_readfirstlane_b32 s{sW}, v1")
    g.I(f"s_and_b32 s{sJ}, s2, 7")
    g.I(f"s_lshr_b32 s{sIDX}, s2, 3")
    g.I(f"s_and_b32 s3, s{sJ}, 1")
    g.I(f"s_lshl_b32 s3, s3, 3")
    g.I(f"s_and_b32 s{sRB}, s{sIDX}, 7")
    g.I(f"s_or_b32 s{sRB}, s{sRB}, s3")
    g.I(f"s_lshr_b32 s3, s{sJ}, 1")
    g.I(f"s_lshl_b32 s3, s3, 2")
    g.I(f"s_lshr_b32 s{sCS}, s{sIDX}, 3")
    g.I(f"s_or_b32 s{sCS}, s{sCS}, s3")
    for base,size in ((40,2097152),(64,WS_SIZE),(44,1572864),(48,1409024),(52,1409024),(56,524288),(60,2097152)):
        g.I(f"s_mov_b32 s{base+2}, {size}")
        g.I(f"s_mov_b32 s{base+3}, 0x20000")
    g.I(f"s_mul_i32 s{sU0}, s{sCS}, 86")
    g.I(f"s_add_u32 s{sWID}, s{sU0}, 86")
    g.I(f"s_lshr_b32 s{sU0}, s{sU0}, 4")
    g.I(f"s_lshr_b32 s{sWID}, s{sWID}, 4")
    g.I(f"s_sub_u32 s{sWID}, s{sWID}, s{sU0}")
    g.I(f"s_lshr_b32 s{sKB0}, s{sRB}, 1")
    if OPT["ts"]:
        g.I(f"s_lshl_b32 s92, s2, 3")
        g.I(f"s_add_u32 s92, s92, s{sW}")
        g.I(f"s_lshl_b32 s92, s92, 6")
        g.I(f"s_add_u32 s92, s92, {TS}")
    g.I(f"s_cmp_lt_u32 s{sW}, 4")
    g.I("s_waitcnt lgkmcnt(0)")
    g.I("s_cbranch_scc1 L_GWAVE")

def hwave(g):
    sXb=70; sWab=71; sWbb=72; sMx=73; sMw=74; sx=75; swa=76; swb=77; sT=78; sKB=79
    vXe=8; vXo=9; vWa=10; vWb=13
    g.I(f"s_sub_u32 s{sHW}, s{sW}, 4")
    g.ts(0)
    g.I("v_lshlrev_b32 v2, 4, v0")
    g.I(f"s_lshl_b32 s80, s{sRB}, 7")
    g.I(f"s_lshl_b32 s81, s{sCS}, 3")
    g.I(f"s_add_u32 s80, s80, s81")
    g.I(f"s_lshl_b32 s81, s{sHW}, 1")
    g.I(f"s_add_u32 s80, s80, s81")
    g.I(f"s_lshl_b32 s81, s80, 10")
    g.vmem(f"buffer_load_dwordx4 v[20:23], v2, {sX}, s81 offen", tag="srow")
    g.vmem(f"buffer_load_dwordx4 v[24:27], v2, {sX}, s81 offen offset:1024", tag="srow")
    g.I("v_mov_b32 v3, 0")
    g.vmem(f"buffer_load_dword v28, v3, {sWS}, 0 offen sc1", tag="nonce")
    g.I("v_lshrrev_b32 v3, 3, v0")
    g.I("v_lshlrev_b32 v3, 10, v3")
    g.I("v_and_b32 v4, 7, v0")
    g.I("v_lshrrev_b32 v5, 4, v0")
    g.I("v_xor_b32 v4, v4, v5")
    g.I(f"v_lshl_or_b32 v{vXe}, v4, 4, v3")
    g.I(f"v_xor_b32 v{vXo}, 64, v{vXe}")
    g.I(f"s_lshl_b32 s{sXb}, s{sRB}, 17")
    g.I(f"s_lshl_b32 s{sT}, s{sHW}, 15")
    g.I(f"s_add_u32 s{sXb}, s{sXb}, s{sT}")
    g.I(f"s_lshl_b32 s{sMx}, s{sHW}, 12")
    g.I(f"s_mul_i32 s{sMw}, s{sHW}, 3072")
    g.I(f"s_mul_i32 s{sWab}, s{sHW}, 49152")
    g.I(f"s_lshl_b32 s{sT}, s{sCS}, 6")
    g.I(f"s_add_u32 s{sWab}, s{sWab}, s{sT}")
    g.I(f"s_mul_i32 s{sWbb}, s{sHW}, 44032")
    g.I(f"s_lshl_b32 s{sT}, s{sU0}, 5")
    g.I(f"s_add_u32 s{sWbb}, s{sWbb}, s{sT}")
    def stage_scalars(it):
        g.I(f"s_add_u32 s{sKB}, s{sKB0}, {it}")
        g.I(f"s_and_b32 s{sKB}, s{sKB}, 7")
        g.I(f"s_lshl_b32 s{sx}, s{sKB}, 7")
        g.I(f"s_add_u32 s{sx}, s{sx}, s{sXb}")
        g.I(f"s_mul_i32 s{swa}, s{sKB}, 196608")
        g.I(f"s_add_u32 s{swa}, s{swa}, s{sWab}")
        g.I(f"s_mul_i32 s{swb}, s{sKB}, 176128")
        g.I(f"s_add_u32 s{swb}, s{swb}, s{sWbb}")
    def dma_x(it):
        st=it%3
        for i in range(4):
            g.I(f"s_add_u32 m0, s{sMx}, {XST(st)+i*1024}")
            g.I(f"s_add_u32 s{sT}, s{sx}, {i*8192}")
            g.vmem(f"buffer_load_dwordx4 v{vXe if i%2==0 else vXo}, {sX}, s{sT} offen lds", tag=f"st{it}")
    def dma_w(it):
        st=it%3
        for p in range(3):
            g.I(f"s_add_u32 m0, s{sMw}, {WAST(st)+p*1024}")
            g.I("s_nop 0")
            g.vmem(f"buffer_load_dwordx4 v{vWa+p}, {sWQ}, s{swa} offen lds", tag=f"st{it}")
        for p in range(3):
            g.I(f"s_add_u32 m0, s{sMw}, {WBST(st)+p*1024}")
            g.I("s_nop 0")
            g.vmem(f"buffer_load_dwordx4 v{vWb+p}, {sW1}, s{swb} offen lds", tag=f"st{it}")
    stage_scalars(0)
    dma_x(0)
    for p in range(3):
        g.I(f"v_add_u32 v3, {64*p}, v0")
        g.I(f"v_mul_u32_u24 v4, 0xaaab, v3")
        g.I(f"v_lshrrev_b32 v4, 19, v4")
        g.I(f"v_mul_u32_u24 v5, 12, v4")
        g.I(f"v_sub_u32 v5, v3, v5")
        g.I(f"v_mul_u32_u24 v6, 2752, v4")
        g.I(f"v_lshl_add_u32 v{vWb+p}, v5, 4, v6")
        g.I(f"v_mul_u32_u24 v6, 3072, v4")
        g.I(f"v_lshrrev_b32 v7, 2, v5")
        g.I(f"v_lshl_add_u32 v6, v7, 10, v6")
        g.I(f"v_and_b32 v7, 3, v5")
        g.I(f"v_lshl_add_u32 v{vWa+p}, v7, 4, v6")
    dma_w(0)
    for it in (1,2):
        stage_scalars(it); dma_x(it); dma_w(it)
    Lnp=g.newlab("NOPF")
    g.I(f"s_cmp_eq_u32 s{sHW}, 3")
    g.I(f"s_cbranch_scc0 {Lnp}")
    g.I("s_getpc_b64 s[82:83]")
    g.lab("L_PCREF")
    g.I("s_and_b32 s82, s82, 0xffffff00")
    g.I("v_lshlrev_b32 v3, 7, v0")
    for i in range(OPT.get("pfn",4)):
        g.I(f"v_min_u32 v4, L_END-L_PCREF, v3")
        g.vmem(f"global_load_dword v{244+i}, v4, s[82:83]", cond=True)
        g.I(f"v_add_u32 v3, 8192, v3")
    g.lab(Lnp)
    g.I(f"v_lshlrev_b32 v3, 4, v0")
    g.I(f"v_add_u32 v3, {SL}, v3")
    g.I("v_mov_b32 v4, 0"); g.I("v_mov_b32 v5, 0"); g.I("v_mov_b32 v6, 0"); g.I("v_mov_b32 v7, 0")
    Lz=g.newlab("NOZ")
    g.I(f"s_cmp_eq_u32 s{sHW}, 0")
    g.I(f"s_cbranch_scc0 {Lz}")
    g.I("s_mov_b32 exec_hi, 0x1ffff")
    g.I("ds_write_b128 v3, v[4:7]")
    g.I("s_mov_b32 exec_hi, -1")
    g.lab(Lz)
    g.wait_vm("srow","nonce")
    g.I("v_readfirstlane_b32 s%d, v28"%sTAG)
    def stats_pair():
        A=[20,24]; U=[32,40]
        for a,u in zip(A,U):
            for e in range(4):
                g.I(f"v_lshlrev_b32 v{u+2*e}, 16, v{a+e}")
                g.I(f"v_and_b32 v{u+2*e+1}, 0xffff0000, v{a+e}")
        T=[48,49]
        def tree(src,dst):
            for u,t in zip(src,dst):
                g.I(f"v_add_f32 v{t}, v{u}, v{u+1}")
            for e in range(2,8):
                for u,t in zip(src,dst):
                    g.I(f"v_add_f32 v{t}, v{t}, v{u+e}")
        def wred(T,sd):
            for mod in ("quad_perm:[1,0,3,2] row_mask:0xf bank_mask:0xf","quad_perm:[2,3,0,1] row_mask:0xf bank_mask:0xf",
                        "row_half_mirror row_mask:0xf bank_mask:0xf","row_mirror row_mask:0xf bank_mask:0xf",
                        "row_bcast:15 row_mask:0xa bank_mask:0xf","row_bcast:31 row_mask:0xc bank_mask:0xf"):
                g.I("s_nop 1")
                for t in T: g.I(f"v_add_f32_dpp v{t}, v{t}, v{t} {mod}")
            g.I("s_nop 0")
            for t,s_ in zip(T,sd): g.I(f"v_readlane_b32 s{s_}, v{t}, 63")
            g.I("s_nop 1")
        tree(U,T); wred(T,[84,85])
        M=[50,51]
        for m,s_ in zip(M,[84,85]): g.I(f"v_mul_f32 v{m}, s{s_}, v60")
        for e in range(8):
            for u,m in zip(U,M): g.I(f"v_sub_f32 v{u+e}, v{u+e}, v{m}")
        for u,t in zip(U,T): g.I(f"v_mul_f32 v{t}, v{u}, v{u}")
        for e in range(1,8):
            for u,t in zip(U,T): g.I(f"v_fmac_f32 v{t}, v{u+e}, v{u+e}")
        wred(T,[84,85])
        Vr=[52,53]
        for r_,s_ in zip(Vr,[84,85]): g.I(f"v_mul_f32 v{r_}, s{s_}, v60")
        def rbf(regs_):
            for r_ in regs_: g.I(f"v_cvt_pk_bf16_f32 v{r_}, v{r_}, v{r_}")
            for r_ in regs_: g.I(f"v_and_b32 v{r_}, 0xffff0000, v{r_}")
        rbf(Vr)
        for r_ in Vr: g.I(f"v_add_f32 v{r_}, 0x3727c5ac, v{r_}")
        rbf(Vr)
        for r_ in Vr: g.I(f"v_sqrt_f32 v{r_}, v{r_}")
        g.I("s_nop 0")
        rbf(Vr)
        g.I(f"v_rcp_f32 v55, v52")
        g.I(f"v_rcp_f32 v57, v53")
        g.I(f"v_cvt_pk_bf16_f32 v54, -v50, -v50")
        g.I(f"v_cvt_pk_bf16_f32 v56, -v51, -v51")
    g.I("v_mov_b32 v60, 0x3b000000")
    stats_pair()
    g.I(f"s_add_u32 s{sTAG}, s{sTAG}, {TAGC}")
    g.I(f"s_lshl_b32 s81, s80, 3")
    g.I(f"s_add_u32 s81, s81, {ST}")
    g.I("v_mov_b32 v3, 0")
    g.I("s_mov_b64 exec, 1")
    g.vmem(f"buffer_store_dwordx2 v[54:55], v3, {sWS}, s81 offen sc1", tag="pre")
    g.vmem(f"buffer_store_dwordx2 v[56:57], v3, {sWS}, s81 offen offset:8 sc1", tag="pre")
    g.I("s_mov_b64 exec, -1")
    g.I("v_lshrrev_b32 v3, 5, v0"); g.I("v_lshlrev_b32 v3, 3, v3")
    g.I("v_bfe_u32 v4, v0, 2, 2"); g.I("v_add_u32 v3, v3, v4"); g.I("v_mul_u32_u24 v3, 192, v3")
    g.I("v_bfe_u32 v4, v0, 4, 1"); g.I("v_lshl_add_u32 v3, v4, 5, v3")
    g.I("v_and_b32 v4, 3, v0"); g.I("v_lshl_add_u32 v16, v4, 3, v3")
    g.I(f"s_and_b32 s81, s{sRB}, 1"); g.I("s_mul_i32 s81, s81, 6144")
    g.I(f"s_mul_i32 s82, s{sHW}, {WBST(0)-WAST(0)}")
    g.I("s_add_u32 s81, s81, s82"); g.I(f"s_add_u32 s81, s81, {WAST(0)}")
    g.I("v_add_u32 v16, s81, v16")
    for r_ in range(64,68): g.I(f"v_mov_b32 v{r_}, 0x3f803f80")
    for it in range(8):
        if it==6:
            Ls=g.newlab("NOCHK")
            g.wait_vm(f"st{it}","poll",extra=" lgkmcnt(0)")
            g.I(f"s_cmp_eq_u32 s{sHW}, 0")
            g.I(f"s_cbranch_scc0 {Ls}")
            g.I(f"v_cmp_ne_u32 vcc, s{sTAG}, v29")
            g.I("s_nop 0")
            g.I(f"s_cbranch_vccz {Ls}")
            save=list(g.vm)
            poll(g,17,29,0x101)
            g.lab(Ls)
            g.vm=save
        else:
            g.wait_vm(f"st{it}",extra=" lgkmcnt(0)")
        g.I("s_barrier")
        if it==0: g.ts(1)
        if it==5:
            g.I("v_and_b32 v3, 15, v0")
            g.I("v_lshlrev_b32 v3, 2, v3")
            g.I(f"s_lshl_b32 s81, s{sRB}, 7"); g.I(f"s_add_u32 s81, s81, {FPR}")
            g.I(f"s_lshl_b32 s82, s{sCS}, 7"); g.I(f"s_add_u32 s82, s82, {FPC}")
            g.I("v_bfe_u32 v4, v0, 4, 1")
            g.I("v_mov_b32 v5, s81"); g.I("v_mov_b32 v6, s82")
            g.I("v_cmp_eq_u32 vcc, 0, v4"); g.I("s_nop 1")
            g.I("v_cndmask_b32 v5, v6, v5, vcc")
            g.I("v_add_u32 v17, v5, v3")
            g.vmem(f"buffer_load_dword v29, v17, {sWS}, 0 offen sc1", tag="poll")
        if it>=1 and it+2<=7:
            stage_scalars(it+2); dma_x(it+2); dma_w(it+2)
        if it==0:
            Lc=g.newlab("NOCS")
            g.I(f"s_cmp_lt_u32 s{sHW}, 2")
            g.I(f"s_cbranch_scc0 {Lc}")
            F=68
            for t in range(2):
                for tj in range(3):
                    b=F+(t*3+tj)*4
                    g.I(f"ds_read_b64_tr_b16 v[{b}:{b+1}], v16 offset:{t*3072+tj*64}")
                    g.I(f"ds_read_b64_tr_b16 v[{b+2}:{b+3}], v16 offset:{t*3072+768+tj*64}")
            g.I("s_waitcnt lgkmcnt(0)")
            D=96
            for tj in range(3):
                g.I(f"v_mfma_f32_32x32x16_bf16 v[{D+16*tj}:{D+16*tj+15}], v[64:67], v[{F+tj*4}:{F+tj*4+3}], 0")
            for tj in range(3):
                b=F+(3+tj)*4
                g.I(f"v_mfma_f32_32x32x16_bf16 v[{D+16*tj}:{D+16*tj+15}], v[64:67], v[{b}:{b+3}], v[{D+16*tj}:{D+16*tj+15}]")
            g.I(f"s_mul_i32 s81, s{sCS}, 12288"); g.I(f"s_mul_i32 s82, s{sRB}, 768"); g.I("s_add_u32 s81, s81, s82")
            g.I(f"s_mul_i32 s82, s{sHW}, 384"); g.I("s_add_u32 s81, s81, s82"); g.I(f"s_add_u32 s81, s81, {CS}")
            g.I("v_lshlrev_b32 v3, 2, v0")
            g.nop(12)
            g.I("s_mov_b32 exec_hi, 0")
            for tj in range(3):
                g.vmem(f"buffer_store_dword v{D+16*tj}, v3, {sWS}, s81 offen offset:{tj*128} sc1", tag="pre", cond=True)
            g.I("s_mov_b32 exec_hi, -1")
            g.lab(Lc)
        if it==3:
            Lf=g.newlab("NOFL")
            g.I(f"s_cmp_eq_u32 s{sHW}, 0")
            g.I(f"s_cbranch_scc0 {Lf}")
            g.I(f"s_lshl_b32 s81, s{sRB}, 7"); g.I(f"s_lshl_b32 s82, s{sCS}, 2"); g.I("s_add_u32 s81, s81, s82"); g.I(f"s_add_u32 s81, s81, {FPR}")
            g.I(f"s_lshl_b32 s83, s{sCS}, 7"); g.I(f"s_lshl_b32 s82, s{sRB}, 2"); g.I("s_add_u32 s83, s83, s82"); g.I(f"s_add_u32 s83, s83, {FPC}")
            g.I("v_mov_b32 v3, s81"); g.I("v_mov_b32 v4, s83"); g.I(f"v_mov_b32 v5, s{sTAG}")
            g.I("s_mov_b64 exec, 1")
            g.vmem(f"buffer_store_dword v5, v3, {sWS}, 0 offen sc1", cond=True)
            g.vmem(f"buffer_store_dword v5, v4, {sWS}, 0 offen sc1", cond=True)
            g.I("s_mov_b64 exec, -1")
            g.lab(Lf)
        if it==6:
            g.I("v_and_b32 v3, 31, v0"); g.I("v_lshlrev_b32 v3, 3, v3")
            g.I(f"s_lshl_b32 s81, s{sRB}, 7"); g.I(f"s_lshl_b32 s82, s{sHW}, 5"); g.I("s_add_u32 s81, s81, s82")
            g.I("s_lshl_b32 s81, s81, 3"); g.I(f"s_add_u32 s81, s81, {ST}")
            g.vmem(f"buffer_load_dwordx2 v[20:21], v3, {sWS}, s81 offen sc1", tag="gath")
            g.I("v_lshlrev_b32 v4, 4, v0")
            g.I(f"s_mul_i32 s81, s{sCS}, 12288"); g.I(f"s_mul_i32 s82, s{sHW}, 3072"); g.I("s_add_u32 s81, s81, s82"); g.I(f"s_add_u32 s81, s81, {CS}")
            g.I("s_mov_b32 exec_hi, 0xffff")
            for q in range(4):
                g.vmem(f"buffer_load_dwordx4 v[{32+4*q}:{35+4*q}], v4, {sWS}, s81 offen offset:{q*768} sc1", tag="gath")
            g.I("s_mov_b32 exec_hi, -1")
        if it==7:
            g.wait_vm("gath")
            g.I("v_and_b32 v3, 31, v0"); g.I("v_lshlrev_b32 v3, 2, v3")
            g.I(f"s_lshl_b32 s81, s{sHW}, 7"); g.I(f"s_add_u32 s81, s81, {NM}")
            g.I("v_add_u32 v3, s81, v3")
            g.I("ds_write_b32 v3, v20")
            g.I(f"ds_write_b32 v3, v21 offset:{RL-NM}")
            g.I("s_mov_b32 exec_hi, 0xffff")
            for e in range(4):
                g.I(f"v_add_f32 v{32+e}, v{32+e}, v{36+e}")
                g.I(f"v_add_f32 v{40+e}, v{40+e}, v{44+e}")
            for e in range(4):
                g.I(f"v_add_f32 v{32+e}, v{32+e}, v{40+e}")
            g.I("v_lshlrev_b32 v4, 4, v0"); g.I(f"v_add_u32 v4, {SL}, v4")
            for e in range(4):
                g.I(f"ds_add_f32 v4, v{32+e} offset:{4*e}")
            g.I("s_mov_b32 exec_hi, -1")
    g.I("s_waitcnt lgkmcnt(0)")
    g.I("s_barrier")
    g.ts(2)
    BD=128; BO=144
    g.I("v_and_b32 v3, 31, v0"); g.I("v_lshrrev_b32 v4, 5, v0"); g.I("v_lshlrev_b32 v4, 2, v4")
    g.I("v_sub_u32 v3, v3, v4")
    g.I("v_mov_b32 v5, 0xf149f2ca")
    sTM=84
    g.I(f"s_lshl_b32 s81, s{sRB}, 2"); g.I(f"s_add_u32 s81, s81, s{sHW}")
    g.I(f"s_sub_i32 s{sTM}, 8, s81"); g.I(f"s_max_i32 s{sTM}, s{sTM}, 0")
    for r in range(16):
        kk=(r&3)+8*(r>>2)
        g.I(f"v_subrev_u32 v6, {kk}, v3")
        g.I(f"v_ashrrev_i32 v6, 31, v6")
        g.I(f"v_and_b32 v{BD+r}, v6, v5")
        g.I(f"v_bfi_b32 v{BO+r}, v6, 0, v5")
    Lb=g.newlab("BOK")
    g.I(f"s_cmp_eq_u32 s{sTM}, 0"); g.I(f"s_cbranch_scc1 {Lb}")
    for r in range(16): g.I(f"v_mov_b32 v{BO+r}, v5")
    g.lab(Lb)
    need=85
    g.I(f"s_lshr_b32 s81, s{sHW}, 1")
    g.I(f"s_sub_u32 s82, 2, s81")
    g.I(f"s_sub_i32 s83, s{sRB}, s82")
    g.I(f"s_cmp_ge_i32 s83, 0")
    g.I(f"s_cselect_b32 s{need}, 1, 0")
    g.I("v_lshlrev_b32 v7, 4, v0")
    g.I(f"s_mul_i32 s86, s{sHW}, {2*SLOT}")
    Lnz=g.newlab("NOZF")
    g.I(f"s_cmp_eq_u32 s{need}, 1"); g.I(f"s_cbranch_scc1 {Lnz}")
    g.I("v_add_u32 v8, s86, v7")
    for r_ in range(20,24): g.I(f"v_mov_b32 v{r_}, 0")
    for i in range(12): g.I(f"ds_write_b128 v8, v[20:23] offset:{i*1024}")
    g.lab(Lnz)
    g.I("s_waitcnt vmcnt(0) lgkmcnt(0)"); g.vm=[]
    g.I("s_barrier")
    g.ts(3)
    Lf=g.newlab("NOF1")
    g.I(f"s_cmp_eq_u32 s{sHW}, 0"); g.I(f"s_cbranch_scc0 {Lf}")
    g.I(f"s_lshl_b32 s81, s{sRB}, 7"); g.I(f"s_lshl_b32 s82, s{sCS}, 2"); g.I("s_add_u32 s81, s81, s82"); g.I(f"s_add_u32 s81, s81, {FP1}")
    g.I("v_mov_b32 v14, s81"); g.I(f"v_mov_b32 v15, s{sTAG}")
    g.I("s_mov_b64 exec, 1")
    g.vmem(f"buffer_store_dword v15, v14, {sWS}, 0 offen sc1", cond=True)
    g.I("s_mov_b64 exec, -1")
    g.lab(Lf)
    Lnr=g.newlab("NOREM")
    g.I(f"s_cmp_eq_u32 s{need}, 0"); g.I(f"s_cbranch_scc1 {Lnr}")
    g.I(f"s_lshl_b32 s81, s83, 7"); g.I(f"s_lshl_b32 s82, s{sCS}, 2"); g.I("s_add_u32 s81, s81, s82"); g.I(f"s_add_u32 s81, s81, {FP1}")
    g.I("v_mov_b32 v17, s81")
    poll(g,17,29,0x102)
    g.I(f"s_lshl_b32 s81, s{sRB}, 2"); g.I(f"s_lshl_b32 s82, s{sHW}, 1"); g.I("s_add_u32 s81, s81, s82"); g.I("s_sub_u32 s81, s81, 8")
    g.I("s_lshl_b32 s81, s81, 4"); g.I(f"s_add_u32 s81, s81, s{sCS}"); g.I(f"s_mul_i32 s81, s81, {SLOT}"); g.I(f"s_add_u32 s81, s81, {KV}")
    for tt in range(2):
        for i in range(6):
            g.I(f"s_add_u32 m0, s86, {tt*SLOT+i*1024}")
            g.I(f"s_add_u32 s82, s81, {tt*16*SLOT+i*1024}")
            g.vmem(f"buffer_load_dwordx4 v7, {sWS}, s82 offen sc1 lds", cond=True)
    g.lab(Lnr)
    g.I("s_waitcnt vmcnt(0)"); g.vm=[]
    g.I(f"v_mov_b32 v8, {CNT}"); g.I("v_mov_b32 v9, 1")
    g.I("s_mov_b64 exec, 1")
    g.I("ds_add_u32 v8, v9")
    g.I("s_mov_b64 exec, -1")
    QF=16
    g.I(f"s_lshl_b32 s81, s{sHW}, 11"); g.I(f"s_add_u32 s81, s81, {QL}")
    g.I("v_add_u32 v10, s81, v7")
    g.I(f"ds_read_b128 v[{QF}:{QF+3}], v10")
    g.I(f"ds_read_b128 v[{QF+4}:{QF+7}], v10 offset:1024")
    lds_spin(g,8,29,4,0x103)
    g.ts(4)
    g.I(f"s_mul_i32 s81, s{sHW}, {SLOT}")
    g.I("v_add_u32 v11, s81, v7")
    KB=[24,28,32]
    SB=[160,176]
    CZ=192
    MC=208
    PB=[36,44]
    VB=[52,60]
    OA=[96,112]
    M=[68,69]
    NEG=70
    seq=[(t,h) for h in range(2) for t in range(9)]
    def kread(n,buf):
        t,h=seq[n]; g.I(f"ds_read_b128 v[{buf}:{buf+3}], v11 offset:{t*SLOT+h*1024}")
    g.I(f"v_mov_b32 v{M[0]}, v5"); g.I(f"v_mov_b32 v{M[1]}, v5")
    kread(0,KB[0]); kread(1,KB[1])
    def setC(val_reg_or_zero):
        for r in range(16): g.I(f"v_mov_b32 v{CZ+r}, {val_reg_or_zero}")
    for n in range(19):
        if n<18:
            t,h=seq[n]
            if t==0:
                La=g.newlab("CZA"); Lb2=g.newlab("CZB")
                g.I(f"s_cmp_gt_u32 s{sTM}, 1"); g.I(f"s_cbranch_scc1 {La}")
                setC("0"); g.I(f"s_branch {Lb2}")
                g.lab(La); setC("v5"); g.lab(Lb2)
            elif 2<=t<=7:
                Ls=g.newlab("CZS")
                g.I(f"s_cmp_eq_u32 s{sTM}, {t}"); g.I(f"s_cbranch_scc0 {Ls}")
                g.nop(8)
                setC("0"); g.lab(Ls)
            if n+2<18: kread(n+2,KB[(n+2)%3])
            pend = min(2,17-n)
            g.I(f"s_waitcnt lgkmcnt({pend})")
            Cr = f"v[{BO}:{BO+15}]" if t==0 else (f"v[{BD}:{BD+15}]" if t==8 else f"v[{CZ}:{CZ+15}]")
            g.I("s_nop 1")
            g.I(f"v_mfma_f32_32x32x16_bf16 v[{SB[n%2]}:{SB[n%2]+15}], v[{KB[n%3]}:{KB[n%3]+3}], v[{QF+4*h}:{QF+4*h+3}], {Cr}")
        else:
            g.nop(12)
        if n==1: g.nop(7)
        if n>=1:
            tp,hp=seq[n-1]; Sp=SB[(n-1)%2]
            for e in range(8):
                g.I(f"v_max3_f32 v{M[hp]}, v{Sp+2*e}, v{Sp+2*e+1}, v{M[hp]}")
    for h in range(2):
        g.I(f"v_mov_b32 v{NEG+h}, v{M[h]}")
    g.I("s_nop 1")
    for h in range(2):
        g.I(f"v_permlane32_swap_b32 v{M[h]}, v{NEG+h}")
    g.I("s_nop 1")
    for h in range(2):
        g.I(f"v_max_f32 v{M[h]}, v{M[h]}, v{NEG+h}")
        g.I(f"v_sub_f32 v{NEG+h}, 0, v{M[h]}")
    g.ts(5)
    def vread(n,buf):
        t,h=seq[n]
        g.I(f"ds_read_b128 v[{buf}:{buf+3}], v11 offset:{t*SLOT+2048+h*2048}")
        g.I(f"ds_read_b128 v[{buf+4}:{buf+7}], v11 offset:{t*SLOT+2048+h*2048+1024}")
    def prepC(n):
        t,h=seq[n]
        if t==0:
            for r in range(16): g.I(f"v_add_f32 v{MC+r}, v{BO+r}, v{NEG+h}")
            La=g.newlab("C2A"); Lb2=g.newlab("C2B")
            g.I(f"s_cmp_gt_u32 s{sTM}, 1"); g.I(f"s_cbranch_scc1 {La}")
            setC(f"v{NEG+h}"); g.I(f"s_branch {Lb2}")
            g.lab(La); setC("v5"); g.lab(Lb2)
            return f"v[{MC}:{MC+15}]"
        if t==8:
            for r in range(16): g.I(f"v_add_f32 v{MC+r}, v{BD+r}, v{NEG+h}")
            return f"v[{MC}:{MC+15}]"
        if t>=2:
            Ls=g.newlab("C2S")
            g.I(f"s_cmp_eq_u32 s{sTM}, {t}"); g.I(f"s_cbranch_scc0 {Ls}")
            g.nop(8)
            setC(f"v{NEG+h}"); g.lab(Ls)
        return f"v[{CZ}:{CZ+15}]"
    def smfma(n,Cr):
        t,h=seq[n]
        g.I(f"v_mfma_f32_32x32x16_bf16 v[{SB[n%2]}:{SB[n%2]+15}], v[{KB[n%3]}:{KB[n%3]+3}], v[{QF+4*h}:{QF+4*h+3}], {Cr}")
    kread(0,KB[0]); kread(1,KB[1])
    Cr=prepC(0)
    g.I("s_waitcnt lgkmcnt(1)")
    g.I("s_nop 1")
    smfma(0,Cr)
    for n in range(18):
        t,h=seq[n]
        vread(n,VB[n%2])
        if n+2<18: kread(n+2,KB[(n+2)%3])
        if n+1<18:
            Cr=prepC(n+1)
            g.I(f"s_waitcnt lgkmcnt({3 if n+2<18 else 2})")
            g.I("s_nop 1")
            smfma(n+1,Cr)
        else:
            g.nop(10)
        if n==0: g.nop(5)
        Sn=SB[n%2]; P=PB[n%2]
        for e in range(8):
            g.I(f"v_exp_f32 v{Sn+2*e}, v{Sn+2*e}")
            g.I(f"v_exp_f32 v{Sn+2*e+1}, v{Sn+2*e+1}")
            if e>=1: g.I(f"v_cvt_pk_bf16_f32 v{P+e-1}, v{Sn+2*e-2}, v{Sn+2*e-1}")
        g.I("s_nop 0")
        g.I(f"v_cvt_pk_bf16_f32 v{P+7}, v{Sn+14}, v{Sn+15}")
        g.I(f"s_waitcnt lgkmcnt({1 if n+2<18 else 0})")
        g.I("s_nop 0")
        Vb=VB[n%2]; O=OA[h]
        Cin = "0" if t==0 else f"v[{O}:{O+15}]"
        g.I(f"v_mfma_f32_32x32x16_bf16 v[{O}:{O+15}], v[{Vb}:{Vb+3}], v[{P}:{P+3}], {Cin}")
        g.I(f"v_mfma_f32_32x32x16_bf16 v[{O}:{O+15}], v[{Vb+4}:{Vb+7}], v[{P+4}:{P+7}], v[{O}:{O+15}]")
    g.nop(12)
    g.ts(6)
    g.I(f"v_rcp_f32 v72, v{OA[0]+8}")
    g.I(f"v_rcp_f32 v73, v{OA[1]}")
    g.I("s_nop 0")
    for e in range(8):
        g.I(f"v_mul_f32 v{OA[0]+e}, v{OA[0]+e}, v72")
        g.I(f"v_mul_f32 v{OA[1]+8+e}, v{OA[1]+8+e}, v73")
    for e in range(4):
        g.I(f"v_cvt_pk_bf16_f32 v{76+e}, v{OA[0]+2*e}, v{OA[0]+2*e+1}")
        g.I(f"v_cvt_pk_bf16_f32 v{80+e}, v{OA[1]+8+2*e}, v{OA[1]+8+2*e+1}")
    g.I(f"s_lshl_b32 s81, s{sRB}, 2"); g.I(f"s_add_u32 s81, s81, s{sHW}"); g.I(f"s_mul_i32 s81, s81, {NSTEP}")
    g.I(f"s_lshl_b32 s82, s{sCS}, 1"); g.I("s_add_u32 s81, s81, s82"); g.I("s_add_u32 s81, s81, 86")
    g.I("s_lshl_b32 s81, s81, 10"); g.I(f"s_add_u32 s81, s81, {AH}")
    g.vmem(f"buffer_store_dwordx4 v[76:79], v7, {sWS}, s81 offen sc1")
    g.vmem(f"buffer_store_dwordx4 v[80:83], v7, {sWS}, s81 offen offset:1024 sc1")
    g.I("s_waitcnt vmcnt(0)"); g.vm=[]
    g.I(f"v_mov_b32 v8, {CNT+4}"); g.I("v_mov_b32 v9, 1")
    g.I("s_mov_b64 exec, 1")
    g.I("ds_add_rtn_u32 v10, v8, v9")
    g.I("s_waitcnt lgkmcnt(0)")
    g.I("v_readfirstlane_b32 s81, v10")
    g.I("s_nop 1")
    Lno=g.newlab("NOFO")
    g.I("s_cmp_eq_u32 s81, 3"); g.I(f"s_cbranch_scc0 {Lno}")
    g.I(f"s_lshl_b32 s81, s{sRB}, 7"); g.I(f"s_lshl_b32 s82, s{sCS}, 2"); g.I("s_add_u32 s81, s81, s82"); g.I(f"s_add_u32 s81, s81, {FO}")
    g.I("v_mov_b32 v3, s81"); g.I(f"v_mov_b32 v5, s{sTAG}")
    g.vmem(f"buffer_store_dword v5, v3, {sWS}, 0 offen sc1", cond=True)
    g.lab(Lno)
    g.I("s_mov_b64 exec, -1")
    g.ts(7)
    g.I(f"s_or_b32 s81, s2, s{sHW}")
    g.I("s_cmp_eq_u32 s81, 0"); g.I("s_cbranch_scc0 L_END")
    for q in range(4):
        g.I("v_lshrrev_b32 v3, 2, v0"); g.I("v_lshlrev_b32 v3, 7, v3")
        g.I("v_and_b32 v4, 3, v0"); g.I("v_lshl_add_u32 v3, v4, 4, v3")
        g.I(f"v_add_u32 v17, {FPR+4*q}, v3")
        poll(g,17,29,0x104)
    g.I("v_mov_b32 v3, 0"); g.I(f"v_mov_b32 v5, s{sTAG}")
    g.I("s_mov_b64 exec, 1")
    g.vmem(f"buffer_store_dword v5, v3, {sWS}, 0 offen sc1")
    g.I("s_waitcnt vmcnt(0)")
    g.I("s_branch L_END")

def gwave(g):
    vXa=8
    vWt=12
    FS=[16,36]
    ACC=64
    def acc(tj,ti): return ACC+(tj*2+ti)*16
    g.lab("L_GWAVE")
    g.ts(0)
    g.I("v_mov_b32 v3, 0")
    g.vmem(f"buffer_load_dword v28, v3, {sWS}, 0 offen sc1", tag="nonce")
    sRHO=70; sSIG=71
    g.I(f"s_and_b32 s{sRHO}, s{sW}, 1"); g.I(f"s_lshr_b32 s{sSIG}, s{sW}, 1")
    g.I("v_and_b32 v2, 31, v0")
    g.I("v_lshrrev_b32 v3, 3, v2"); g.I("v_lshlrev_b32 v3, 10, v3")
    g.I("v_and_b32 v4, 7, v2"); g.I("v_lshl_add_u32 v3, v4, 7, v3")
    g.I("v_bfe_u32 v4, v0, 1, 3"); g.I("v_lshrrev_b32 v5, 5, v0"); g.I("v_xor_b32 v4, v4, v5")
    g.I("v_lshl_add_u32 v3, v4, 4, v3")
    g.I(f"s_lshl_b32 s72, s{sRHO}, 13")
    g.I(f"v_add_u32 v{vXa}, s72, v3")
    for t in range(1,4): g.I(f"v_xor_b32 v{vXa+t}, {t<<5}, v{vXa}")
    g.I("v_lshrrev_b32 v3, 5, v0"); g.I("v_lshlrev_b32 v3, 3, v3")
    g.I("v_bfe_u32 v4, v0, 2, 2"); g.I("v_add_u32 v3, v3, v4"); g.I("v_mul_u32_u24 v3, 192, v3")
    g.I("v_bfe_u32 v4, v0, 4, 1"); g.I("v_lshl_add_u32 v3, v4, 5, v3")
    g.I("v_and_b32 v4, 3, v0"); g.I("v_lshl_add_u32 v3, v4, 3, v3")
    g.I(f"s_mul_i32 s72, s{sSIG}, {WBST(0)-WAST(0)}"); g.I(f"s_add_u32 s72, s72, {WAST(0)}")
    g.I(f"v_add_u32 v{vWt}, s72, v3")
    g.I(f"s_and_b32 s72, s{sIDX}, 3")
    g.I(f"s_lshl_b32 s{sA3}, s{sJ}, 3"); g.I("s_lshl_b32 s73, s72, 1"); g.I(f"s_add_u32 s{sA3}, s{sA3}, s73")
    g.I(f"s_lshr_b32 s{sCT}, s{sIDX}, 2")
    g.I(f"s_lshr_b32 s{sRB3}, s{sA3}, 2")
    g.wait_vm("nonce")
    g.I(f"v_readfirstlane_b32 s{sTAG}, v28")
    g.I("s_nop 1")
    g.I(f"s_add_u32 s{sTAG}, s{sTAG}, {TAGC}")
    g.I(f"s_cmp_eq_u32 s{sSIG}, 0")
    g.I("s_cbranch_scc0 L_GB")
    vm0=list(g.vm)
    def p1loop(stream):
        def reads(it,t,fs):
            st=it%3
            for ti in range(2):
                g.I(f"ds_read_b128 v[{fs+4*ti}:{fs+4*ti+3}], v{vXa+t} offset:{XST(st)+ti*4096}")
            for tj in range(3):
                b=fs+8+4*tj
                off=st*12288+t*3072+tj*64
                g.I(f"ds_read_b64_tr_b16 v[{b}:{b+1}], v{vWt} offset:{off}")
                g.I(f"ds_read_b64_tr_b16 v[{b+2}:{b+3}], v{vWt} offset:{off+768}")
        def mfmas(fs,first):
            for tj in range(3):
                for ti in range(2):
                    a=acc(tj,ti); W=f"v[{fs+8+4*tj}:{fs+11+4*tj}]"; X=f"v[{fs+4*ti}:{fs+4*ti+3}]"
                    Cin="0" if first else f"v[{a}:{a+15}]"
                    if stream==0 and tj==2: g.I(f"v_mfma_f32_32x32x16_bf16 v[{a}:{a+15}], {X}, {W}, {Cin}")
                    else: g.I(f"v_mfma_f32_32x32x16_bf16 v[{a}:{a+15}], {W}, {X}, {Cin}")
        k=0
        for it in range(8):
            g.I("s_waitcnt lgkmcnt(0)")
            g.I("s_barrier")
            for t in range(4):
                n=it*4+t
                reads(it,t,FS[n%2])
                if n>=1:
                    if t>=1: g.I("s_waitcnt lgkmcnt(8)")
                    mfmas(FS[(n-1)%2], n-1==0)
        g.I("s_waitcnt lgkmcnt(0)")
        mfmas(FS[31%2], False)
        g.I("s_barrier")
    def epi_common(stream):
        CX=[16,20]; RI=[24,25]; SJ=[26,27,28]; CW=[32,36,40]
        g.I("v_and_b32 v2, 31, v0")
        g.I(f"s_lshl_b32 s72, s{sRHO}, 8")
        g.I("v_lshlrev_b32 v3, 2, v2")
        g.I("v_add_u32 v4, s72, v3")
        g.I(f"v_add_u32 v4, {NM}, v4")
        for ti in range(2):
            g.I(f"ds_read2_b32 v[{CX[ti]}:{CX[ti]+1}], v4 offset0:{ti*32} offset1:{ti*32}")
            g.I(f"ds_read_b32 v{RI[ti]}, v4 offset:{RL-NM+ti*128}")
        g.I(f"v_add_u32 v5, {SL+stream*384}, v3")
        for tj in range(3): g.I(f"ds_read_b32 v{SJ[tj]}, v5 offset:{tj*128}")
        for ti in range(2):
            g.I(f"v_mov_b32 v{CX[ti]+2}, 0"); g.I(f"v_mov_b32 v{CX[ti]+3}, 0")
        for tj in range(3):
            g.I(f"v_mov_b32 v{CW[tj]+2}, 0"); g.I(f"v_mov_b32 v{CW[tj]+3}, 0")
        g.I("v_lshrrev_b32 v6, 5, v0"); g.I("v_add_u32 v6, -1, v6")
        g.I("s_waitcnt lgkmcnt(0)")
        for tj in range(3):
            s_=SJ[tj]; w=CW[tj]
            g.I(f"v_and_b32 v{s_}, v6, v{s_}")
            g.I(f"v_cvt_pk_bf16_f32 v44, v{s_}, v{s_}")
            g.I(f"v_and_b32 v45, 0xffff0000, v44")
            g.I(f"v_sub_f32 v46, v{s_}, v45")
            g.I(f"v_cvt_pk_bf16_f32 v47, v46, v46")
            g.I(f"v_and_b32 v48, 0xffff0000, v47")
            g.I(f"v_sub_f32 v46, v46, v48")
            g.I(f"v_cvt_pk_bf16_f32 v{w}, v45, v48")
            g.I(f"v_cvt_pk_bf16_f32 v{w+1}, v46, 0")
        g.I("s_nop 1")
        for tj in ([1,2,0] if stream==0 else [0,1,2]):
            for ti in range(2):
                a=acc(tj,ti); W=f"v[{CW[tj]}:{CW[tj]+3}]"; X=f"v[{CX[ti]}:{CX[ti]+3}]"
                if stream==0 and tj==2: g.I(f"v_mfma_f32_32x32x16_bf16 v[{a}:{a+15}], {X}, {W}, v[{a}:{a+15}]")
                else: g.I(f"v_mfma_f32_32x32x16_bf16 v[{a}:{a+15}], {W}, {X}, v[{a}:{a+15}]")
        return RI
    p1loop(0)
    g.ts(2)
    RI=epi_common(0)
    g.I("v_lshlrev_b32 v7, 4, v0")
    RV=160
    g.I("v_lshrrev_b32 v3, 5, v0"); g.I("v_lshlrev_b32 v3, 4, v3")
    g.I(f"s_lshl_b32 s72, s{sRHO}, 8"); g.I(f"s_add_u32 s72, s72, {RL}")
    g.I("v_add_u32 v3, s72, v3")
    for ti in range(2):
        for q in range(4):
            b=RV+16*ti+4*q
            g.I(f"ds_read_b128 v[{b}:{b+3}], v3 offset:{ti*128+q*32}")
    g.I("v_bfe_u32 v8, v0, 4, 1"); g.I("v_add_u32 v8, -1, v8")
    g.I("v_mov_b32 v9, 0x3f803f80")
    g.I("v_mov_b32 v10, 0x3eb8aa3b")
    g.I(f"s_lshl_b32 s72, s{sRHO}, 1"); g.I("s_add_u32 s73, s72, 8"); g.I(f"s_mul_i32 s73, s73, {SLOT}")
    g.I("v_add_u32 v11, s73, v7")
    g.I(f"s_lshl_b32 s74, s{sRB}, 2"); g.I("s_add_u32 s74, s74, s72"); g.I("s_lshl_b32 s74, s74, 4"); g.I(f"s_add_u32 s74, s74, s{sCS}")
    g.I(f"s_mul_i32 s74, s74, {SLOT}"); g.I(f"s_add_u32 s74, s74, {KV}")
    g.I(f"s_add_u32 s75, s74, {16*SLOT}")
    sKV=[74,75]
    T=192
    g.I("s_waitcnt lgkmcnt(0)")
    g.nop(4)
    for ti in range(2):
        a=acc(1,ti)
        for r in range(16): g.I(f"v_mul_f32 v{a+r}, v{a+r}, v{RI[ti]}")
        b=T+8*ti
        for e in range(8): g.I(f"v_cvt_pk_bf16_f32 v{b+e}, v{a+2*e}, v{a+2*e+1}")
        for hh in range(2):
            g.vmem(f"buffer_store_dwordx4 v[{b+4*hh}:{b+4*hh+3}], v7, {sWS}, s{sKV[ti]} offen offset:{hh*1024} sc1")
            g.I(f"ds_write_b128 v11, v[{b+4*hh}:{b+4*hh+3}] offset:{ti*SLOT+hh*1024}")
    for ti in range(2):
        a=acc(2,ti)
        for r in range(16): g.I(f"v_mul_f32 v{a+r}, v{a+r}, v{RV+16*ti+r}")
        b=T+16+24*ti
        for e in range(8): g.I(f"v_cvt_pk_bf16_f32 v{b+e}, v{a+2*e}, v{a+2*e+1}")
        for e in range(8):
            g.I(f"v_bfi_b32 v{b+8+e}, v8, v{b+e}, v9")
            g.I(f"v_bfi_b32 v{b+16+e}, v8, v9, v{b+e}")
        g.I(f"s_add_u32 s76, s{sKV[ti]}, 2048")
        for hh in range(2):
            for half in range(2):
                r0=b+8+8*hh+4*half
                g.vmem(f"buffer_store_dwordx4 v[{r0}:{r0+3}], v7, {sWS}, s76 offen offset:{hh*2048+half*1024} sc1")
                g.I(f"ds_write_b128 v11, v[{r0}:{r0+3}] offset:{ti*SLOT+2048+hh*2048+half*1024}")
    g.I(f"s_lshl_b32 s72, s{sRHO}, 12"); g.I(f"s_add_u32 s72, s72, {QL}")
    g.I("v_add_u32 v12, s72, v7")
    for ti in range(2):
        a=acc(0,ti)
        g.I(f"v_mul_f32 v13, v{RI[ti]}, v10")
        for r in range(16): g.I(f"v_mul_f32 v{a+r}, v{a+r}, v13")
        b=16+8*ti+32
        for e in range(8): g.I(f"v_cvt_pk_bf16_f32 v{b+e}, v{a+2*e}, v{a+2*e+1}")
        for hh in range(2):
            g.I(f"ds_write_b128 v12, v[{b+4*hh}:{b+4*hh+3}] offset:{ti*2048+hh*1024}")
    g.I("s_branch L_GJOIN")
    g.lab("L_GB")
    g.vm=list(vm0)
    p1loop(1)
    g.ts(2)
    RI=epi_common(1)
    g.I("v_lshlrev_b32 v7, 4, v0")
    g.I(f"s_lshl_b32 s72, s{sRHO}, 1"); g.I(f"s_lshl_b32 s74, s{sRB}, 2"); g.I("s_add_u32 s74, s74, s72")
    g.I(f"s_mul_i32 s74, s74, {NSTEP}"); g.I(f"s_add_u32 s74, s74, s{sU0}"); g.I("s_lshl_b32 s74, s74, 10"); g.I(f"s_add_u32 s74, s74, {AH}")
    g.I(f"s_add_u32 s75, s74, {NSTEP*1024}")
    g.nop(6)
    T=192
    for tj in range(3):
        for ti in range(2):
            a=acc(tj,ti)
            for r in range(16): g.I(f"v_mul_f32 v{a+r}, v{a+r}, v{RI[ti]}")
            b=T+8*((tj*2+ti)%4)
            for e in range(8): g.I(f"v_cvt_pk_bf16_f32 v{b+e}, v{a+2*e}, v{a+2*e+1}")
            for e in range(8): g.I(f"v_pk_max_i16 v{b+e}, v{b+e}, 0")
            for half in range(2):
                u=2*tj+half
                if u<4:
                    g.vmem(f"buffer_store_dwordx4 v[{b+4*half}:{b+4*half+3}], v7, {sWS}, s{74+ti} offen offset:{u*1024} sc1")
                else:
                    g.I(f"s_add_u32 s76, s{74+ti}, 4096")
                    if u==5:
                        Ls=g.newlab("NOU5")
                        g.I(f"s_cmp_eq_u32 s{sWID}, 6"); g.I(f"s_cbranch_scc0 {Ls}")
                        g.vmem(f"buffer_store_dwordx4 v[{b+4*half}:{b+4*half+3}], v7, {sWS}, s76 offen offset:1024 sc1", cond=True)
                        g.lab(Ls)
                    else:
                        g.vmem(f"buffer_store_dwordx4 v[{b+4*half}:{b+4*half+3}], v7, {sWS}, s76 offen sc1")
    g.lab("L_GJOIN")
    g.I("s_waitcnt vmcnt(0) lgkmcnt(0)"); g.vm=[]
    g.I("s_barrier")
    g.ts(3)
    PF=6; NS=8
    AHR=128
    WSR=[16,24]
    PA=64
    vL16=7; vWd=8; vWr=[9,10]
    g.I("v_lshlrev_b32 v7, 4, v0")
    g.I("v_lshrrev_b32 v3, 3, v0"); g.I("v_lshlrev_b32 v3, 10, v3")
    g.I("v_and_b32 v4, 7, v0"); g.I("v_bfe_u32 v5, v0, 4, 1"); g.I("v_lshlrev_b32 v5, 2, v5"); g.I("v_xor_b32 v4, v4, v5")
    g.I("v_lshl_add_u32 v3, v4, 4, v3")
    g.I(f"s_lshl_b32 s72, s{sCT}, 7"); g.I(f"v_add_u32 v{vWd}, s72, v3")
    sRG=73
    g.I(f"s_lshl_b32 s{sRG}, s{sW}, 14"); g.I(f"s_add_u32 s{sRG}, s{sRG}, {RING}")
    g.I("v_lshrrev_b32 v3, 5, v0"); g.I("v_lshlrev_b32 v3, 2, v3"); g.I("v_bfe_u32 v4, v0, 2, 2"); g.I("v_add_u32 v3, v3, v4")
    g.I("v_lshlrev_b32 v3, 7, v3")
    g.I("v_bfe_u32 v4, v0, 3, 1"); g.I("v_lshl_add_u32 v3, v4, 6, v3")
    g.I("v_bfe_u32 v4, v0, 4, 1"); g.I("v_lshl_add_u32 v3, v4, 5, v3")
    g.I("v_and_b32 v4, 3, v0"); g.I("v_lshl_add_u32 v3, v4, 3, v3")
    g.I(f"v_add_u32 v{vWr[0]}, s{sRG}, v3"); g.I(f"v_xor_b32 v{vWr[1]}, 64, v{vWr[0]}")
    sAH0=74; sAH1=75; sWof=76; sT=77
    g.I(f"s_mul_i32 s{sAH0}, s{sA3}, {NSTEP}"); g.I(f"s_add_u32 s{sAH0}, s{sAH0}, s{sW}"); g.I(f"s_lshl_b32 s{sAH0}, s{sAH0}, 10")
    g.I(f"s_add_u32 s{sAH0}, s{sAH0}, {AH}"); g.I(f"s_add_u32 s{sAH1}, s{sAH0}, {NSTEP*1024}")
    g.I(f"s_lshl_b32 s{sWof}, s{sW}, 14")
    NH=22; NO=8; NT=NH+NO
    def w_issue(i):
        if i<NH: srd=sW2; off=i*4*16384
        else: srd=sWO; off=(i-NH)*4*16384
        slot=i%NS
        for k in range(2):
            g.I(f"s_add_u32 m0, s{sRG}, {slot*2048+k*1024}")
            g.I(f"s_add_u32 s{sT}, s{sWof}, {off+k*8192}")
            g.vmem(f"buffer_load_dwordx4 v{vWd}, {srd}, s{sT} offen lds", tag=f"w{i}")
    def a_issue(i):
        off = i*4096 if i<NH else (86*1024+(i-NH)*4096)
        b=AHR+(i%8)*8
        g.I(f"s_add_u32 s{sT}, s{sAH0}, {off}")
        g.vmem(f"buffer_load_dwordx4 v[{b}:{b+3}], v{vL16}, {sWS}, s{sT} offen sc1", tag=f"a{i}")
        g.I(f"s_add_u32 s{sT}, s{sAH1}, {off}")
        g.vmem(f"buffer_load_dwordx4 v[{b+4}:{b+7}], v{vL16}, {sWS}, s{sT} offen sc1", tag=f"a{i}")
    def w_read(i):
        slot=i%NS; ws_=WSR[i%2]
        for tn in range(2):
            g.I(f"ds_read_b64_tr_b16 v[{ws_+4*tn}:{ws_+4*tn+1}], v{vWr[tn]} offset:{slot*2048}")
            g.I(f"ds_read_b64_tr_b16 v[{ws_+4*tn+2}:{ws_+4*tn+3}], v{vWr[tn]} offset:{slot*2048+1024}")
    def p3mfma(i):
        ws_=WSR[i%2]; b=AHR+(i%8)*8
        for tn in range(2):
            for ti in range(2):
                a=PA+(tn*2+ti)*16
                Cin="0" if i==0 else f"v[{a}:{a+15}]"
                g.I(f"v_mfma_f32_32x32x16_bf16 v[{a}:{a+15}], v[{ws_+4*tn}:{ws_+4*tn+3}], v[{b+4*ti}:{b+4*ti+3}], {Cin}")
    for i in range(PF): w_issue(i)
    XR=192
    g.I(f"s_lshl_b32 s78, s{sW}, 3"); g.I("v_lshrrev_b32 v3, 3, v0"); g.I("v_add_u32 v3, s78, v3")
    g.I("v_lshlrev_b32 v3, 10, v3"); g.I("v_and_b32 v4, 7, v0"); g.I("v_lshl_add_u32 v11, v4, 4, v3")
    g.I(f"s_lshl_b32 s78, s{sA3}, 15"); g.I(f"s_lshl_b32 s79, s{sCT}, 7"); g.I("s_add_u32 s78, s78, s79")
    g.I("s_add_u32 s79, s78, 32768")
    g.vmem(f"buffer_load_dwordx4 v[{XR}:{XR+3}], v11, {sX}, s78 offen", tag="xr")
    g.vmem(f"buffer_load_dwordx4 v[{XR+4}:{XR+7}], v11, {sX}, s79 offen", tag="xr")
    g.I("v_and_b32 v3, 15, v0"); g.I("v_lshlrev_b32 v3, 2, v3")
    g.I(f"s_lshl_b32 s80, s{sRB3}, 7"); g.I(f"s_add_u32 s80, s80, {FP1}")
    g.I("v_add_u32 v12, s80, v3")
    poll(g,12,13,0x201)
    g.ts(4)
    for i in range(PF): a_issue(i)
    g.wait_vm("a0")
    w_read(0)
    for i in range(NT):
        if i==NH:
            g.ts(5)
            g.I(f"s_lshl_b32 s80, s{sRB3}, 7"); g.I(f"s_add_u32 s80, s80, {FO}")
            g.I("v_and_b32 v3, 15, v0"); g.I("v_lshlrev_b32 v3, 2, v3")
            g.I("v_add_u32 v12, s80, v3")
            poll(g,12,13,0x202)
            g.ts(6)
            for k in range(NH,NT): a_issue(k)
            for k in range(NH+PF,NT): w_issue(k)
            g.wait_vm(f"a{NH}")
            w_read(NH)
        nxt=i+1
        if nxt<NT and nxt!=NH:
            tags=[f"a{nxt}",f"w{nxt}"]
            g.wait_vm(*tags)
            w_read(nxt)
            g.I("s_waitcnt lgkmcnt(4)")
        else:
            g.I("s_waitcnt lgkmcnt(0)")
        if i==NH-1:
            Ls=g.newlab("SKIPM")
            g.I(f"s_cmp_ge_u32 s{sW}, 2"); g.I(f"s_cbranch_scc1 {Ls}")
            p3mfma(i); g.lab(Ls)
        else:
            p3mfma(i)
        k=i+PF
        if k<NH: a_issue(k); w_issue(k)
        elif k<NH+PF and i<NH: w_issue(k)
    g.ts(7)
    g.I("v_and_b32 v2, 31, v0"); g.I("v_lshlrev_b32 v3, 8, v2"); g.I(f"v_add_u32 v3, s{sRG}, v3")
    g.I("v_and_b32 v4, 7, v0"); g.I("v_lshrrev_b32 v5, 5, v0")
    for q in range(4):
        g.I(f"v_add_u32 v6, {2*q}, v5"); g.I("v_xor_b32 v6, v6, v4"); g.I(f"v_lshl_add_u32 v{16+q}, v6, 4, v3")
    g.nop(8)
    for tn in range(2):
        for ti in range(2):
            a=PA+(tn*2+ti)*16
            for q in range(4):
                g.I(f"ds_write_b128 v{16+q}, v[{a+4*q}:{a+4*q+3}] offset:{ti*8192+tn*128}")
    g.I("s_waitcnt lgkmcnt(0)")
    g.I("s_barrier")
    g.I(f"s_lshl_b32 s78, s{sW}, 3"); g.I("v_lshrrev_b32 v3, 3, v0"); g.I("v_add_u32 v3, s78, v3")
    g.I("v_and_b32 v4, 7, v3")
    g.I("v_and_b32 v5, 7, v0"); g.I("v_lshlrev_b32 v5, 1, v5")
    g.I("v_xor_b32 v6, v5, v4"); g.I("v_or_b32 v5, 1, v5"); g.I("v_xor_b32 v5, v5, v4")
    g.I("v_lshlrev_b32 v3, 8, v3"); g.I(f"v_add_u32 v3, {RING}, v3")
    g.I("v_lshl_add_u32 v16, v6, 4, v3"); g.I("v_lshl_add_u32 v17, v5, 4, v3")
    R=64
    for p in range(2):
        for k in range(4):
            for e in range(2):
                b=R+(p*8+k*2+e)*4
                off=p*8192+k*16384
                if off<65536:
                    g.I(f"ds_read_b128 v[{b}:{b+3}], v{16+e} offset:{off}")
    g.I(f"s_lshl_b32 s78, s{sA3}, 15"); g.I(f"s_lshl_b32 s79, s{sCT}, 7"); g.I("s_add_u32 s78, s78, s79"); g.I("s_add_u32 s79, s78, 32768")
    for p in range(2):
        g.I(f"s_waitcnt lgkmcnt({8 if p==0 else 0})")
        for e in range(2):
            for c in range(4):
                b0=R+(p*8+0+e)*4+c
                for k in range(1,4):
                    g.I(f"v_add_f32 v{b0}, v{b0}, v{R+(p*8+k*2+e)*4+c}")
        for e4 in range(4):
            xr=XR+4*p+e4
            g.I(f"v_lshlrev_b32 v20, 16, v{xr}"); g.I(f"v_and_b32 v21, 0xffff0000, v{xr}")
            o0=R+(p*8+(e4>>1))*4+2*(e4&1)
            g.I(f"v_add_f32 v{o0}, v{o0}, v20"); g.I(f"v_add_f32 v{o0+1}, v{o0+1}, v21")
            g.I(f"v_cvt_pk_bf16_f32 v{24+4*p+e4}, v{o0}, v{o0+1}")
        g.vmem(f"buffer_store_dwordx4 v[{24+4*p}:{27+4*p}], v11, {sOUT}, s{78+p} offen")
    g.ts(8)

def build():
    g=G()
    prologue(g)
    vm0=list(g.vm)
    hwave(g)
    g.vm=vm0
    gwave(g)
    g.lab("L_END")
    g.I("s_endpgm")
    return g.L

HEAD=f"""; fused persistent kernel: LN + QKV/W1 GEMM + sliding-window attention + W2/WO GEMM
; @launch grid=(256,1,1) block=(512,1,1) lds={LDS_TOTAL}
.amdgcn_target "amdgcn-amd-amdhsa--gfx950"
.text
.globl {KNAME}
.p2align 8
.type {KNAME},@function
{KNAME}:
"""
TAIL=f""".section .rodata,"a"
.p2align 6
.amdhsa_kernel {KNAME}
  .amdhsa_next_free_vgpr 256
  .amdhsa_next_free_sgpr 102
  .amdhsa_accum_offset 256
  .amdhsa_group_segment_fixed_size 0
  .amdhsa_kernarg_size 72
  .amdhsa_user_sgpr_count 2
  .amdhsa_user_sgpr_kernarg_segment_ptr 1
  .amdhsa_system_sgpr_workgroup_id_x 1
  .amdhsa_float_denorm_mode_32 3
.end_amdhsa_kernel
"""
if __name__=="__main__":
    out=sys.argv[1] if len(sys.argv)>1 else "k.s"
    for a in sys.argv[2:]:
        k,_,val=a.partition("="); OPT[k]=int(val,0) if val else True
    L=build()
    errs=lint(L)
    for e in errs[:60]: print("LINT:",e)
    print(len(errs),"lint errors;",len(L),"lines")
    open(out,"w").write(HEAD+"\n".join(L)+"\n"+TAIL)
```

```python
import re, sys
TRANS = ("v_exp_f32","v_log_f32","v_rcp_f32","v_rsq_f32","v_sqrt_f32","v_sin_f32","v_cos_f32")
def split_ops(s):
    out=[]; d=0; cur=""
    for ch in s:
        if ch in "[(": d+=1
        if ch in "])": d-=1
        if ch=="," and d==0: out.append(cur.strip()); cur=""
        else: cur+=ch
    if cur.strip(): out.append(cur.strip())
    return out
RV = re.compile(r'^-?(?:abs\()?\|?([vsa])(\d+)\)?\|?$')
RR = re.compile(r'^-?([vsa])\[(\d+):(\d+)\]$')
def regs(op):
    op = op.split()[0] if op else op
    m = RV.match(op)
    if m: return [(m.group(1), int(m.group(2)))]
    m = RR.match(op)
    if m: return [(m.group(1), i) for i in range(int(m.group(2)), int(m.group(3))+1)]
    if op=="vcc": return [("s",106),("s",107)]
    if op=="vcc_lo": return [("s",106)]
    if op=="vcc_hi": return [("s",107)]
    if op=="exec": return [("s",126),("s",127)]
    if op=="exec_lo": return [("s",126)]
    if op=="exec_hi": return [("s",127)]
    if op=="m0": return [("s",124)]
    return []
class Ins:
    def __init__(self, text, ln):
        self.text=text; self.ln=ln
        code, _, com = text.partition(";")
        self.com = com
        code = code.strip()
        p = code.split(None,1)
        self.mn = p[0]
        rest = p[1] if len(p)>1 else ""
        self.ops = split_ops(rest)
        self.rest = rest
        mn=self.mn; ops=self.ops
        self.w=[]; self.r=[]; self.kind="other"
        R=lambda i: regs(ops[i]) if i < len(ops) else []
        al = lambda lo: [x for o in ops[lo:] for x in regs(o)]
        if mn.startswith("v_mfma"):
            self.kind="mfma"; self.w=R(0); self.A=R(1); self.B=R(2); self.C=R(3); self.r=self.A+self.B+self.C
            self.passes = 8 if "32x32" in mn else 4
        elif mn.startswith("v_"):
            self.kind="valu"
            self.dpp = any(k in rest for k in ("row_","quad_perm","wave_"))
            self.trans = mn.replace("_e32","").replace("_e64","") in TRANS
            b = mn.replace("_e32","").replace("_e64","").replace("_dpp","").replace("_sdwa","")
            if b.startswith("v_cmp"):
                self.w=R(0); self.r=al(1)
            elif b in ("v_readfirstlane_b32","v_readlane_b32"):
                self.w=R(0); self.r=al(1); self.kind="valu"; self.rdlane=True
            elif b.startswith("v_permlane") and "swap" in b:
                self.w=R(0)+R(1); self.r=R(0)+R(1); self.perm=True
            elif b in ("v_add_co_u32","v_sub_co_u32","v_subrev_co_u32"):
                self.w=R(0)+R(1); self.r=al(2)
            elif b in ("v_addc_co_u32","v_subb_co_u32"):
                self.w=R(0)+R(1); self.r=al(2)
            elif b in ("v_fmac_f32","v_dot2c_f32_bf16","v_writelane_b32"):
                self.w=R(0); self.r=R(0)+al(1)
            else:
                self.w=R(0); self.r=al(1)
                if self.dpp and ("bound_ctrl" not in rest or "row_mask:0xf" not in rest): self.r = self.r + R(0)
        elif mn.startswith("ds_"):
            self.kind="ds"
            if mn.startswith("ds_read") or "_rtn" in mn or mn.startswith("ds_bpermute") or mn.startswith("ds_swizzle"):
                self.w=R(0); self.r=al(1)
            else: self.r=al(0)
        elif mn.startswith("buffer_") or mn.startswith("global_"):
            self.kind="vmem"
            toks = rest.replace(","," ").split()
            self.lds = "lds" in toks
            if mn in ("buffer_inv","buffer_wbl2"): self.r=[]
            elif "load" in mn and not self.lds:
                self.w=R(0); self.r=al(1)
            elif "load" in mn: self.r=al(0)+[("s",124)]
            elif "atomic" in mn and "sc0" in toks:
                self.w=R(0); self.r=al(0)
            else:
                self.r=al(0); self.store=True
                self.wide = ("x4" in mn or "x3" in mn)
                self.sdata = R(0) if mn.startswith("buffer_") else R(1)
        elif mn.startswith("s_load") :
            self.kind="smem"; self.w=R(0); self.r=al(1)
        elif mn in ("s_memtime","s_memrealtime"):
            self.kind="smem"; self.w=R(0)
        elif mn in ("s_waitcnt","s_nop","s_barrier","s_endpgm","s_sleep","s_setprio","s_branch") or mn.startswith("s_cbranch"):
            self.kind="ctl"
            if mn in ("s_cbranch_vccz","s_cbranch_vccnz"): self.r=[("s",106),("s",107)]
        elif mn.startswith("s_cmp") or mn.startswith("s_bitcmp"):
            self.kind="salu"; self.r=al(0)
        elif mn.startswith("s_"):
            self.kind="salu"; self.w=R(0); self.r=al(1)
            if mn in ("s_and_saveexec_b64","s_or_saveexec_b64"): self.w=self.w+[("s",126),("s",127)]
class St:
    def __init__(s):
        s.h={}
        s.vm={}
        s.lg={}
        s.sm=set(); s.ur={}
    def copy(s):
        n=St(); n.h=dict(s.h); n.vm=dict(s.vm); n.lg=dict(s.lg); n.sm=set(s.sm); n.ur=dict(s.ur); return n
    def merge(s,o):
        for k,v in o.h.items(): s.h[k]=min(s.h.get(k,99),v)
        for k,v in o.vm.items(): s.vm[k]=min(s.vm.get(k,999),v)
        for k,v in o.lg.items(): s.lg[k]=min(s.lg.get(k,999),v)
        s.sm|=o.sm
        for k in list(s.ur):
            if k not in o.ur: del s.ur[k]
    def age(s,n):
        s.h={k:v+n for k,v in s.h.items() if v+n<40}
def lint(lines, verbose=True):
    prog=[]; labels={}
    for i,l in enumerate(lines):
        t=l.strip()
        if not t or t.startswith(".") or t.startswith("//"): continue
        if t.startswith(";"):
            if t.startswith(";@"): prog.append(("ann",t,i))
            continue
        m=re.match(r'^([\w.$]+):\s*$',t)
        if m: labels[m.group(1)]=len(prog); prog.append(("label",m.group(1),i)); continue
        prog.append(("ins",Ins(t,i),i))
    errs=[]
    def err(ins,msg): errs.append(f"line {ins.ln+1}: {ins.text.strip()}  -> {msg}")
    def need(st,ins,key,n,msg):
        a=st.h.get(key)
        if a is not None and a<n: err(ins,f"{msg}: have {a} need {n}")
    def step(st,ins):
        k=ins.kind
        vr=[x for x in ins.r if x[0]=="v"]; vw=[x for x in ins.w if x[0]=="v"]
        sr=[x for x in ins.r if x[0]=="s"]
        for x in ins.r: st.ur.pop(x,None)
        for x in ins.w:
            if x in st.ur and x[0]=='v' and 'merge' not in ins.com: err(ins,f'reg {x} overwritten; value loaded at line {st.ur[x]+1} never read')
            st.ur.pop(x,None)
        if k in ('ds','vmem') and 'pf' not in ins.com and ins.w and ins.w[0][1]<240:
            for x in ins.w: st.ur[x]=ins.ln
        elif k=='ds':
            for x in ins.w: st.ur[x]=ins.ln
        for x in ins.r+ins.w:
            if 'merge' in ins.com and x in ins.w: continue
            if x in st.vm: err(ins,f"reg {x} has pending vmem load (younger={st.vm[x]})")
            if x in st.lg: err(ins,f"reg {x} has pending lds load (younger={st.lg[x]})")
            if x in st.sm: err(ins,f"reg {x} has pending smem load")
        if k=="mfma":
            for x in vr: need(st,ins,("valu",x),2,"VALU write -> MFMA read")
            for x in ins.A+ins.B:
                a=st.h.get(("mfma",x))
                if a is not None:
                    p=st.h_p.get(x,8) if hasattr(st,"h_p") else 8
                    need(st,ins,("mfma",x),12,"MFMA D -> MFMA A/B")
            if ins.C:
                for x in ins.C:
                    a=st.h.get(("mfma",x))
                    if a is not None and a<10:
                        key=("mfmarange",ins.C[0],len(ins.C))
                        if st.h.get(key)!=a: err(ins,f"MFMA D -> MFMA C overlap not exact: have {a} need 10")
            for x in ins.w:
                a=st.h.get(("mfma",x))
                if a is not None and a<10 and x not in ins.C: err(ins,f"MFMA D WAW w/o C chain have {a}")
        elif k in("valu","ds","vmem"):
            for x in vr:
                need(st,ins,("mfma",x),12,"MFMA D -> read")
                if k=="valu" and not ins.trans: need(st,ins,("trans",x),1,"trans -> VALU")
                if k=="valu" and ins.dpp: need(st,ins,("valu",x),2,"VALU -> DPP read")
                if k=="valu" and getattr(ins,"perm",False): need(st,ins,("valu",x),2,"VALU -> permlane")
                if k=="valu" and getattr(ins,"rdlane",False): need(st,ins,("valu",x),1,"VALU -> readlane")
            for x in vw:
                need(st,ins,("mfma",x),12,"MFMA D -> write(WAW)")
                if k=="valu":
                    need(st,ins,("mfmac",x),7,"MFMA srcC read -> VALU write")
                    need(st,ins,("stdata",x),2,"wide store data -> VALU write")
                else: need(st,ins,("stdata",x),1,"wide store data -> write")
            if k=="valu":
                for x in sr: need(st,ins,("valus",x),2,"VALU sgpr write -> VALU read")
                if getattr(ins,"rdlane",False) and ins.mn.startswith("v_readlane"):
                    for x in sr: need(st,ins,("valus",x),4,"VALU sgpr -> lane select")
            if k=="vmem":
                for x in sr:
                    need(st,ins,("valus",x),5,"VALU sgpr write -> VMEM read")
                if getattr(ins,"lds",False): need(st,ins,("m0",),1,"M0 write -> LDS DMA")
        elif k in ("salu","ctl","smem"):
            for x in sr: need(st,ins,("valus",x),1,"VALU sgpr write -> SALU read (pad)")
        n=1
        if ins.mn=="s_nop": n=int(ins.ops[0],0)+1
        st.age(n)
        if k=="mfma":
            for x in ins.w: st.h[("mfma",x)]=0; st.h.pop(("valu",x),None)
            st.h[("mfmarange",ins.w[0],len(ins.w))]=0
            for x in ins.C: st.h[("mfmac",x)]=0
        elif k=="valu":
            for x in ins.w:
                if x[0]=="v":
                    st.h[("valu",x)]=0
                    st.h.pop(("mfma",x),None)
                    if ins.trans: st.h[("trans",x)]=0
                    else: st.h.pop(("trans",x),None)
                else: st.h[("valus",x)]=0
        elif k=="salu":
            for x in ins.w:
                st.h.pop(("valus",x),None)
                if x==("s",124): st.h[("m0",)]=0
        if k=="vmem":
            for key in st.vm: st.vm[key]+=1
            for x in ins.w: st.vm[x]=0
            m=re.search(r'@tag\s+(\S+)',ins.com)
            if m: st.vm[("tag",m.group(1))]=0
            if getattr(ins,"store",False) and getattr(ins,"wide",False):
                for x in ins.sdata: st.h[("stdata",x)]=0
        elif k=="ds":
            for key in st.lg: st.lg[key]+=1
            for x in ins.w: st.lg[x]=0
            m=re.search(r'@tag\s+(\S+)',ins.com)
            if m: st.lg[("tag",m.group(1))]=0
        elif k=="smem":
            for x in ins.w: st.sm.add(x)
            st.smem_out=True
        if ins.mn=="s_waitcnt":
            m=re.search(r'vmcnt\((\d+)\)',ins.rest)
            if m:
                N=int(m.group(1)); st.vm={a:b for a,b in st.vm.items() if b<N}
            m=re.search(r'lgkmcnt\((\d+)\)',ins.rest)
            if m:
                N=int(m.group(1))
                if N==0: st.lg={}; st.sm=set()
                else:
                    st.lg={a:b for a,b in st.lg.items() if b<N}
    pend={}
    def run(lo,hi,st,depth):
        i=lo
        alive = st is not None
        while i<hi:
            typ,x,ln=prog[i]
            if typ=="label":
                if x in pend and depth==0:
                    if alive:
                        for o in pend[x]: st.merge(o)
                    else:
                        st=pend[x][0].copy()
                        for o in pend[x][1:]: st.merge(o)
                        alive=True
            elif typ=="ann" and alive:
                m=re.match(r';@need\s+(\S+)',x)
                if m:
                    for tg in m.group(1).split(","):
                        if ("tag",tg) in st.vm: errs.append(f"line {ln+1}: @need {tg} but vm pending younger={st.vm[('tag',tg)]}")
                        if ("tag",tg) in st.lg: errs.append(f"line {ln+1}: @need {tg} but lgkm pending younger={st.lg[('tag',tg)]}")
            elif typ=="ins" and alive:
                step(st,x)
                if x.mn=="s_branch" or x.mn.startswith("s_cbranch"):
                    tgt=x.ops[0]
                    if tgt not in labels: errs.append(f"unknown label {tgt}")
                    elif labels[tgt]>i:
                        if depth==0: pend.setdefault(tgt,[]).append(st.copy())
                    elif depth==0:
                        s2=st.copy(); run(labels[tgt],i+1,s2,1)
                        st.merge(s2)
                    if x.mn=="s_branch": alive=False
                elif x.mn=="s_endpgm": alive=False
            i+=1
        return st
    run(0,len(prog),St(),0)
    seen=set(); out=[]
    for e in errs:
        if e not in seen: seen.add(e); out.append(e)
    return out
if __name__=="__main__":
    e=lint(open(sys.argv[1]).read().split("\n"))
    for x in e[:80]: print(x)
    print(len(e),"lint errors")
```

```python
import sys
from lint import lint

KNAME = "parallel_sum__sliding_block__dense_activation_relu__prompt_kernel"
OPT = dict(ts=0, spin=1<<20, cyc=0, prio=1, l2pf=1)

KVST = 24576
def R1(s): return s*KVST
R2 = 73728
def R2S(s): return R2 + s*16384
CSB = R2S(3)
KVL = 0; SLOT = 6144
QL = 139264
RING = R2
NM = 159744; RL = 160256; SL = 160768; CNT = 161536
LDS_TOTAL = 163840
WS_NONCE=0; FPR=0x1000; FPC=0x2000; FKV=0x3000; FO=0x4000; FH=0x5000
ST=0x8000; CS=0x10000; KV=0x100000; AH=0x800000; TS=0xF80000; WS_SIZE=0x1000000
NSTEP=118
TAGC=0x9E3779B9
sX="s[40:43]"; sWQ="s[44:47]"; sW1="s[48:51]"; sW2="s[52:55]"; sWO="s[56:59]"; sOUT="s[60:63]"; sWS="s[64:67]"
sW=26; sRB=27; sCS=28; sJ=29; sIDX=30; sTAG=31; sU32=33; sNT=34; sA3=35; sCT=36; sRB3=37; sHW=38; sSPIN=39

class G:
    def __init__(s):
        s.L=[]; s.vm=[]; s.lg=[]; s.nlab=0
    def I(s,t): s.L.append(" "+t)
    def C(s,t): s.L.append(" ; "+t)
    def lab(s,n): s.L.append(n+":")
    def newlab(s,p="L"):
        s.nlab+=1; return f"{p}_{s.nlab}"
    def vmem(s,t,tag=None,cond=False):
        s.L.append(" "+t+(f" ;@tag {tag}" if tag else ""))
        if not cond: s.vm.append(tag)
        elif tag: s.vm.append(("cond",tag))
    def ds(s,t,tag=None,cond=False):
        s.L.append(" "+t+(f" ;@tag {tag}" if tag else ""))
        if not cond: s.lg.append(tag)
        elif tag: s.lg.append(("cond",tag))
    @staticmethod
    def _ny(q,tag):
        n=0
        for x in reversed(q):
            if x==tag or x==("cond",tag): return n
            if not isinstance(x,tuple): n+=1
        return None
    def wait_vm(s,*tags,extra=""):
        ns=[s._ny(s.vm,t) for t in tags]; ns=[n for n in ns if n is not None]
        n=min(min(ns) if ns else 63,63)
        s.I(f"s_waitcnt vmcnt({n}){extra}")
        s.L.append(" ;@need "+",".join(tags))
        if "lgkmcnt(0)" in extra: s.lg=[]
    def wait_lg(s,*tags):
        ns=[s._ny(s.lg,t) for t in tags]; ns=[n for n in ns if n is not None]
        if not ns: return
        n=min(min(ns),15)
        s.I(f"s_waitcnt lgkmcnt({n})")
        s.L.append(" ;@need "+",".join(tags))
        if n==0: s.lg=[]
    def lg0(s):
        s.I("s_waitcnt lgkmcnt(0)"); s.lg=[]
    def vm0(s,extra=""):
        s.I("s_waitcnt vmcnt(0)"+extra); s.vm=[]
        if "lgkmcnt(0)" in extra: s.lg=[]
    def nop(s,n):
        while n>0:
            k=min(n,16); s.I(f"s_nop {k-1}"); n-=k
    def ts(s,i,mode=1):
        if OPT["ts"]!=mode: return
        s.I("s_memrealtime s[90:91]" if not OPT.get("cyc") else "s_memtime s[90:91]")
        s.I("s_waitcnt lgkmcnt(0)"); s.lg=[]
        s.I(f"v_mov_b32 v1, s90")
        s.vmem(f"buffer_store_dword v1, off, {sWS}, s92 offset:{i*4}", tag=None)

def errmark(g,vtmp,errcode):
    g.I(f"v_mov_b32 v{vtmp}, {errcode}")
    g.I(f"v_mov_b32 v{vtmp+1}, 0")
    g.vmem(f"global_store_dword v{vtmp+1}, v{vtmp}, s[68:69]")
    g.I("s_waitcnt vmcnt(0)")
def poll(g, vaddr, vtmp, errcode):
    L=g.newlab("POLL"); D=g.newlab("PDONE")
    g.I(f"s_mov_b32 s{sSPIN}, {OPT['spin']}")
    g.lab(L)
    g.vmem(f"buffer_load_dword v{vtmp}, v{vaddr}, {sWS}, 0 offen sc1")
    g.I("s_waitcnt vmcnt(0)")
    g.I(f"v_cmp_ne_u32 vcc, s{sTAG}, v{vtmp}")
    g.I("s_nop 0")
    g.I(f"s_cbranch_vccz {D}")
    g.I("s_sleep 1")
    g.I(f"s_sub_u32 s{sSPIN}, s{sSPIN}, 1")
    g.I(f"s_cbranch_scc0 {L}")
    errmark(g,vtmp,errcode)
    g.lab(D)
    g.vm=[]
def flag_store(g, base, row_s, col_s, va, vb, st=81):
    g.I(f"s_lshl_b32 s{st}, s{row_s}, 7"); g.I(f"s_lshl_b32 s{st+1}, s{col_s}, 2"); g.I(f"s_add_u32 s{st}, s{st}, s{st+1}"); g.I(f"s_add_u32 s{st}, s{st}, {base}")
    g.I(f"v_mov_b32 v{va}, s{st}"); g.I(f"v_mov_b32 v{vb}, s{sTAG}")
    g.I("s_mov_b64 exec, 1")
    g.vmem(f"buffer_store_dword v{vb}, v{va}, {sWS}, 0 offen sc1", cond=True)
    g.I("s_mov_b64 exec, -1")

def prologue(g):
    g.I("s_cmp_ge_u32 s2, 256")
    g.I("s_cbranch_scc1 L_END")
    g.I("s_getpc_b64 s[4:5]")
    g.lab("L_PCREF")
    g.I("v_lshlrev_b32 v1, 7, v0")
    g.I("v_min_u32 v1, L_END-L_PCREF, v1")
    g.I("s_load_dwordx2 s[40:41], s[0:1], 0")
    g.I("s_load_dwordx2 s[44:45], s[0:1], 8")
    g.I("s_load_dwordx2 s[48:49], s[0:1], 32")
    g.I("s_load_dwordx2 s[64:65], s[0:1], 64")
    g.vmem("global_load_dword v250, v1, s[4:5]", tag="cpf")
    g.I("v_lshrrev_b32 v1, 6, v0")
    g.I("v_and_b32 v0, 63, v0")
    g.I(f"v_readfirstlane_b32 s{sW}, v1")
    g.I(f"s_and_b32 s{sJ}, s2, 7")
    g.I(f"s_lshr_b32 s{sIDX}, s2, 3")
    g.I(f"s_and_b32 s3, s{sJ}, 1")
    g.I(f"s_lshl_b32 s3, s3, 3")
    g.I(f"s_and_b32 s{sRB}, s{sIDX}, 7")
    g.I(f"s_or_b32 s{sRB}, s{sRB}, s3")
    g.I(f"s_lshr_b32 s3, s{sJ}, 1")
    g.I(f"s_lshl_b32 s3, s3, 2")
    g.I(f"s_lshr_b32 s{sCS}, s{sIDX}, 3")
    g.I(f"s_or_b32 s{sCS}, s{sCS}, s3")
    for base,size in ((40,2097152),(44,1572864),(48,1409024),(64,WS_SIZE)):
        g.I(f"s_mov_b32 s{base+2}, {size}")
        g.I(f"s_mov_b32 s{base+3}, 0x20000")
    g.I(f"s_mul_i32 s{sU32}, s{sCS}, 3")
    g.I(f"s_lshl_b32 s3, s{sCS}, 1"); g.I("s_add_u32 s3, s3, 11")
    g.I(f"s_min_u32 s{sU32}, s{sU32}, s3")
    g.I(f"s_cmp_lt_u32 s{sCS}, 11"); g.I(f"s_cselect_b32 s{sNT}, 3, 2")
    if OPT["ts"]:
        g.I(f"s_lshl_b32 s92, s2, 3"); g.I(f"s_add_u32 s92, s92, s{sW}"); g.I(f"s_lshl_b32 s92, s92, 6"); g.I(f"s_add_u32 s92, s92, {TS}")
    g.I(f"s_cmp_lt_u32 s{sW}, 4")
    g.I("s_cbranch_scc1 L_GWAVE")

def stats_code(g, A, U, T, M, Vr, O, sd):
    for a,u in zip(A,U):
        for e in range(4):
            g.I(f"v_lshlrev_b32 v{u+2*e}, 16, v{a+e}")
            g.I(f"v_and_b32 v{u+2*e+1}, 0xffff0000, v{a+e}")
    def red(T):
        for mod in ("quad_perm:[1,0,3,2] row_mask:0xf bank_mask:0xf","quad_perm:[2,3,0,1] row_mask:0xf bank_mask:0xf",
                    "row_half_mirror row_mask:0xf bank_mask:0xf","row_mirror row_mask:0xf bank_mask:0xf",
                    "row_bcast:15 row_mask:0xa bank_mask:0xf","row_bcast:31 row_mask:0xc bank_mask:0xf"):
            g.I("s_nop 0")
            for t in T: g.I(f"v_add_f32_dpp v{t}, v{t}, v{t} {mod}")
        g.I("s_nop 0")
        for t,s_ in zip(T,sd): g.I(f"v_readlane_b32 s{s_}, v{t}, 63")
        g.I("s_nop 0")
    for u,t in zip(U,T): g.I(f"v_add_f32 v{t}, v{u}, v{u+1}")
    for e in range(2,8):
        for u,t in zip(U,T): g.I(f"v_add_f32 v{t}, v{t}, v{u+e}")
    red(T)
    K=Vr[0]+2
    g.I(f"v_mov_b32 v{K}, 0x3b000000")
    for m,s_ in zip(M,sd): g.I(f"v_mul_f32 v{m}, s{s_}, v{K}")
    for e in range(8):
        for u,m in zip(U,M): g.I(f"v_sub_f32 v{u+e}, v{u+e}, v{m}")
    for u,t in zip(U,T): g.I(f"v_mul_f32 v{t}, v{u}, v{u}")
    for e in range(1,8):
        for u,t in zip(U,T): g.I(f"v_fmac_f32 v{t}, v{u+e}, v{u+e}")
    red(T)
    for r_,s_ in zip(Vr,sd): g.I(f"v_mul_f32 v{r_}, s{s_}, v{K}")
    def rbf(regs_):
        for r_ in regs_: g.I(f"v_cvt_pk_bf16_f32 v{r_}, v{r_}, v{r_}")
        for r_ in regs_: g.I(f"v_and_b32 v{r_}, 0xffff0000, v{r_}")
    rbf(Vr)
    for r_ in Vr: g.I(f"v_add_f32 v{r_}, 0x3727c5ac, v{r_}")
    rbf(Vr)
    for r_ in Vr: g.I(f"v_sqrt_f32 v{r_}, v{r_}")
    g.I("s_nop 0")
    rbf(Vr)
    for o,r_ in zip(O,Vr): g.I(f"v_rcp_f32 v{o+1}, v{r_}")
    for o,m in zip(O,M): g.I(f"v_cvt_pk_bf16_f32 v{o}, -v{m}, -v{m}")

def hwave(g):
    sXb=70; sWr=71; sMx=73; sMw=74; sT=78; sCK=75; sCV=76; sCQ=77; sC1=79; sW1r=72
    vXe=8; vXo=9; vWq=10; vW1=11
    g.I(f"s_sub_u32 s{sHW}, s{sW}, 4")
    g.I("v_lshrrev_b32 v3, 3, v0"); g.I("v_lshlrev_b32 v3, 10, v3"); g.I("v_and_b32 v4, 7, v0"); g.I("v_lshrrev_b32 v5, 4, v0")
    g.I("v_xor_b32 v4, v4, v5"); g.I(f"v_lshl_or_b32 v{vXe}, v4, 4, v3"); g.I(f"v_xor_b32 v{vXo}, 64, v{vXe}")
    g.I("v_lshrrev_b32 v3, 2, v0"); g.I("v_and_b32 v4, 3, v0"); g.I("v_lshlrev_b32 v4, 4, v4")
    g.I(f"v_mov_b32 v5, 3072"); g.I(f"v_mad_u32_u24 v{vWq}, v3, v5, v4")
    g.I(f"v_mov_b32 v5, 2752"); g.I(f"v_mad_u32_u24 v{vW1}, v3, v5, v4")
    g.I(f"s_lshl_b32 s{sXb}, s{sRB}, 17"); g.I(f"s_lshl_b32 s{sT}, s{sHW}, 15"); g.I(f"s_add_u32 s{sXb}, s{sXb}, s{sT}")
    g.I(f"s_lshl_b32 s{sMx}, s{sHW}, 12")
    g.I(f"s_lshl_b32 s{sMw}, s{sHW}, 10")
    g.I(f"s_mul_i32 s{sWr}, s{sHW}, 49152")
    g.I(f"s_lshl_b32 s{sT}, s{sCS}, 6")
    g.I(f"s_add_u32 s{sCQ}, s{sWr}, s{sT}")
    g.I(f"s_add_u32 s{sCK}, s{sCQ}, 1024"); g.I(f"s_add_u32 s{sCV}, s{sCQ}, 2048")
    g.I(f"s_mul_i32 s{sW1r}, s{sHW}, 44032"); g.I(f"s_lshl_b32 s{sT}, s{sU32}, 6"); g.I(f"s_add_u32 s{sC1}, s{sW1r}, s{sT}")
    g.I("s_waitcnt lgkmcnt(0)")
    def kv_issue(it):
        st=R1(it%3)
        for i in range(4):
            g.I(f"s_add_u32 m0, s{sMx}, {st+i*1024}")
            g.I(f"s_add_u32 s{sT}, s{sXb}, {it*128+i*8192}")
            g.vmem(f"buffer_load_dwordx4 v{vXe if i%2==0 else vXo}, {sX}, s{sT} offen lds", tag=f"kv{it}")
        for u,sc in ((0,sCK),(1,sCV)):
            g.I(f"s_add_u32 m0, s{sMw}, {st+16384+u*4096}")
            g.I(f"s_add_u32 s{sT}, s{sc}, {it*196608}")
            g.vmem(f"buffer_load_dwordx4 v{vWq}, {sWQ}, s{sT} offen lds", tag=f"kv{it}")
    def ht_issue(n):
        T=n>>1; half=n&1
        for kbl in range(4):
            kb=4*half+kbl
            g.I(f"s_add_u32 m0, s{sMw}, {R2S(n%4)+kbl*4096}")
            if T<3:
                g.I(f"s_add_u32 s{sT}, s{sC1}, {kb*176128+T*64}")
                g.vmem(f"buffer_load_dwordx4 v{vW1}, {sW1}, s{sT} offen lds", tag=f"ht{n}")
            else:
                g.I(f"s_add_u32 s{sT}, s{sCQ}, {kb*196608}")
                g.vmem(f"buffer_load_dwordx4 v{vWq}, {sWQ}, s{sT} offen lds", tag=f"ht{n}")
    g.ts(0)
    kv_issue(0)
    g.I(f"s_and_b32 s80, s{sHW}, 1"); g.I(f"s_lshl_b32 s81, s{sRB}, 1"); g.I("s_add_u32 s81, s81, s80")
    g.I(f"s_lshl_b32 s80, s80, 10"); g.I(f"s_add_u32 s80, s80, {CSB}")
    Lw=g.newlab("CSW"); Le=g.newlab("CSE")
    g.I(f"s_cmp_ge_u32 s{sHW}, 2"); g.I(f"s_cbranch_scc1 {Lw}")
    g.I("s_mul_i32 s81, s81, 49152"); g.I(f"s_lshl_b32 s82, s{sCS}, 6"); g.I("s_add_u32 s81, s81, s82")
    for tile,col in ((0,1024),(1,2048),(5,0)):
        g.I(f"s_add_u32 m0, s80, {tile*2048}"); g.I(f"s_add_u32 s{sT}, s81, {col}")
        g.vmem(f"buffer_load_dwordx4 v{vWq}, {sWQ}, s{sT} offen lds", tag="csb", cond=True)
    g.I(f"s_branch {Le}")
    g.lab(Lw)
    g.I("s_mul_i32 s81, s81, 44032"); g.I(f"s_lshl_b32 s82, s{sU32}, 6"); g.I("s_add_u32 s81, s81, s82")
    for k in range(3):
        g.I(f"s_add_u32 m0, s80, {(2+k)*2048}"); g.I(f"s_add_u32 s{sT}, s81, {k*64}")
        g.vmem(f"buffer_load_dwordx4 v{vW1}, {sW1}, s{sT} offen lds", tag="csb", cond=True)
    g.lab(Le)
    kv_issue(1); kv_issue(2)
    g.I("v_mov_b32 v3, 0")
    g.vmem(f"buffer_load_dword v28, v3, {sWS}, 0 offen sc1", tag="nonce")
    g.I("s_load_dwordx2 s[68:69], s[0:1], 56")
    g.I("s_load_dwordx2 s[52:53], s[0:1], 40"); g.I("s_load_dwordx2 s[56:57], s[0:1], 16")
    g.I("s_mov_b32 s54, 1409024"); g.I("s_mov_b32 s55, 0x20000"); g.I("s_mov_b32 s58, 524288"); g.I("s_mov_b32 s59, 0x20000")
    g.I(f"v_lshlrev_b32 v3, 4, v0"); g.I(f"v_add_u32 v3, {SL}, v3")
    for r_ in range(4,8): g.I(f"v_mov_b32 v{r_}, 0")
    Lz=g.newlab("NOZ")
    g.I(f"s_cmp_eq_u32 s{sHW}, 0"); g.I(f"s_cbranch_scc0 {Lz}")
    g.I("s_mov_b32 exec_hi, 0x1ffff")
    g.ds("ds_write_b128 v3, v[4:7]", cond=True)
    g.I("s_mov_b32 exec_hi, -1")
    g.lab(Lz)
    g.I("v_lshrrev_b32 v3, 5, v0"); g.I("v_lshlrev_b32 v3, 3, v3"); g.I("v_bfe_u32 v4, v0, 2, 2"); g.I("v_add_u32 v3, v3, v4")
    g.I("v_lshlrev_b32 v3, 6, v3"); g.I("v_bfe_u32 v4, v0, 4, 1"); g.I("v_lshl_add_u32 v3, v4, 5, v3")
    g.I("v_and_b32 v4, 3, v0"); g.I("v_lshl_add_u32 v3, v4, 3, v3")
    g.I(f"s_add_u32 s81, s{sMx}, {CSB}"); g.I("v_add_u32 v16, s81, v3")
    for r_ in range(64,68): g.I(f"v_mov_b32 v{r_}, 0x3f803f80")
    def bar(tags,idx,extra=" lgkmcnt(0)"):
        g.wait_vm(*tags,extra=extra)
        g.ts(idx,2)
        g.I("s_barrier")
    for it in range(8):
        if it==0:
            g.wait_vm("kv0","csb"); g.I("s_waitcnt vmcnt(13) lgkmcnt(0)"); g.lg=[]
            g.ts(0,2); g.I("s_barrier"); g.ts(1)
        elif it==6:
            Ls=g.newlab("NOCHK")
            g.wait_vm("kv6","poll",extra=" lgkmcnt(0)")
            g.I(f"s_cmp_eq_u32 s{sHW}, 0"); g.I(f"s_cbranch_scc0 {Ls}")
            g.I(f"v_cmp_ne_u32 vcc, s{sTAG}, v29"); g.I("s_nop 0"); g.I(f"s_cbranch_vccz {Ls}")
            save=list(g.vm); poll(g,17,29,0x101); g.lab(Ls); g.vm=save
            g.ts(it,2); g.I("s_barrier")
        else:
            bar([f"kv{it}"],it)
        if it==0:
            g.wait_vm("nonce")
            g.I(f"v_readfirstlane_b32 s{sTAG}, v28")
            Lc=g.newlab("NOCS")
            g.I(f"s_cmp_lt_u32 s{sHW}, 3"); g.I(f"s_cbranch_scc0 {Lc}")
            F=68
            for q in range(2):
                for t in range(2):
                    b=F+(q*2+t)*4
                    g.ds(f"ds_read_b64_tr_b16 v[{b}:{b+1}], v16 offset:{q*2048+t*1024}",cond=True)
                    g.ds(f"ds_read_b64_tr_b16 v[{b+2}:{b+3}], v16 offset:{q*2048+t*1024+256}",cond=True)
            g.I("s_waitcnt lgkmcnt(0)")
            D=96
            for t in range(2):
                for q in range(2):
                    b=F+(q*2+t)*4; d=D+16*q
                    g.I(f"v_mfma_f32_32x32x16_bf16 v[{d}:{d+15}], v[64:67], v[{b}:{b+3}], {'0' if t==0 else f'v[{d}:{d+15}]'}")
            g.I(f"s_mul_i32 s81, s{sCS}, 12288"); g.I(f"s_mul_i32 s82, s{sRB}, 768"); g.I("s_add_u32 s81, s81, s82")
            g.I(f"s_lshl_b32 s82, s{sHW}, 8"); g.I("s_add_u32 s81, s81, s82"); g.I(f"s_add_u32 s81, s81, {CS}")
            g.I("v_lshlrev_b32 v3, 2, v0")
            g.nop(10)
            g.I("s_mov_b32 exec_hi, 0")
            for q in range(2):
                g.vmem(f"buffer_store_dword v{D+16*q}, v3, {sWS}, s81 offen offset:{q*128} sc1", tag="pre", cond=True)
            g.I("s_mov_b32 exec_hi, -1")
            g.lab(Lc)
            g.lg=[]
            g.I(f"s_add_u32 s{sTAG}, s{sTAG}, {TAGC}")
        if it==5:
            g.I("v_and_b32 v3, 15, v0"); g.I("v_lshlrev_b32 v3, 2, v3")
            g.I(f"s_lshl_b32 s81, s{sRB}, 7"); g.I(f"s_add_u32 s81, s81, {FPR}")
            g.I(f"s_lshl_b32 s82, s{sCS}, 7"); g.I(f"s_add_u32 s82, s82, {FPC}")
            g.I("s_sub_u32 s82, s82, s81")
            g.I("v_bfe_u32 v4, v0, 4, 1"); g.I("v_mul_lo_u32 v4, v4, s82"); g.I("v_add_u32 v3, v3, v4")
            g.I("v_add_u32 v17, s81, v3")
            g.vmem(f"buffer_load_dword v29, v17, {sWS}, 0 offen sc1", tag="poll")
        if 1<=it<=5: kv_issue(it+2)
        if it>=4: ht_issue(it-4)
        if it==3:
            Lf=g.newlab("NOFL")
            g.I(f"s_cmp_eq_u32 s{sHW}, 0"); g.I(f"s_cbranch_scc0 {Lf}")
            flag_store(g,FPR,sRB,sCS,3,5)
            flag_store(g,FPC,sCS,sRB,4,5)
            g.lab(Lf)
        if it==6:
            g.I("v_and_b32 v3, 31, v0"); g.I("v_lshlrev_b32 v3, 3, v3")
            g.I(f"s_lshl_b32 s81, s{sRB}, 7"); g.I(f"s_lshl_b32 s82, s{sHW}, 5"); g.I("s_add_u32 s81, s81, s82")
            g.I("s_lshl_b32 s81, s81, 3"); g.I(f"s_add_u32 s81, s81, {ST}")
            g.vmem(f"buffer_load_dwordx2 v[20:21], v3, {sWS}, s81 offen sc1", tag="gath")
            g.I("v_lshlrev_b32 v4, 4, v0")
            g.I(f"s_mul_i32 s81, s{sCS}, 12288"); g.I(f"s_mul_i32 s82, s{sHW}, 3072"); g.I("s_add_u32 s81, s81, s82"); g.I(f"s_add_u32 s81, s81, {CS}")
            g.I("s_mov_b32 exec_hi, 0xffff")
            for q in range(4):
                g.vmem(f"buffer_load_dwordx4 v[{32+4*q}:{35+4*q}], v4, {sWS}, s81 offen offset:{q*768} sc1", tag="gath")
            g.I("s_mov_b32 exec_hi, -1")
        if it==7:
            g.wait_vm("gath")
            g.I("v_and_b32 v3, 31, v0"); g.I("v_lshlrev_b32 v3, 2, v3")
            g.I(f"s_lshl_b32 s81, s{sHW}, 7"); g.I(f"s_add_u32 s81, s81, {NM}"); g.I("v_add_u32 v3, s81, v3")
            g.ds("ds_write_b32 v3, v20"); g.ds(f"ds_write_b32 v3, v21 offset:{RL-NM}")
            g.I("s_mov_b32 exec_hi, 0xffff")
            for e in range(4):
                g.I(f"v_add_f32 v{32+e}, v{32+e}, v{36+e}"); g.I(f"v_add_f32 v{40+e}, v{40+e}, v{44+e}")
            for e in range(4): g.I(f"v_add_f32 v{32+e}, v{32+e}, v{40+e}")
            g.I("v_lshlrev_b32 v4, 4, v0"); g.I(f"v_add_u32 v4, {SL}, v4")
            for e in range(4): g.ds(f"ds_add_f32 v4, v{32+e} offset:{4*e}")
            g.I("s_mov_b32 exec_hi, -1")
    BD=128; BO=144; sTM=84; need=85; sSL=86; sDONE=87; sSRC=88
    def masks_setup():
        g.I("v_and_b32 v3, 31, v0"); g.I("v_lshrrev_b32 v4, 5, v0"); g.I("v_lshlrev_b32 v4, 2, v4")
        g.I("v_sub_u32 v3, v3, v4"); g.I("v_mov_b32 v5, 0xf149f2ca")
        g.I(f"s_lshl_b32 s81, s{sRB}, 2"); g.I(f"s_add_u32 s81, s81, s{sHW}")
        g.I(f"s_sub_i32 s{sTM}, 8, s81"); g.I(f"s_max_i32 s{sTM}, s{sTM}, 0")
        for r in range(16):
            kk=(r&3)+8*(r>>2)
            g.I(f"v_subrev_u32 v6, {kk}, v3"); g.I(f"v_ashrrev_i32 v6, 31, v6")
            g.I(f"v_and_b32 v{BD+r}, v6, v5"); g.I(f"v_bfi_b32 v{BO+r}, v6, 0, v5")
        Lb=g.newlab("BOK")
        g.I(f"s_cmp_eq_u32 s{sTM}, 0"); g.I(f"s_cbranch_scc1 {Lb}")
        for r in range(16): g.I(f"v_mov_b32 v{BO+r}, v5")
        g.lab(Lb)
    def remote_try(last):
        Lskip=g.newlab("RSK"); Lgo=g.newlab("RGO")
        g.I(f"s_cmp_eq_u32 s{sDONE}, 1"); g.I(f"s_cbranch_scc1 {Lskip}")
        g.I("s_waitcnt vmcnt(0)")
        g.I(f"v_cmp_ne_u32 vcc, s{sTAG}, v29"); g.I("s_nop 0"); g.I(f"s_cbranch_vccz {Lgo}")
        if last:
            save=list(g.vm); poll(g,17,29,0x102); g.vm=save
        else:
            g.vmem(f"buffer_load_dword v29, v17, {sWS}, 0 offen sc1", cond=True)
            g.I(f"s_branch {Lskip}")
        g.lab(Lgo)
        for tt in range(2):
            for i in range(6):
                g.I(f"s_add_u32 m0, s{sSL}, {tt*SLOT+i*1024}")
                g.I(f"s_add_u32 s82, s{sSRC}, {tt*16*SLOT+i*1024}")
                g.vmem(f"buffer_load_dwordx4 v7, {sWS}, s82 offen sc1 lds", cond=True)
        g.I(f"s_mov_b32 s{sDONE}, 1")
        g.lab(Lskip)
    for n in range(8):
        bar([f"ht{n}"],8+n)
        if n==0:
            g.ts(2)
            if OPT["l2pf"]:
                g.I("v_lshlrev_b32 v3, 7, v0")
                g.I(f"s_mul_i32 s81, s{sIDX}, 45056")
                g.I(f"s_lshl_b32 s82, s{sHW}, 13"); g.I("s_add_u32 s81, s81, s82")
                g.vmem(f"buffer_load_dword v240, v3, {sW2}, s81 offen", tag="l2pf")
                g.I("s_add_u32 s81, s81, 32768")
                Lq=g.newlab("PF2")
                g.I(f"s_cmp_lt_u32 s{sHW}, 2"); g.I(f"s_cbranch_scc0 {Lq}")
                g.vmem(f"buffer_load_dword v241, v3, {sW2}, s81 offen", cond=True)
                g.lab(Lq)
                g.I(f"s_lshl_b32 s81, s{sIDX}, 14"); g.I(f"s_lshl_b32 s82, s{sHW}, 13"); g.I("s_add_u32 s81, s81, s82")
                Lq=g.newlab("PF3")
                g.I(f"s_cmp_lt_u32 s{sHW}, 2"); g.I(f"s_cbranch_scc0 {Lq}")
                g.vmem(f"buffer_load_dword v242, v3, {sWO}, s81 offen", cond=True)
                g.lab(Lq)
            g.I(f"s_lshr_b32 s81, s{sHW}, 1"); g.I(f"s_sub_u32 s82, 2, s81"); g.I(f"s_sub_i32 s83, s{sRB}, s82")
            g.I(f"s_cmp_ge_i32 s83, 0"); g.I(f"s_cselect_b32 s{need}, 1, 0")
            g.I(f"s_xor_b32 s{sDONE}, s{need}, 1")
            g.I("v_lshlrev_b32 v7, 4, v0")
            g.I(f"s_mul_i32 s{sSL}, s{sHW}, {2*SLOT}")
            g.I(f"s_max_i32 s83, s83, 0")
            g.I(f"s_lshl_b32 s81, s83, 7"); g.I(f"s_lshl_b32 s82, s{sCS}, 2"); g.I("s_add_u32 s81, s81, s82"); g.I(f"s_add_u32 s81, s81, {FKV}")
            g.I("v_mov_b32 v17, s81")
            g.I(f"s_lshl_b32 s81, s{sRB}, 2"); g.I(f"s_lshl_b32 s82, s{sHW}, 1"); g.I("s_add_u32 s81, s81, s82"); g.I("s_sub_u32 s81, s81, 8")
            g.I("s_lshl_b32 s81, s81, 4"); g.I(f"s_add_u32 s81, s81, s{sCS}"); g.I(f"s_mul_i32 s81, s81, {SLOT}"); g.I(f"s_add_u32 s{sSRC}, s81, {KV}")
            Lnz=g.newlab("NOZF")
            g.I(f"s_cmp_eq_u32 s{need}, 1"); g.I(f"s_cbranch_scc1 {Lnz}")
            g.I(f"v_add_u32 v8, s{sSL}, v7")
            for r_ in range(20,24): g.I(f"v_mov_b32 v{r_}, 0")
            for i in range(12): g.ds(f"ds_write_b128 v8, v[20:23] offset:{i*1024}",cond=True)
            g.lab(Lnz)
        if 1<=n<=4: ht_issue(n+3)
        if n==1: masks_setup()
        if n==4:
            Lf=g.newlab("NOFKV")
            g.I(f"s_cmp_eq_u32 s{sHW}, 0"); g.I(f"s_cbranch_scc0 {Lf}")
            flag_store(g,FKV,sRB,sCS,14,15)
            g.lab(Lf)
        if n==5:
            g.vmem(f"buffer_load_dword v29, v17, {sWS}, 0 offen sc1", tag="rpoll")
        if n in (6,7): remote_try(last=False)
    remote_try(last=True)
    g.vm0(" lgkmcnt(0)")
    g.I("s_barrier")
    g.ts(3)
    if OPT["prio"]: g.I("s_setprio 3")
    QF=16
    g.I(f"s_lshl_b32 s81, s{sHW}, 11"); g.I(f"s_add_u32 s81, s81, {QL}")
    g.I("v_add_u32 v10, s81, v7")
    g.ds(f"ds_read_b128 v[{QF}:{QF+3}], v10", tag="q"); g.ds(f"ds_read_b128 v[{QF+4}:{QF+7}], v10 offset:1024", tag="q")
    g.I(f"s_mul_i32 s81, s{sHW}, {SLOT}")
    g.I("v_add_u32 v11, s81, v7")
    KB=[24,28,32]; SB=[160,176]; CZ=192; MC=208; PB=[36,44]; VB=[52,60]; OA=[96,112]; M=[68,69]; NEG=70
    seq=[(t,h) for h in range(2) for t in range(9)]
    def kread(n):
        t,h=seq[n]; b=KB[n%3]; g.ds(f"ds_read_b128 v[{b}:{b+3}], v11 offset:{t*SLOT+h*1024}", tag=f"k{n}")
    def setC(val):
        for r in range(16): g.I(f"v_mov_b32 v{CZ+r}, {val}")
    def cz_init(val):
        La=g.newlab("CZA"); Lb2=g.newlab("CZB")
        g.I(f"s_cmp_gt_u32 s{sTM}, 1"); g.I(f"s_cbranch_scc1 {La}")
        setC(val); g.I(f"s_branch {Lb2}"); g.lab(La); setC("v5"); g.lab(Lb2)
    def cz_switch(t,val):
        Ls=g.newlab("CZS")
        g.I(f"s_cmp_eq_u32 s{sTM}, {t}"); g.I(f"s_cbranch_scc0 {Ls}")
        g.nop(8); setC(val); g.I("s_nop 1"); g.lab(Ls)
    def smfma(n,Cr):
        t,h=seq[n]; b=KB[n%3]
        g.I(f"v_mfma_f32_32x32x16_bf16 v[{SB[n%2]}:{SB[n%2]+15}], v[{b}:{b+3}], v[{QF+4*h}:{QF+4*h+3}], {Cr}")
    g.I(f"v_mov_b32 v{M[0]}, v5"); g.I(f"v_mov_b32 v{M[1]}, v5")
    kread(0); kread(1)
    cz_init("0")
    g.wait_lg("q")
    for n in range(19):
        if n<18:
            t,h=seq[n]
            if n==9: cz_init("0")
            elif 2<=t<=7: cz_switch(t,"0")
            if n+2<18: kread(n+2)
            g.wait_lg(f"k{n}")
            Cr = f"v[{BO}:{BO+15}]" if t==0 else (f"v[{BD}:{BD+15}]" if t==8 else f"v[{CZ}:{CZ+15}]")
            if n==9: g.I("s_nop 0")
            smfma(n,Cr)
            if n==0: continue
            if n==1: g.nop(9)
            else: g.nop(1)
        else: g.nop(12)
        tp,hp=seq[n-1]; Sp=SB[(n-1)%2]
        for e in range(8): g.I(f"v_max3_f32 v{M[hp]}, v{Sp+2*e}, v{Sp+2*e+1}, v{M[hp]}")
    for h in range(2): g.I(f"v_mov_b32 v{NEG+h}, v{M[h]}")
    g.I("s_nop 1")
    for h in range(2): g.I(f"v_permlane32_swap_b32 v{M[h]}, v{NEG+h}")
    g.I("s_nop 0")
    for h in range(2):
        g.I(f"v_max_f32 v{M[h]}, v{M[h]}, v{NEG+h}")
    for h in range(2):
        g.I(f"v_sub_f32 v{NEG+h}, 0, v{M[h]}")
    g.ts(4)
    def vread(n):
        t,h=seq[n]; b=VB[n%2]
        g.ds(f"ds_read_b128 v[{b}:{b+3}], v11 offset:{t*SLOT+2048+h*2048}", tag=f"v{n}")
        g.ds(f"ds_read_b128 v[{b+4}:{b+7}], v11 offset:{t*SLOT+2048+h*2048+1024}", tag=f"v{n}")
    def prepC(n):
        t,h=seq[n]
        if t==0:
            for r in range(16): g.I(f"v_add_f32 v{MC+r}, v{BO+r}, v{NEG+h}")
            cz_init(f"v{NEG+h}"); return f"v[{MC}:{MC+15}]"
        if t==8:
            for r in range(16): g.I(f"v_add_f32 v{MC+r}, v{BD+r}, v{NEG+h}")
            g.I("s_nop 0")
            return f"v[{MC}:{MC+15}]"
        if t>=2: cz_switch(t,f"v{NEG+h}")
        return f"v[{CZ}:{CZ+15}]"
    kread(0); kread(1)
    Cr=prepC(0)
    g.wait_lg("k0"); g.I("s_nop 0")
    smfma(0,Cr)
    for n in range(18):
        t,h=seq[n]
        vread(n)
        if n+2<18: kread(n+2)
        if n+1<18:
            Cr=prepC(n+1); g.wait_lg(f"k{n+1}"); smfma(n+1,Cr)
        else: g.nop(10)
        if n==0: g.nop(7)
        Sn=SB[n%2]; P=PB[n%2]
        for e in range(8):
            g.I(f"v_exp_f32 v{Sn+2*e}, v{Sn+2*e}"); g.I(f"v_exp_f32 v{Sn+2*e+1}, v{Sn+2*e+1}")
            if e>=1: g.I(f"v_cvt_pk_bf16_f32 v{P+e-1}, v{Sn+2*e-2}, v{Sn+2*e-1}")
        g.wait_lg(f"v{n}")
        g.I(f"v_cvt_pk_bf16_f32 v{P+7}, v{Sn+14}, v{Sn+15}")
        Vb=VB[n%2]; O=OA[h]
        g.I(f"v_mfma_f32_32x32x16_bf16 v[{O}:{O+15}], v[{Vb}:{Vb+3}], v[{P}:{P+3}], {'0' if t==0 else f'v[{O}:{O+15}]'}")
        g.I("s_nop 0")
        g.I(f"v_mfma_f32_32x32x16_bf16 v[{O}:{O+15}], v[{Vb+4}:{Vb+7}], v[{P+4}:{P+7}], v[{O}:{O+15}]")
    g.nop(12)
    g.ts(5)
    g.I(f"v_rcp_f32 v72, v{OA[0]+8}"); g.I(f"v_rcp_f32 v73, v{OA[1]}"); g.I("s_nop 0")
    for e in range(8):
        g.I(f"v_mul_f32 v{OA[0]+e}, v{OA[0]+e}, v72"); g.I(f"v_mul_f32 v{OA[1]+8+e}, v{OA[1]+8+e}, v73")
    for e in range(4):
        g.I(f"v_cvt_pk_bf16_f32 v{76+e}, v{OA[0]+2*e}, v{OA[0]+2*e+1}")
        g.I(f"v_cvt_pk_bf16_f32 v{80+e}, v{OA[1]+8+2*e}, v{OA[1]+8+2*e+1}")
    g.I(f"s_lshl_b32 s81, s{sRB}, 2"); g.I(f"s_add_u32 s81, s81, s{sHW}"); g.I(f"s_mul_i32 s81, s81, {NSTEP}")
    g.I(f"s_lshl_b32 s82, s{sCS}, 1"); g.I("s_add_u32 s81, s81, s82"); g.I("s_add_u32 s81, s81, 86")
    g.I("s_lshl_b32 s81, s81, 10"); g.I(f"s_add_u32 s81, s81, {AH}")
    g.vmem(f"buffer_store_dwordx4 v[76:79], v7, {sWS}, s81 offen sc1")
    g.vmem(f"buffer_store_dwordx4 v[80:83], v7, {sWS}, s81 offen offset:1024 sc1")
    g.vm0()
    g.I(f"v_mov_b32 v8, {CNT+4}"); g.I("v_mov_b32 v9, 1")
    g.I("s_mov_b64 exec, 1")
    g.I("ds_add_rtn_u32 v10, v8, v9"); g.I("s_waitcnt lgkmcnt(0)")
    g.I("v_readfirstlane_b32 s81, v10"); g.I("s_mov_b64 exec, -1")
    Lno=g.newlab("NOFO")
    g.I("s_cmp_eq_u32 s81, 3"); g.I(f"s_cbranch_scc0 {Lno}")
    flag_store(g,FO,sRB,sCS,3,4)
    g.lab(Lno)
    g.ts(6)
    g.I(f"s_or_b32 s81, s2, s{sHW}")
    g.I("s_cmp_eq_u32 s81, 0"); g.I("s_cbranch_scc0 L_END")
    for q in range(4):
        g.I("v_lshrrev_b32 v3, 2, v0"); g.I("v_lshlrev_b32 v3, 7, v3")
        g.I("v_and_b32 v4, 3, v0"); g.I("v_lshl_add_u32 v3, v4, 4, v3")
        g.I(f"v_add_u32 v17, {FPR+4*q}, v3")
        poll(g,17,29,0x104)
    g.I("v_mov_b32 v3, 0"); g.I(f"v_mov_b32 v5, s{sTAG}")
    g.I("s_mov_b64 exec, 1")
    g.vmem(f"buffer_store_dword v5, v3, {sWS}, 0 offen sc1")
    g.I("s_waitcnt vmcnt(0)")
    g.I("s_branch L_END")

def gwave(g):
    g.lab("L_GWAVE")
    XF=128
    ACC=[64,80,96,112]
    vXa=8; vWkv=12; vWt=13; vL16=7
    g.I("s_load_dwordx2 s[52:53], s[0:1], 40"); g.I("s_load_dwordx2 s[56:57], s[0:1], 16")
    g.I("s_load_dwordx2 s[60:61], s[0:1], 48"); g.I("s_load_dwordx2 s[68:69], s[0:1], 56")
    g.I("v_lshlrev_b32 v7, 4, v0")
    g.I(f"s_lshl_b32 s80, s{sRB}, 7"); g.I(f"s_lshl_b32 s81, s{sCS}, 3"); g.I("s_add_u32 s80, s80, s81")
    g.I(f"s_lshl_b32 s81, s{sW}, 1"); g.I("s_add_u32 s80, s80, s81"); g.I("s_lshl_b32 s81, s80, 10")
    g.I("s_waitcnt lgkmcnt(0)")
    g.ts(0)
    g.vmem(f"buffer_load_dwordx4 v[20:23], v7, {sX}, s81 offen", tag="srow")
    g.vmem(f"buffer_load_dwordx4 v[24:27], v7, {sX}, s81 offen offset:1024", tag="srow")
    g.I("v_mov_b32 v3, 0")
    g.vmem(f"buffer_load_dword v28, v3, {sWS}, 0 offen sc1", tag="nonce")
    for base,size in ((52,1409024),(56,524288),(60,2097152)):
        g.I(f"s_mov_b32 s{base+2}, {size}"); g.I(f"s_mov_b32 s{base+3}, 0x20000")
    g.I("v_and_b32 v2, 31, v0")
    g.I("v_lshrrev_b32 v3, 3, v2"); g.I("v_lshlrev_b32 v3, 10, v3"); g.I("v_and_b32 v4, 7, v2"); g.I("v_lshl_add_u32 v3, v4, 7, v3")
    g.I("v_bfe_u32 v4, v0, 1, 3"); g.I("v_lshrrev_b32 v5, 5, v0"); g.I("v_xor_b32 v4, v4, v5"); g.I("v_lshl_add_u32 v3, v4, 4, v3")
    g.I(f"s_lshl_b32 s72, s{sW}, 12"); g.I(f"v_add_u32 v{vXa}, s72, v3")
    for t in range(1,4): g.I(f"v_xor_b32 v{vXa+t}, {t<<5}, v{vXa}")
    g.I("v_lshrrev_b32 v3, 5, v0"); g.I("v_lshlrev_b32 v3, 3, v3"); g.I("v_bfe_u32 v4, v0, 2, 2"); g.I("v_add_u32 v3, v3, v4")
    g.I("v_lshlrev_b32 v3, 6, v3"); g.I("v_bfe_u32 v4, v0, 4, 1"); g.I("v_lshl_add_u32 v3, v4, 5, v3")
    g.I("v_and_b32 v4, 3, v0"); g.I("v_lshl_add_u32 v3, v4, 3, v3")
    g.I(f"v_add_u32 v{vWkv}, 16384, v3"); g.I(f"v_add_u32 v{vWt}, {R2}, v3")
    g.I(f"s_and_b32 s72, s{sIDX}, 3")
    g.I(f"s_lshl_b32 s{sA3}, s{sJ}, 3"); g.I("s_lshl_b32 s73, s72, 1"); g.I(f"s_add_u32 s{sA3}, s{sA3}, s73")
    g.I(f"s_lshr_b32 s{sCT}, s{sIDX}, 2"); g.I(f"s_lshr_b32 s{sRB3}, s{sA3}, 2")
    g.wait_vm("srow","nonce")
    g.I(f"v_readfirstlane_b32 s{sTAG}, v28")
    stats_code(g,[20,24],[32,40],[48,49],[50,51],[52,53],[56,58],[84,85])
    g.I(f"s_add_u32 s{sTAG}, s{sTAG}, {TAGC}")
    g.I("s_lshl_b32 s81, s80, 3"); g.I(f"s_add_u32 s81, s81, {ST}")
    g.I("v_mov_b32 v3, 0")
    g.I("s_mov_b64 exec, 1")
    g.vmem(f"buffer_store_dwordx2 v[56:57], v3, {sWS}, s81 offen sc1", tag="pre")
    g.vmem(f"buffer_store_dwordx2 v[58:59], v3, {sWS}, s81 offen offset:8 sc1", tag="pre")
    g.I("s_mov_b64 exec, -1")
    sKVo=74; sAHo=75
    g.I(f"s_lshl_b32 s72, s{sRB}, 2"); g.I(f"s_add_u32 s72, s72, s{sW}")
    g.I(f"s_lshl_b32 s{sKVo}, s72, 4"); g.I(f"s_add_u32 s{sKVo}, s{sKVo}, s{sCS}"); g.I(f"s_mul_i32 s{sKVo}, s{sKVo}, {SLOT}"); g.I(f"s_add_u32 s{sKVo}, s{sKVo}, {KV}")
    g.I(f"s_mul_i32 s{sAHo}, s72, {NSTEP}"); g.I(f"s_lshl_b32 s73, s{sU32}, 1"); g.I(f"s_add_u32 s{sAHo}, s{sAHo}, s73"); g.I(f"s_lshl_b32 s{sAHo}, s{sAHo}, 10"); g.I(f"s_add_u32 s{sAHo}, s{sAHo}, {AH}")
    g.ts(1)
    steps=[]
    WKV=[16,24,32]
    for it in range(8):
        for t in range(4):
            n=it*4+t; st=R1(it%3); wb=WKV[n%3]; xf=XF+4*n
            rd=[(f"ds_read_b128 v[{xf}:{xf+3}], v{vXa+t} offset:{st}")]
            for u in range(2):
                off=st+u*4096+t*1024
                rd.append(f"ds_read_b64_tr_b16 v[{wb+4*u}:{wb+4*u+1}], v{vWkv} offset:{off}")
                rd.append(f"ds_read_b64_tr_b16 v[{wb+4*u+2}:{wb+4*u+3}], v{vWkv} offset:{off+256}")
            X=f"v[{xf}:{xf+3}]"; a0=ACC[0]; a1=ACC[1]
            mf=[f"v_mfma_f32_32x32x16_bf16 v[{a0}:{a0+15}], v[{wb}:{wb+3}], {X}, {'0' if n==0 else f'v[{a0}:{a0+15}]'}",
                f"v_mfma_f32_32x32x16_bf16 v[{a1}:{a1+15}], {X}, v[{wb+4}:{wb+7}], {'0' if n==0 else f'v[{a1}:{a1+15}]'}"]
            steps.append(dict(rd=rd,mf=mf,bar=(t==0),lag=2,hold=1,idx=it))
    WT=[32,36,40,16,20,24,28]
    tacc=[ACC[2],ACC[3],ACC[0],ACC[1]]
    for T in range(4):
        for s in range(32):
            n=T*32+s; half=s>>4; ht=2*T+half; kbl=(s>>2)&3; t=s&3
            wb=WT[n%7]; off=(ht%4)*16384+kbl*4096+t*1024
            rd=[f"ds_read_b64_tr_b16 v[{wb}:{wb+1}], v{vWt} offset:{off}", f"ds_read_b64_tr_b16 v[{wb+2}:{wb+3}], v{vWt} offset:{off+256}"]
            a=tacc[T]; xf=XF+4*s
            mf=[f"v_mfma_f32_32x32x16_bf16 v[{a}:{a+15}], v[{wb}:{wb+3}], v[{xf}:{xf+3}], {'0' if s==0 else f'v[{a}:{a+15}]'}"]
            steps.append(dict(rd=rd,mf=mf,bar=(s%16==0),lag=6,hold=3,idx=8+ht,T=T,s=s))
    CX=44; RI=48; SJ=49; CW=56; RV=44
    TP=44
    fill={}
    def I(t): return lambda: g.I(t)
    def DS(t,tag=None): return lambda: g.ds(t,tag)
    def VM(t,tag=None,cond=False): return lambda: g.vmem(t,tag,cond)
    def WL(*tg): return lambda: g.wait_lg(*tg)
    SKIP=None
    def corr_prep(tile):
        s_=SJ+tile; w=CW
        return [I(f"v_and_b32 v{s_}, v6, v{s_}"), I(f"v_cvt_pk_bf16_f32 v60, v{s_}, v{s_}"), I("v_and_b32 v61, 0xffff0000, v60"),
                I(f"v_sub_f32 v62, v{s_}, v61"), I("v_cvt_pk_bf16_f32 v63, v62, v62"), I("v_and_b32 v63, 0xffff0000, v63"),
                I("v_sub_f32 v62, v62, v63"), I(f"v_cvt_pk_bf16_f32 v{w}, v61, v63"), I(f"v_cvt_pk_bf16_f32 v{w+1}, v62, 0"), I("s_nop 1")]
    def corr_mfma(a,normal):
        W=f"v[{CW}:{CW+3}]"; X=f"v[{CX}:{CX+3}]"
        return [I(f"v_mfma_f32_32x32x16_bf16 v[{a}:{a+15}], {X if normal else W}, {W if normal else X}, v[{a}:{a+15}]")]
    pre=[I("v_and_b32 v2, 31, v0"), I(f"s_lshl_b32 s72, s{sW}, 7"), I("v_lshlrev_b32 v3, 2, v2"), I("v_add_u32 v4, s72, v3"), I(f"v_add_u32 v4, {NM}, v4"),
         DS(f"ds_read2_b32 v[{CX}:{CX+1}], v4 offset0:0 offset1:0","st"), DS(f"ds_read_b32 v{RI}, v4 offset:{RL-NM}","st"),
         I(f"v_add_u32 v5, {SL}, v3")]
    for k in range(6): pre.append(DS(f"ds_read_b32 v{SJ+k}, v5 offset:{k*128}","st"))
    pre += [I(f"v_mov_b32 v{CX+2}, 0"), I(f"v_mov_b32 v{CX+3}, 0"), I(f"v_mov_b32 v{CW+2}, 0"), I(f"v_mov_b32 v{CW+3}, 0"),
            I("v_lshrrev_b32 v6, 5, v0"), I("v_add_u32 v6, -1, v6"), WL("st")]
    aK=ACC[0]; aV=ACC[1]
    kep=corr_prep(0)+corr_mfma(aK,False)+corr_prep(1)+corr_mfma(aV,True)
    RVR=aK+8
    rvaddr=[I("v_lshrrev_b32 v3, 5, v0"), I("v_lshlrev_b32 v3, 4, v3"), I(f"s_add_u32 s72, s72, {RL}"), I("v_add_u32 v3, s72, v3")]
    def rvload(q0,tag): return [DS(f"ds_read_b128 v[{RVR+4*q}:{RVR+4*q+3}], v3 offset:{(q0+q)*32}",tag) for q in range(2)]
    slotaddr=[I(f"s_add_u32 s73, s{sW}, 8"), I(f"s_mul_i32 s73, s73, {SLOT}"), I("v_add_u32 v14, s73, v7"),
              I("v_bfe_u32 v15, v0, 4, 1"), I("v_add_u32 v15, -1, v15"), I("v_mov_b32 v5, 0x3f803f80")]
    kmul=[I(f"v_mul_f32 v{aK+r}, v{aK+r}, v{RI}") for r in range(16)]
    kcvt=[I(f"v_cvt_pk_bf16_f32 v{aK+e}, v{aK+2*e}, v{aK+2*e+1}") for e in range(8)]
    kst=[]
    for hh in range(2):
        kst.append(VM(f"buffer_store_dwordx4 v[{aK+4*hh}:{aK+4*hh+3}], v7, {sWS}, s{sKVo} offen offset:{hh*1024} sc1","kvst"))
        kst.append(DS(f"ds_write_b128 v14, v[{aK+4*hh}:{aK+4*hh+3}] offset:{hh*1024}"))
    vmul=rvload(0,"rv0")+kst+[WL("rv0")]+[I(f"v_mul_f32 v{aV+r}, v{aV+r}, v{RVR+r}") for r in range(8)]
    vmul+=rvload(2,"rv1")+[SKIP,SKIP,SKIP,WL("rv1")]+[I(f"v_mul_f32 v{aV+8+r}, v{aV+8+r}, v{RVR+r}") for r in range(8)]
    vcvt=[I(f"v_cvt_pk_bf16_f32 v{aV+e}, v{aV+2*e}, v{aV+2*e+1}") for e in range(8)]
    vbfi=[]
    for e in range(8): vbfi.append(I(f"v_bfi_b32 v{aV+8+e}, v15, v5, v{aV+e}"))
    for e in range(8): vbfi.append(I(f"v_bfi_b32 v{aV+e}, v15, v{aV+e}, v5"))
    vst=[I(f"s_add_u32 s76, s{sKVo}, 2048")]
    for hh in range(2):
        for half in range(2):
            r0=aV+8*hh+4*half
            vst.append(VM(f"buffer_store_dwordx4 v[{r0}:{r0+3}], v7, {sWS}, s76 offen offset:{hh*2048+half*1024} sc1","kvst"))
            vst.append(DS(f"ds_write_b128 v14, v[{r0}:{r0+3}] offset:{2048+hh*2048+half*1024}"))
    fill[0]=pre+rvaddr+slotaddr+kep+kmul+kcvt+vmul+vcvt+vbfi+vst
    def hep(T):
        a=tacc[T]
        L=corr_prep(2+T)+corr_mfma(a,False)+[SKIP]*9
        L+=[I(f"v_mul_f32 v{a+r}, v{a+r}, v{RI}") for r in range(16)]
        L+=[I(f"v_max_f32 v{a+r}, 0, v{a+r}") for r in range(16)]
        L+=[I(f"v_cvt_pk_bf16_f32 v{a+e}, v{a+2*e}, v{a+2*e+1}") for e in range(8)]
        if T<2:
            for half in range(2):
                L.append(VM(f"buffer_store_dwordx4 v[{a+4*half}:{a+4*half+3}], v7, {sWS}, s{sAHo} offen offset:{(2*T+half)*1024} sc1","hst"))
        else:
            def cond_store():
                Ls=g.newlab("NOT2")
                g.I(f"s_cmp_eq_u32 s{sNT}, 3"); g.I(f"s_cbranch_scc0 {Ls}")
                g.I(f"s_add_u32 s76, s{sAHo}, 4096")
                for half in range(2):
                    g.vmem(f"buffer_store_dwordx4 v[{a+4*half}:{a+4*half+3}], v7, {sWS}, s76 offen offset:{half*1024} sc1",tag="hst",cond=True)
                g.lab(Ls)
            L.append(cond_store)
        return L
    fill[1]=hep(0); fill[2]=hep(1); fill[3]=hep(2)
    N=len(steps); rd=0; ex=0; passed=set()
    fq=[]
    def issue(n):
        for r_ in steps[n]["rd"]: g.ds(r_,tag=f"s{n}")
    while ex<N:
        st=steps[ex]
        budget=2
        while rd<N and rd-ex<steps[rd]["lag"] and budget>0:
            if steps[rd]["bar"] and rd not in passed:
                if rd-ex<=steps[rd]["lag"]-steps[rd]["hold"]-0 or rd==ex:
                    if rd-ex>steps[rd]["lag"]-steps[rd]["hold"] : break
                    idx=steps[rd]["idx"]
                    g.lg0()
                    if idx==3: g.wait_vm("pre")
                    if idx==12: g.wait_vm("kvst")
                    g.ts(idx,2)
                    g.I("s_barrier"); passed.add(rd)
                    if idx==8: g.ts(2)
                else: break
            issue(rd); rd+=1; budget-=1
        if rd<=ex: continue
        if "T" in st and st["s"]==0: fq+=fill[st["T"]]
        g.wait_lg(f"s{ex}")
        for m in st["mf"]: g.I(m)
        if "T" in st:
            k=OPT.get("nfill",3)+(1 if st["T"]==0 else 0)
            while k>0 and fq:
                f=fq.pop(0)
                if f is not None: f()
                k-=1
        ex+=1
    for f in fq:
        if f is not None: f()
    aQ=tacc[3]
    for f in corr_prep(5)+corr_mfma(aQ,False): f()
    g.I("v_mov_b32 v60, 0x3eb8aa3b"); g.I(f"v_mul_f32 v60, v{RI}, v60")
    g.I(f"s_lshl_b32 s72, s{sW}, 11"); g.I(f"s_add_u32 s72, s72, {QL}"); g.I("v_add_u32 v3, s72, v7")
    g.nop(9)
    for r in range(16): g.I(f"v_mul_f32 v{aQ+r}, v{aQ+r}, v60")
    for e in range(8): g.I(f"v_cvt_pk_bf16_f32 v{aQ+e}, v{aQ+2*e}, v{aQ+2*e+1}")
    for hh in range(2): g.ds(f"ds_write_b128 v3, v[{aQ+4*hh}:{aQ+4*hh+3}] offset:{hh*1024}")
    g.lg0()
    g.I("s_barrier")
    g.ts(3)
    PF=6; NS=8
    AHR=128; WSR=[16,24]; PA=64; vWd=8; vWr=[9,10]
    g.I("v_lshrrev_b32 v3, 3, v0"); g.I("v_lshlrev_b32 v3, 10, v3")
    g.I("v_and_b32 v4, 7, v0"); g.I("v_bfe_u32 v5, v0, 4, 1"); g.I("v_lshlrev_b32 v5, 2, v5"); g.I("v_xor_b32 v4, v4, v5")
    g.I("v_lshl_add_u32 v3, v4, 4, v3")
    g.I(f"s_lshl_b32 s72, s{sCT}, 7"); g.I(f"v_add_u32 v{vWd}, s72, v3")
    sRG=73
    g.I(f"s_lshl_b32 s{sRG}, s{sW}, 14"); g.I(f"s_add_u32 s{sRG}, s{sRG}, {RING}")
    sAH0=74; sAH1=75; sWof=76; sT=77
    g.I(f"s_lshl_b32 s{sWof}, s{sW}, 14")
    NH=22; NO=8; NT=NH+NO
    def w_issue(i):
        if i<NH: srd=sW2; off=i*4*16384
        else: srd=sWO; off=(i-NH)*4*16384
        slot=i%NS
        for k in range(2):
            g.I(f"s_add_u32 m0, s{sRG}, {slot*2048+k*1024}")
            g.I(f"s_add_u32 s{sT}, s{sWof}, {off+k*8192}")
            g.vmem(f"buffer_load_dwordx4 v{vWd}, {srd}, s{sT} offen lds", tag=f"w{i}")
    for i in range(PF): w_issue(i)
    g.wait_vm("hst","kvst")
    g.I(f"v_mov_b32 v3, {CNT}"); g.I("v_mov_b32 v4, 1")
    g.I("s_mov_b64 exec, 1")
    g.I("ds_add_rtn_u32 v5, v3, v4"); g.I("s_waitcnt lgkmcnt(0)"); g.lg=[]
    g.I("v_readfirstlane_b32 s78, v5"); g.I("s_mov_b64 exec, -1")
    Lno=g.newlab("NOFH")
    g.I("s_cmp_eq_u32 s78, 3"); g.I(f"s_cbranch_scc0 {Lno}")
    flag_store(g,FH,sRB,sCS,3,4,st=78)
    g.lab(Lno)
    g.I("v_lshrrev_b32 v3, 5, v0"); g.I("v_lshlrev_b32 v3, 2, v3"); g.I("v_bfe_u32 v4, v0, 2, 2"); g.I("v_add_u32 v3, v3, v4")
    g.I("v_lshlrev_b32 v3, 7, v3")
    g.I("v_bfe_u32 v4, v0, 3, 1"); g.I("v_lshl_add_u32 v3, v4, 6, v3")
    g.I("v_bfe_u32 v4, v0, 4, 1"); g.I("v_lshl_add_u32 v3, v4, 5, v3")
    g.I("v_and_b32 v4, 3, v0"); g.I("v_lshl_add_u32 v3, v4, 3, v3")
    g.I(f"v_add_u32 v{vWr[0]}, s{sRG}, v3"); g.I(f"v_xor_b32 v{vWr[1]}, 64, v{vWr[0]}")
    g.I(f"s_mul_i32 s{sAH0}, s{sA3}, {NSTEP}"); g.I(f"s_add_u32 s{sAH0}, s{sAH0}, s{sW}"); g.I(f"s_lshl_b32 s{sAH0}, s{sAH0}, 10")
    g.I(f"s_add_u32 s{sAH0}, s{sAH0}, {AH}"); g.I(f"s_add_u32 s{sAH1}, s{sAH0}, {NSTEP*1024}")
    def a_issue1(i,k):
        off = i*4096 if i<NH else (86*1024+(i-NH)*4096)
        b=AHR+(i%8)*8+4*k
        g.I(f"s_add_u32 s{sT}, s{sAH0 if k==0 else sAH1}, {off}")
        g.vmem(f"buffer_load_dwordx4 v[{b}:{b+3}], v{vL16}, {sWS}, s{sT} offen sc1", tag=f"a{i}")
    def a_issue(i): a_issue1(i,0); a_issue1(i,1)
    def w_issue1(i,k):
        if i<NH: srd=sW2; off=i*4*16384
        else: srd=sWO; off=(i-NH)*4*16384
        slot=i%NS
        g.I(f"s_add_u32 m0, s{sRG}, {slot*2048+k*1024}")
        g.I(f"s_add_u32 s{sT}, s{sWof}, {off+k*8192}")
        g.vmem(f"buffer_load_dwordx4 v{vWd}, {srd}, s{sT} offen lds", tag=f"w{i}")
    def w_read(i):
        slot=i%NS; ws_=WSR[i%2]
        for tn in range(2):
            g.ds(f"ds_read_b64_tr_b16 v[{ws_+4*tn}:{ws_+4*tn+1}], v{vWr[tn]} offset:{slot*2048}",tag=f"r{i}")
            g.ds(f"ds_read_b64_tr_b16 v[{ws_+4*tn+2}:{ws_+4*tn+3}], v{vWr[tn]} offset:{slot*2048+1024}",tag=f"r{i}")
    def p3m(i,tn,ti):
        ws_=WSR[i%2]; b=AHR+(i%8)*8; a=PA+(tn*2+ti)*16
        g.I(f"v_mfma_f32_32x32x16_bf16 v[{a}:{a+15}], v[{ws_+4*tn}:{ws_+4*tn+3}], v[{b+4*ti}:{b+4*ti+3}], {'0' if i==0 else f'v[{a}:{a+15}]'}")
    XR=192
    g.I(f"s_lshl_b32 s78, s{sW}, 3"); g.I("v_lshrrev_b32 v3, 3, v0"); g.I("v_add_u32 v3, s78, v3")
    g.I("v_lshlrev_b32 v3, 10, v3"); g.I("v_and_b32 v4, 7, v0"); g.I("v_lshl_add_u32 v11, v4, 4, v3")
    g.I(f"s_lshl_b32 s78, s{sA3}, 15"); g.I(f"s_lshl_b32 s79, s{sCT}, 7"); g.I("s_add_u32 s78, s78, s79"); g.I("s_add_u32 s79, s78, 32768")
    g.vmem(f"buffer_load_dwordx4 v[{XR}:{XR+3}], v11, {sX}, s78 offen", tag="xr")
    g.vmem(f"buffer_load_dwordx4 v[{XR+4}:{XR+7}], v11, {sX}, s79 offen", tag="xr")
    g.I("v_and_b32 v3, 15, v0"); g.I("v_lshlrev_b32 v3, 2, v3")
    g.I(f"s_lshl_b32 s80, s{sRB3}, 7"); g.I(f"s_add_u32 s80, s80, {FH}"); g.I("v_add_u32 v12, s80, v3")
    poll(g,12,13,0x201)
    g.ts(4)
    for i in range(PF): a_issue(i)
    g.wait_vm("a0"); w_read(0)
    for i in range(NT):
        if i==NH:
            g.ts(5)
            g.I(f"s_lshl_b32 s80, s{sRB3}, 7"); g.I(f"s_add_u32 s80, s80, {FO}")
            g.I("v_and_b32 v3, 15, v0"); g.I("v_lshlrev_b32 v3, 2, v3"); g.I("v_add_u32 v12, s80, v3")
            poll(g,12,13,0x202)
            g.ts(6)
            for k in range(NH,NT): a_issue(k)
            for k in range(NH+PF,NT): w_issue(k)
            g.wait_vm(f"a{NH}"); w_read(NH)
        nxt=i+1
        if nxt<NT and nxt!=NH:
            g.wait_vm(f"a{nxt}",f"w{nxt}"); w_read(nxt)
        g.wait_lg(f"r{i}")
        k=i+PF
        todo=[]
        if k<NH: todo=[lambda: a_issue1(k,0), lambda: a_issue1(k,1), lambda: w_issue1(k,0), lambda: w_issue1(k,1)]
        elif k<NH+PF and i<NH: todo=[lambda: w_issue1(k,0), lambda: w_issue1(k,1)]
        if i==NH-1:
            Ls=g.newlab("SKIPM")
            g.I(f"s_cmp_ge_u32 s{sW}, 2"); g.I(f"s_cbranch_scc1 {Ls}")
            for tn in range(2):
                for ti in range(2): p3m(i,tn,ti)
            g.lab(Ls)
            for f in todo: f()
        else:
            q=0
            for tn in range(2):
                for ti in range(2):
                    p3m(i,tn,ti)
                    if q<len(todo): todo[q]()
                    q+=1
    g.ts(7)
    g.I("v_and_b32 v2, 31, v0"); g.I("v_lshlrev_b32 v3, 8, v2"); g.I(f"v_add_u32 v3, s{sRG}, v3")
    g.I("v_and_b32 v4, 7, v0"); g.I("v_lshrrev_b32 v5, 5, v0")
    for q in range(4):
        g.I(f"v_add_u32 v6, {2*q}, v5"); g.I("v_xor_b32 v6, v6, v4"); g.I(f"v_lshl_add_u32 v{16+q}, v6, 4, v3")
    g.nop(4)
    for tn in range(2):
        for ti in range(2):
            a=PA+(tn*2+ti)*16
            for q in range(4): g.ds(f"ds_write_b128 v{16+q}, v[{a+4*q}:{a+4*q+3}] offset:{ti*8192+tn*128}")
    g.lg0()
    g.I("s_barrier")
    g.I(f"s_lshl_b32 s78, s{sW}, 3"); g.I("v_lshrrev_b32 v3, 3, v0"); g.I("v_add_u32 v3, s78, v3")
    g.I("v_and_b32 v4, 7, v3"); g.I("v_and_b32 v5, 7, v0"); g.I("v_lshlrev_b32 v5, 1, v5")
    g.I("v_xor_b32 v6, v5, v4"); g.I("v_or_b32 v5, 1, v5"); g.I("v_xor_b32 v5, v5, v4")
    g.I("v_lshlrev_b32 v3, 8, v3"); g.I(f"v_add_u32 v3, {RING}, v3")
    g.I("v_lshl_add_u32 v16, v6, 4, v3"); g.I("v_lshl_add_u32 v17, v5, 4, v3")
    R=64
    for p in range(2):
        for k in range(4):
            for e in range(2):
                b=R+(p*8+k*2+e)*4
                g.ds(f"ds_read_b128 v[{b}:{b+3}], v{16+e} offset:{p*8192+k*16384}",tag=f"f{p}")
    g.I(f"s_lshl_b32 s78, s{sA3}, 15"); g.I(f"s_lshl_b32 s79, s{sCT}, 7"); g.I("s_add_u32 s78, s78, s79"); g.I("s_add_u32 s79, s78, 32768")
    for p in range(2):
        g.wait_lg(f"f{p}")
        for e in range(2):
            for c in range(4):
                b0=R+(p*8+0+e)*4+c
                for k in range(1,4): g.I(f"v_add_f32 v{b0}, v{b0}, v{R+(p*8+k*2+e)*4+c}")
        for e4 in range(4):
            xr=XR+4*p+e4
            g.I(f"v_lshlrev_b32 v20, 16, v{xr}"); g.I(f"v_and_b32 v21, 0xffff0000, v{xr}")
            o0=R+(p*8+(e4>>1))*4+2*(e4&1)
            g.I(f"v_add_f32 v{o0}, v{o0}, v20"); g.I(f"v_add_f32 v{o0+1}, v{o0+1}, v21")
            g.I(f"v_cvt_pk_bf16_f32 v{24+4*p+e4}, v{o0}, v{o0+1}")
        g.vmem(f"buffer_store_dwordx4 v[{24+4*p}:{27+4*p}], v11, {sOUT}, s{78+p} offen")
    g.ts(8)

def build():
    g=G()
    prologue(g)
    vm0=list(g.vm)
    hwave(g)
    g.vm=vm0; g.lg=[]
    gwave(g)
    g.lab("L_END")
    g.I("s_endpgm")
    return g.L

HEAD=f"""; fused persistent kernel: LN + QKV/W1 GEMM + sliding-window attention + W2/WO GEMM
; @launch grid=(256,1,1) block=(512,1,1) lds={LDS_TOTAL}
.amdgcn_target "amdgcn-amd-amdhsa--gfx950"
.text
.globl {KNAME}
.p2align 8
.type {KNAME},@function
{KNAME}:
"""
TAIL=f""".section .rodata,"a"
.p2align 6
.amdhsa_kernel {KNAME}
  .amdhsa_next_free_vgpr 256
  .amdhsa_next_free_sgpr 102
  .amdhsa_accum_offset 256
  .amdhsa_group_segment_fixed_size 0
  .amdhsa_kernarg_size 72
  .amdhsa_user_sgpr_count 2
  .amdhsa_user_sgpr_kernarg_segment_ptr 1
  .amdhsa_system_sgpr_workgroup_id_x 1
  .amdhsa_float_denorm_mode_32 3
.end_amdhsa_kernel
"""
if __name__=="__main__":
    out=sys.argv[1] if len(sys.argv)>1 else "k.s"
    for a in sys.argv[2:]:
        k,_,val=a.partition("="); OPT[k]=int(val,0) if val else True
    L=build()
    errs=lint(L)
    for e in errs[:60]: print("LINT:",e)
    print(len(errs),"lint errors;",len(L),"lines")
    open(out,"w").write(HEAD+"\n".join(L)+"\n"+TAIL)
```

```python
import sys
from lint import lint

KNAME = "parallel_sum__sliding_block__dense_activation_relu__prompt_kernel"
OPT = dict(ts=0, spin=1<<20, cyc=0, prio=1, l2pf=1, kvq=5, rot=1, pf0=1, pf1=1, rp0=5, l2n=1, fkvn=5, nfill=3, nfill0=4, nfill1=4, kn=2, vn=4, h0n=6, fd=2, gap=12, pf3=3)

KVST = 24576
def R1(s): return s*KVST
R2 = 73728
def R2S(s): return R2 + s*16384
def KVB(it): return [0,KVST,2*KVST,R2,R2+32768,0,KVST,2*KVST][it]
KVL = 0; SLOT = 6144; SLOTG = 4096
QL = 139264
RING = R2
HST=[139264,147712]
NM = 159744; RL = 160256; SL = 160768; CNT = 147456
LDS_TOTAL = 163840
WS_NONCE=0; FKV=0x8000; FVV=0x30000; FH=0x10000; FO=0x28000
STR=0x40000; KV=0x100000; AH=0x800000; TS=0xF80000; WS_SIZE=0x1000000
NSTEP=118
TAGC=0x9E3779B9
sX="s[40:43]"; sWQ="s[44:47]"; sW1="s[48:51]"; sW2="s[52:55]"; sWO="s[56:59]"; sOUT="s[60:63]"; sWS="s[64:67]"
sW=26; sRB=27; sCS=28; sJ=29; sIDX=30; sTAG=31; sU32=33; sNT=34; sA3=35; sCT=36; sRB3=37; sHW=38; sSPIN=39

class G:
    def __init__(s):
        s.L=[]; s.vm=[]; s.lg=[]; s.nlab=0; s.seen=set()
    def I(s,t): s.L.append(" "+t)
    def C(s,t): s.L.append(" ; "+t)
    def lab(s,n): s.L.append(n+":")
    def newlab(s,p="L"):
        s.nlab+=1; return f"{p}_{s.nlab}"
    def vmem(s,t,tag=None,cond=False):
        s.L.append(" "+t+(f" ;@tag {tag}" if tag else ""))
        if not cond: s.vm.append(tag)
        elif tag: s.vm.append(("cond",tag))
    def ds(s,t,tag=None,cond=False):
        s.L.append(" "+t+(f" ;@tag {tag}" if tag else ""))
        s.seen.add(tag)
        if not cond: s.lg.append(tag)
        elif tag: s.lg.append(("cond",tag))
    @staticmethod
    def _ny(q,tag):
        n=0
        for x in reversed(q):
            if x==tag or x==("cond",tag): return n
            if not isinstance(x,tuple): n+=1
        return None
    def wait_vm(s,*tags,extra=""):
        ns=[s._ny(s.vm,t) for t in tags]; ns=[n for n in ns if n is not None]
        n=min(min(ns) if ns else 63,63)
        s.I(f"s_waitcnt vmcnt({n}){extra}")
        s.L.append(" ;@need "+",".join(tags))
        if "lgkmcnt(0)" in extra: s.lg=[]
    def wait_lg_must(s,tag):
        assert tag in s.seen, f"tag {tag} not emitted yet"
        s.wait_lg(tag)
    def wait_lg(s,*tags):
        ns=[s._ny(s.lg,t) for t in tags]; ns=[n for n in ns if n is not None]
        if not ns: return
        n=min(min(ns),15)
        s.I(f"s_waitcnt lgkmcnt({n})")
        s.L.append(" ;@need "+",".join(tags))
        if n==0: s.lg=[]
    def lg0(s):
        s.I("s_waitcnt lgkmcnt(0)"); s.lg=[]
    def vm0(s,extra=""):
        s.I("s_waitcnt vmcnt(0)"+extra); s.vm=[]
        if "lgkmcnt(0)" in extra: s.lg=[]
    def nop(s,n):
        while n>0:
            k=min(n,16); s.I(f"s_nop {k-1}"); n-=k
    LP=[8,10,12,14,16,18,20,22,78,80,82,84,86,88,96,98]
    def lts(s,i):
        if OPT["ts"]==5: s.I(f"s_memtime s[{s.LP[i]}:{s.LP[i]+1}]")
    LH=[10,12,14,16,18,20,22,4]
    def lts2(s,i):
        if OPT["ts"]==5: s.I(f"s_memtime s[{s.LH[i]}:{s.LH[i]+1}]")
    def lts2_dump(s):
        if OPT["ts"]!=5: return
        s.I("s_waitcnt lgkmcnt(0)"); s.lg=[]
        for i in range(8):
            s.I(f"v_mov_b32 v1, s{s.LH[i]}")
            s.vmem(f"buffer_store_dword v1, off, {sWS}, s92 offset:{i*4}", tag=None)
            s.I("s_nop 1")
    LA=[10,12,14,16,18,20,22,70,72,74,76,78,96,4,6,2]
    def lta(s,i):
        if OPT["ts"]==7 and i<15: s.I(f"s_memtime s[{s.LA[i]}:{s.LA[i]+1}]")
    def lta_dump(s):
        if OPT["ts"]!=7: return
        s.I("s_waitcnt lgkmcnt(0)"); s.lg=[]
        for i in range(15):
            s.I(f"v_mov_b32 v1, s{s.LA[i]}")
            s.vmem(f"buffer_store_dword v1, off, {sWS}, s92 offset:{i*4}", tag=None)
            s.I("s_nop 1")
    def lts_dump(s):
        if OPT["ts"] not in (5,6): return
        s.I("s_waitcnt lgkmcnt(0)"); s.lg=[]
        for i in range(16):
            s.I(f"v_mov_b32 v1, s{s.LP[i]}")
            s.vmem(f"buffer_store_dword v1, off, {sWS}, s92 offset:{i*4}", tag=None)
            s.I("s_nop 1")
    def ts(s,i,mode=1):
        if OPT["ts"]!=mode: return
        s.I("s_memrealtime s[90:91]" if not OPT.get("cyc") else "s_memtime s[90:91]")
        s.I("s_waitcnt lgkmcnt(0)"); s.lg=[]
        s.I(f"v_mov_b32 v1, s90")
        s.vmem(f"buffer_store_dword v1, off, {sWS}, s92 offset:{i*4}", tag=None)

def errmark(g,vtmp,errcode):
    g.I(f"v_mov_b32 v{vtmp}, {errcode}")
    g.I(f"v_mov_b32 v{vtmp+1}, 0")
    g.vmem(f"global_store_dword v{vtmp+1}, v{vtmp}, s[68:69]")
    g.I("s_waitcnt vmcnt(0)")
def spoll_issue(g, soff, n):
    if n==1: g.I(f"s_load_dword s8, s[64:65], s{soff} glc")
    else: g.I(f"s_load_dwordx16 s[8:23], s[64:65], s{soff} glc")
def spoll_test(g, n):
    if n==1:
        g.I(f"s_cmp_lg_u32 s8, s{sTAG}")
    else:
        for k in range(8): g.I(f"s_xor_b64 s[{8+2*k}:{9+2*k}], s[{8+2*k}:{9+2*k}], s[24:25]")
        for k in (1,2,3,4,5,6,7): g.I(f"s_or_b64 s[8:9], s[8:9], s[{8+2*k}:{9+2*k}]")
        g.I("s_or_b32 s8, s8, s9")
def spoll(g, soff, n, errcode, vtmp, issued=False):
    L=g.newlab("SPL"); D=g.newlab("SPD"); F=g.newlab("SPF")
    g.I(f"s_mov_b32 s{sSPIN}, {OPT['spin']}")
    if issued: g.I(f"s_branch {F}")
    g.lab(L)
    spoll_issue(g,soff,n)
    g.lab(F)
    g.I("s_waitcnt lgkmcnt(0)"); g.lg=[]
    spoll_test(g,n)
    g.I(f"s_cbranch_scc0 {D}")
    g.I(f"s_sub_u32 s{sSPIN}, s{sSPIN}, 1")
    g.I(f"s_cbranch_scc0 {L}")
    save=list(g.vm); errmark(g,vtmp,errcode); g.vm=save
    g.lab(D)
def flag_store1(g, base, va, vb, st=81):
    g.I(f"s_lshl_b32 s{st}, s{sRB}, 4"); g.I(f"s_add_u32 s{st}, s{st}, s{sCS}"); g.I(f"s_lshl_b32 s{st}, s{st}, 7"); g.I(f"s_add_u32 s{st}, s{st}, {base}")
    g.I(f"v_mov_b32 v{va}, s{st}"); g.I(f"v_mov_b32 v{vb}, s{sTAG}")
    g.I("s_mov_b64 exec, 1")
    g.vmem(f"buffer_store_dword v{vb}, v{va}, {sWS}, 0 offen sc1", cond=True)
    g.I("s_mov_b64 exec, -1")
def flag_store16(g, base, va, vb, st=81):
    g.I(f"s_lshl_b32 s{st}, s{sRB}, 11"); g.I(f"s_lshl_b32 s{st+1}, s{sCS}, 2"); g.I(f"s_add_u32 s{st}, s{st}, s{st+1}"); g.I(f"s_add_u32 s{st}, s{st}, {base}")
    g.I(f"v_lshlrev_b32 v{va}, 7, v0"); g.I(f"v_add_u32 v{va}, s{st}, v{va}"); g.I(f"v_mov_b32 v{vb}, s{sTAG}")
    g.I("s_mov_b64 exec, 0xffff")
    g.vmem(f"buffer_store_dword v{vb}, v{va}, {sWS}, 0 offen sc1", cond=True)
    g.I("s_mov_b64 exec, -1")

def prologue(g):
    g.I("s_cmp_ge_u32 s2, 256")
    g.I("s_cbranch_scc1 L_END")
    g.I("s_getpc_b64 s[4:5]")
    g.lab("L_PCREF")
    g.I("v_lshlrev_b32 v1, 7, v0")
    g.I("v_min_u32 v1, L_END-L_PCREF, v1")
    g.I("s_load_dwordx2 s[40:41], s[0:1], 0")
    g.I("s_load_dwordx2 s[44:45], s[0:1], 8")
    g.I("s_load_dwordx2 s[48:49], s[0:1], 32")
    g.I("s_load_dwordx2 s[64:65], s[0:1], 64")
    g.vmem("global_load_dword v250, v1, s[4:5]", tag="cpf")
    g.I("v_lshrrev_b32 v1, 6, v0")
    g.I("v_and_b32 v0, 63, v0")
    g.I(f"v_readfirstlane_b32 s{sW}, v1")
    g.I(f"s_and_b32 s{sJ}, s2, 7")
    g.I(f"s_lshr_b32 s{sIDX}, s2, 3")
    g.I(f"s_and_b32 s3, s{sJ}, 1")
    g.I(f"s_lshl_b32 s3, s3, 3")
    g.I(f"s_and_b32 s{sRB}, s{sIDX}, 7")
    g.I(f"s_or_b32 s{sRB}, s{sRB}, s3")
    g.I(f"s_lshr_b32 s3, s{sJ}, 1")
    g.I(f"s_lshl_b32 s3, s3, 2")
    g.I(f"s_lshr_b32 s{sCS}, s{sIDX}, 3")
    g.I(f"s_or_b32 s{sCS}, s{sCS}, s3")
    for base,size in ((40,2097152),(44,1572864),(48,1409024),(64,WS_SIZE)):
        g.I(f"s_mov_b32 s{base+2}, {size}")
        g.I(f"s_mov_b32 s{base+3}, 0x20000")
    g.I(f"s_mul_i32 s{sU32}, s{sCS}, 3")
    g.I(f"s_lshl_b32 s3, s{sCS}, 1"); g.I("s_add_u32 s3, s3, 11")
    g.I(f"s_min_u32 s{sU32}, s{sU32}, s3")
    g.I(f"s_cmp_lt_u32 s{sCS}, 11"); g.I(f"s_cselect_b32 s{sNT}, 3, 2")
    if OPT["ts"]:
        g.I(f"s_lshl_b32 s92, s2, 3"); g.I(f"s_add_u32 s92, s92, s{sW}"); g.I(f"s_lshl_b32 s92, s92, 6"); g.I(f"s_add_u32 s92, s92, {TS}")
    g.I(f"s_cmp_lt_u32 s{sW}, 4")
    g.I("s_cbranch_scc1 L_GWAVE")


def attention(g, general, QF, BD, BO, sTM, vsync):
    KB=[24,28,32]; SB=[160,176,224]; CZ=192; MC=208; PB=[36,44]; VB=[52,60]; OA=[96,112]
    M=[[68,69,70,71],[72,73,74,75]]; NEG=76
    seq=[(t,h) for h in range(2) for t in range(9)]
    def kread(n):
        t,h=seq[n]; b=KB[n%3]; g.ds(f"ds_read_b128 v[{b}:{b+3}], v11 offset:{t*SLOT+h*1024}", tag=f"k{n}")
    def setC(val):
        for r in range(16): g.I(f"v_mov_b32 v{CZ+r}, {val}")
    def cz_init(val):
        if not general:
            if val!="0": setC(val)
            return
        La=g.newlab("CZA"); Lb2=g.newlab("CZB")
        g.I(f"s_cmp_gt_u32 s{sTM}, 1"); g.I(f"s_cbranch_scc1 {La}")
        setC(val); g.I(f"s_branch {Lb2}"); g.lab(La); setC("v5"); g.lab(Lb2)
    def cz_switch(t,val):
        if not general: return
        Ls=g.newlab("CZS")
        g.I(f"s_cmp_eq_u32 s{sTM}, {t}"); g.I(f"s_cbranch_scc0 {Ls}")
        g.nop(8); setC(val); g.I("s_nop 1"); g.lab(Ls)
    NS1=3
    def smfma1(n,Cr):
        t,h=seq[n]; b=KB[n%3]; S=SB[n%NS1]
        g.I(f"v_mfma_f32_32x32x16_bf16 v[{S}:{S+15}], v[{b}:{b+3}], v[{QF+4*h}:{QF+4*h+3}], {Cr}")
    for h in range(2):
        for m in M[h]: g.I(f"v_mov_b32 v{m}, v5")
    kread(0); kread(1)
    cz_init("0")
    g.wait_lg("q")
    for n in range(20):
        if n<18:
            t,h=seq[n]
            if n==9: cz_init("0")
            elif 2<=t<=7: cz_switch(t,"0")
            g.wait_lg(f"k{n}")
            mid = f"v[{CZ}:{CZ+15}]" if general else "0"
            Cr = f"v[{BO}:{BO+15}]" if t==0 else (f"v[{BD}:{BD+15}]" if t==8 else mid)
            if n==9 and general: g.I("s_nop 0")
            smfma1(n,Cr)
            if n+2<18: kread(n+2)
        if n==2: g.nop(6)
        if n==19: g.nop(4)
        if n>=2:
            tp,hp=seq[n-2]; Sp=SB[(n-2)%NS1]
            for e in range(8): g.I(f"v_max3_f32 v{M[hp][e%4]}, v{Sp+2*e}, v{Sp+2*e+1}, v{M[hp][e%4]}")
    for h in range(2):
        g.I(f"v_max3_f32 v{M[h][0]}, v{M[h][0]}, v{M[h][1]}, v{M[h][2]}")
    for h in range(2):
        g.I(f"v_max_f32 v{M[h][0]}, v{M[h][0]}, v{M[h][3]}")
    for h in range(2): g.I(f"v_mov_b32 v{NEG+h}, v{M[h][0]}")
    g.I("s_nop 1")
    for h in range(2): g.I(f"v_permlane32_swap_b32 v{M[h][0]}, v{NEG+h}")
    g.I("s_nop 0")
    for h in range(2): g.I(f"v_max_f32 v{M[h][0]}, v{M[h][0]}, v{NEG+h}")
    for h in range(2): g.I(f"v_sub_f32 v{NEG+h}, 0, v{M[h][0]}")
    g.ts(4)
    vsync()
    def smfma(n,Cr):
        t,h=seq[n]; b=KB[n%3]; S=SB[n%2]
        g.I(f"v_mfma_f32_32x32x16_bf16 v[{S}:{S+15}], v[{b}:{b+3}], v[{QF+4*h}:{QF+4*h+3}], {Cr}")
    def vread(n):
        t,h=seq[n]; b=VB[n%2]
        g.ds(f"ds_read_b128 v[{b}:{b+3}], v11 offset:{t*SLOT+2048+h*2048}", tag=f"v{n}")
        g.ds(f"ds_read_b128 v[{b+4}:{b+7}], v11 offset:{t*SLOT+2048+h*2048+1024}", tag=f"v{n}")
    def prepC(n):
        t,h=seq[n]
        if t==0:
            for r in range(16): g.I(f"v_add_f32 v{MC+r}, v{BO+r}, v{NEG+h}")
            cz_init(f"v{NEG+h}")
            if not general: g.I("s_nop 0")
            return f"v[{MC}:{MC+15}]"
        if t==8:
            for r in range(16): g.I(f"v_add_f32 v{MC+r}, v{BD+r}, v{NEG+h}")
            g.I("s_nop 0")
            return f"v[{MC}:{MC+15}]"
        if t>=2: cz_switch(t,f"v{NEG+h}")
        return f"v[{CZ}:{CZ+15}]"
    def pv(n,k):
        t,h=seq[n]; Vb=VB[n%2]; P=PB[n%2]; O=OA[h]
        Cin='0' if (t==0 and k==0) else f'v[{O}:{O+15}]'
        g.I(f"v_mfma_f32_32x32x16_bf16 v[{O}:{O+15}], v[{Vb+4*k}:{Vb+4*k+3}], v[{P+4*k}:{P+4*k+3}], {Cin}")
    kread(0); kread(1)
    Cr=prepC(0)
    g.wait_lg("k0"); g.I("s_nop 0")
    smfma(0,Cr)
    vread(0)
    for n in range(19):
        g.lta(n)
        if n<18:
            if n+2<18: kread(n+2)
            if n+1<18:
                Cr=prepC(n+1); g.wait_lg(f"k{n+1}"); smfma(n+1,Cr)
            if n==0: g.nop(10)
            Sn=SB[n%2]; P=PB[n%2]
            ops=[]
            for e in range(8):
                ops.append(f"v_exp_f32 v{Sn+2*e}, v{Sn+2*e}"); ops.append(f"v_exp_f32 v{Sn+2*e+1}, v{Sn+2*e+1}")
                if e>=2: ops.append(f"v_cvt_pk_bf16_f32 v{P+e-2}, v{Sn+2*e-4}, v{Sn+2*e-3}")
            ops.append(f"v_cvt_pk_bf16_f32 v{P+6}, v{Sn+12}, v{Sn+13}"); ops.append(f"v_cvt_pk_bf16_f32 v{P+7}, v{Sn+14}, v{Sn+15}")
            for i,o in enumerate(ops):
                g.I(o)
                if n>=1 and i==4: g.wait_lg(f"v{n-1}"); pv(n-1,0)
                if n>=1 and i==10:
                    pv(n-1,1)
                    if n+1<18: vread(n+1) if False else None
                if i==13 and n>=0:
                    if n>=1: vread(n)
        else:
            g.wait_lg("v17"); g.I("s_nop 1"); pv(17,0); pv(17,1)
    return OA

def hwave(g):
    vXe=8; vXo=9; vWq=10; vW1=11; vTK=12; vTK2=13; vTT=14
    sXb=70; sMx=73; sMw=74; sT=78; sCK=75; sCV=76; sCQ=77; sC1=79; sKB0=95; sKB=96; sU=97
    BD=128; BO=144; sTM=84; need=85; sSL=86; sDONE=87; sSRC=88; sFK=89; sDV=94; sFV=99; sKVo=100; sAHo=101; sH1=71; sH4=72
    SEL=60; CA=[56,64]; SX=[68,72]; XH=76; vXh=92; FB=32; PB_=96
    g.I(f"s_sub_u32 s{sHW}, s{sW}, 4")
    g.I(f"s_cmp_ge_u32 s{sHW}, 2"); g.I("s_cbranch_scc1 L_HPUB")
    def kbof(tb):
        g.I(f"s_add_u32 s{sKB}, s{sKB0}, {tb}"); g.I(f"s_and_b32 s{sKB}, s{sKB}, 7")
    def kv_issue(it):
        st=KVB(it)
        kbof(it)
        g.I(f"s_lshl_b32 s{sU}, s{sKB}, 7"); g.I(f"s_add_u32 s{sU}, s{sU}, s{sXb}")
        for i in range(8):
            g.I(f"s_add_u32 m0, s{sMx}, {st+i*1024}")
            g.I(f"s_add_u32 s{sT}, s{sU}, {i*8192}")
            g.vmem(f"buffer_load_dwordx4 v{vXe if i%2==0 else vXo}, {sX}, s{sT} offen lds", tag=f"kv{it}")
        g.I(f"s_mul_i32 s{sU}, s{sKB}, 196608")
        for u,sc in ((0,sCK),(1,sCV)):
            g.I(f"s_add_u32 s3, s{sc}, s{sU}")
            for sub in range(2):
                g.I(f"s_add_u32 m0, s{sMw}, {st+16384+u*4096+sub*1024}")
                g.I(f"s_add_u32 s{sT}, s3, {sub*49152}")
                g.vmem(f"buffer_load_dwordx4 v{vWq}, {sWQ}, s{sT} offen lds", tag=f"kv{it}")
    def ht_issue(n):
        for kk in range(2):
            kbof(2*(n%4)+kk)
            for y in range(2):
                T=(0 if n<4 else 2)+y
                if T<3: g.I(f"s_mul_i32 s{sU}, s{sKB}, 176128"); g.I(f"s_add_u32 s3, s{sC1}, s{sU}")
                else: g.I(f"s_mul_i32 s{sU}, s{sKB}, 196608"); g.I(f"s_add_u32 s3, s{sCQ}, s{sU}")
                for sub in range(2):
                    g.I(f"s_add_u32 m0, s{sMw}, {R2S(n%4)+(kk*2+y)*4096+sub*1024}")
                    if T<3:
                        g.I(f"s_add_u32 s{sT}, s3, {T*64+sub*44032}")
                        g.vmem(f"buffer_load_dwordx4 v{vW1}, {sW1}, s{sT} offen lds", tag=f"ht{n}")
                    else:
                        g.I(f"s_add_u32 s{sT}, s3, {sub*49152}")
                        g.vmem(f"buffer_load_dwordx4 v{vWq}, {sWQ}, s{sT} offen lds", tag=f"ht{n}")
    def setup_common():
        g.I("s_load_dwordx2 s[68:69], s[0:1], 56")
        g.I(f"s_lshl_b32 s{sH1}, s{sHW}, 10"); g.I(f"s_lshl_b32 s{sH4}, s{sHW}, 12")
        g.I("v_lshlrev_b32 v15, 7, v0"); g.I("v_lshlrev_b32 v7, 4, v0")
        g.I("v_lshrrev_b32 v3, 5, v0"); g.I("v_lshlrev_b32 v3, 3, v3"); g.I("v_bfe_u32 v4, v0, 2, 2"); g.I("v_add_u32 v3, v3, v4")
        g.I("v_lshlrev_b32 v3, 6, v3"); g.I("v_bfe_u32 v4, v0, 4, 1"); g.I("v_lshl_add_u32 v3, v4, 5, v3")
        g.I("v_and_b32 v4, 3, v0"); g.I("v_lshl_add_u32 v3, v4, 3, v3")
        g.I(f"s_add_u32 s81, s{sH1}, 16384"); g.I(f"v_add_u32 v{vTK}, s81, v3"); g.I(f"v_add_u32 v{vTK2}, {R2}, v{vTK}")
        g.I(f"s_add_u32 s81, s{sH1}, {R2}"); g.I(f"v_add_u32 v{vTT}, s81, v3")
        g.I("v_and_b32 v3, 31, v0"); g.I("v_lshrrev_b32 v4, 5, v0"); g.I("v_lshlrev_b32 v4, 2, v4")
        g.I("v_sub_u32 v3, v3, v4"); g.I("v_mov_b32 v5, 0xf149f2ca")
        g.I(f"s_lshl_b32 s81, s{sRB}, 2"); g.I(f"s_add_u32 s81, s81, s{sHW}")
        g.I(f"s_sub_i32 s{sTM}, 8, s81"); g.I(f"s_max_i32 s{sTM}, s{sTM}, 0")
        for r in range(16):
            kk=(r&3)+8*(r>>2)
            g.I(f"v_subrev_u32 v6, {kk}, v3"); g.I(f"v_ashrrev_i32 v6, 31, v6")
            g.I(f"v_and_b32 v{BD+r}, v6, v5"); g.I(f"v_bfi_b32 v{BO+r}, v6, 0, v5")
        Lb=g.newlab("BOK")
        g.I(f"s_cmp_eq_u32 s{sTM}, 0"); g.I(f"s_cbranch_scc1 {Lb}")
        for r in range(16): g.I(f"v_mov_b32 v{BO+r}, v5")
        g.lab(Lb)
        g.I("v_and_b32 v3, 15, v0"); g.I("v_bfe_u32 v4, v0, 4, 1"); g.I("v_cmp_eq_u32 vcc, v3, v4"); g.I("v_mov_b32 v6, 0x3f803f80")
        g.I("s_nop 0"); g.I(f"v_cndmask_b32 v{SEL}, 0, v6, vcc")
        for k in range(1,4): g.I(f"v_mov_b32 v{SEL+k}, v{SEL}")
        g.I("v_and_b32 v2, 31, v0")
        g.I("v_lshrrev_b32 v3, 3, v2"); g.I("v_lshlrev_b32 v3, 10, v3"); g.I("v_and_b32 v4, 7, v2"); g.I("v_lshl_add_u32 v3, v4, 7, v3")
        g.I("v_bfe_u32 v4, v0, 1, 3"); g.I("v_lshrrev_b32 v6, 5, v0"); g.I("v_xor_b32 v4, v4, v6"); g.I("v_lshl_add_u32 v3, v4, 4, v3")
        g.I(f"v_add_u32 v{vXh}, s{sH4}, v3")
        for t in range(1,4): g.I(f"v_xor_b32 v{vXh+t}, {t<<5}, v{vXh}")
        g.I("v_lshlrev_b32 v3, 4, v0"); g.I(f"s_lshl_b32 s81, s{sHW}, 2"); g.I(f"s_add_u32 s81, s81, {SL}"); g.I(f"v_add_u32 v18, s81, v3")
    def get_tag():
        g.wait_vm("nonce")
        g.I(f"v_readfirstlane_b32 s{sTAG}, v28"); g.I("s_nop 1")
        g.I(f"s_add_u32 s{sTAG}, s{sTAG}, {TAGC}"); g.I(f"s_mov_b32 s24, s{sTAG}"); g.I(f"s_mov_b32 s25, s{sTAG}")
    def cs_mfma(b,a,first):
        g.I(f"v_mfma_f32_16x16x32_bf16 v[{a}:{a+3}], v[{SEL}:{SEL+3}], v[{b}:{b+3}], {'0' if first else f'v[{a}:{a+3}]'}")
    def cs_final(a,tile):
        g.I("s_mov_b64 exec, 0xffff")
        g.ds(f"ds_write_b32 v18, v{a} offset:{tile*512}")
        g.ds(f"ds_write_b32 v18, v{a+1} offset:{tile*512+256}")
        g.I("s_mov_b64 exec, -1")
    def bar(tags,idx):
        if tags: g.wait_vm(*tags,extra=" lgkmcnt(0)")
        else: g.lg0()
        g.ts(idx,2)
        if idx>=8: g.lts2(idx-8)
        g.I("s_barrier")
    def kv_stats(it):
        st=KVB(it); base=vTK if st<R2 else vTK2; off=st if st<R2 else st-R2
        if it==3:
            for k in range(4): g.I(f"v_add_u32 v{vXh+k}, {R2}, v{vXh+k}")
        if it==5:
            for k in range(4): g.I(f"v_subrev_u32 v{vXh+k}, {R2}, v{vXh+k}")
        for t in range(4):
            g.ds(f"ds_read_b128 v[{XH+4*t}:{XH+4*t+3}], v{vXh+t} offset:{off}",tag=f"xh{t}")
        for u in range(2):
            g.ds(f"ds_read_b64_tr_b16 v[{FB+4*u}:{FB+4*u+1}], v{base} offset:{off+u*4096}",tag="cf")
            g.ds(f"ds_read_b64_tr_b16 v[{FB+4*u+2}:{FB+4*u+3}], v{base} offset:{off+u*4096+256}",tag="cf")
    def kv_stats2(it):
        for t in range(4):
            g.wait_lg(f"xh{t}")
            cs_mfma(XH+4*t,SX[t%2],it==0 and t<2)
        g.wait_lg("cf")
        cs_mfma(FB,CA[0],it==0); cs_mfma(FB+4,CA[1],it==0)
        if it==7:
            g.I("v_lshlrev_b32 v3, 2, v0"); g.I(f"s_lshl_b32 s81, s{sHW}, 7"); g.I(f"s_add_u32 s81, s81, {NM}"); g.I("v_add_u32 v3, s81, v3")
            g.nop(10)
            for k in range(2): g.I(f"v_add_f32 v{SX[0]+k}, v{SX[0]+k}, v{SX[1]+k}")
            g.I("s_mov_b64 exec, 0xffff")
            g.ds(f"ds_write_b32 v3, v{SX[0]}"); g.ds(f"ds_write_b32 v3, v{SX[0]+1} offset:64")
            g.I("s_mov_b64 exec, -1")
            cs_final(CA[0],0); cs_final(CA[1],1)
    def ht_reads(n):
        for t in range(4):
            g.ds(f"ds_read_b64_tr_b16 v[{FB+4*t}:{FB+4*t+1}], v{vTT} offset:{(n%4)*16384+t*4096}",tag="cf")
            g.ds(f"ds_read_b64_tr_b16 v[{FB+4*t+2}:{FB+4*t+3}], v{vTT} offset:{(n%4)*16384+t*4096+256}",tag="cf")
    def ht_cs(n):
        g.lg0()
        for t in range(4): cs_mfma(FB+4*t,CA[t%2],(n%4)==0 and t<2)
        if n%4==3:
            g.nop(12)
            cs_final(CA[0],2 if n<4 else 4); cs_final(CA[1],3 if n<4 else 5)
    g.I("v_lshrrev_b32 v3, 3, v0"); g.I("v_lshlrev_b32 v3, 10, v3"); g.I("v_and_b32 v4, 7, v0"); g.I("v_lshrrev_b32 v5, 4, v0")
    g.I("v_xor_b32 v4, v4, v5"); g.I(f"v_lshl_or_b32 v{vXe}, v4, 4, v3"); g.I(f"v_xor_b32 v{vXo}, 64, v{vXe}")
    g.I("v_lshrrev_b32 v3, 2, v0"); g.I("v_and_b32 v4, 3, v0"); g.I("v_lshlrev_b32 v4, 4, v4")
    g.I(f"v_mov_b32 v5, 3072"); g.I(f"v_mad_u32_u24 v{vWq}, v3, v5, v4")
    g.I(f"v_mov_b32 v5, 2752"); g.I(f"v_mad_u32_u24 v{vW1}, v3, v5, v4")
    g.I(f"s_lshl_b32 s{sXb}, s{sRB}, 17"); g.I(f"s_lshl_b32 s{sT}, s{sHW}, 16"); g.I(f"s_add_u32 s{sXb}, s{sXb}, s{sT}")
    g.I(f"s_lshl_b32 s{sMx}, s{sHW}, 13"); g.I(f"s_lshl_b32 s{sMw}, s{sHW}, 11")
    g.I(f"s_mul_i32 s{sCQ}, s{sHW}, {2*49152}"); g.I(f"s_lshl_b32 s{sT}, s{sCS}, 6"); g.I(f"s_add_u32 s{sCQ}, s{sCQ}, s{sT}")
    g.I(f"s_add_u32 s{sCK}, s{sCQ}, 1024"); g.I(f"s_add_u32 s{sCV}, s{sCQ}, 2048")
    g.I(f"s_mul_i32 s{sC1}, s{sHW}, {2*44032}"); g.I(f"s_lshl_b32 s{sT}, s{sU32}, 6"); g.I(f"s_add_u32 s{sC1}, s{sC1}, s{sT}")
    if OPT["rot"]:
        g.I(f"s_and_b32 s{sKB0}, s{sCS}, 3"); g.I(f"s_lshl_b32 s{sKB0}, s{sKB0}, 1"); g.I(f"s_bfe_u32 s{sKB}, s{sCS}, 0x10002")
        g.I(f"s_add_u32 s{sKB0}, s{sKB0}, s{sKB}"); g.I(f"s_add_u32 s{sKB0}, s{sKB0}, s{sRB}")
    else: g.I(f"s_mov_b32 s{sKB0}, 0")
    g.I("s_waitcnt lgkmcnt(0)")
    g.ts(0)
    if OPT["prio"]: g.I("s_setprio 2")
    g.I("v_mov_b32 v3, 0")
    g.vmem(f"buffer_load_dword v28, v3, {sWS}, 0 offen sc1", tag="nonce")
    kv_issue(0); kv_issue(1)
    setup_common()
    g.lg0()
    for it in range(2,5): kv_issue(it)
    get_tag()
    for it in range(8):
        bar([f"kv{it}"],it)
        if it==0: g.ts(1)
        kv_stats(it)
        if 2<=it<=4: kv_issue(it+3)
        if it>=5: ht_issue(it-5)
        kv_stats2(it)
    for n in range(8):
        bar([f"ht{n}"],8+n)
        if n==0: g.ts(2)
        ht_reads(n)
        if n==0: ht_issue(3)
        if 2<=n<=5: ht_issue(n+2)
        ht_cs(n)
    g.lg0()
    g.I("s_barrier")
    g.ts(9)
    g.vm0(" lgkmcnt(0)")
    g.I("s_barrier")
    g.ts(10)
    g.I("s_branch L_ATT")
    g.lab("L_HPUB"); g.vm=[("cond","cpf")]; g.lg=[]
    sPI=73
    g.I(f"s_sub_u32 s{sPI}, s{sHW}, 2")
    g.I("s_waitcnt lgkmcnt(0)")
    g.ts(0)
    if OPT["prio"]: g.I("s_setprio 2")
    g.I("v_mov_b32 v3, 0")
    g.vmem(f"buffer_load_dword v28, v3, {sWS}, 0 offen sc1", tag="nonce")
    g.I("s_load_dwordx2 s[52:53], s[0:1], 40"); g.I("s_load_dwordx2 s[56:57], s[0:1], 16")
    g.I("s_mov_b32 s54, 1409024"); g.I("s_mov_b32 s55, 0x20000"); g.I("s_mov_b32 s58, 524288"); g.I("s_mov_b32 s59, 0x20000")
    setup_common()
    g.I(f"v_mov_b32 v3, {CNT}")
    for r_ in range(20,24): g.I(f"v_mov_b32 v{r_}, 0")
    g.ds("ds_write_b128 v3, v[20:23]")
    g.I(f"s_sub_u32 s82, 2, s{sPI}"); g.I(f"s_sub_i32 s83, s{sRB}, s82")
    g.I(f"s_cmp_ge_i32 s83, 0"); g.I(f"s_cselect_b32 s{need}, 1, 0")
    g.I(f"s_xor_b32 s{sDONE}, s{need}, 1"); g.I(f"s_mov_b32 s{sDV}, s{sDONE}")
    g.I(f"s_mul_i32 s{sSL}, s{sPI}, {4*SLOT}")
    g.I(f"s_max_i32 s83, s83, 0")
    g.I(f"s_lshl_b32 s81, s83, 4"); g.I(f"s_add_u32 s81, s81, s{sCS}"); g.I("s_lshl_b32 s81, s81, 7"); g.I(f"s_add_u32 s{sFK}, s81, {FKV}"); g.I(f"s_add_u32 s{sFV}, s81, {FVV}")
    g.I(f"s_lshl_b32 s81, s{sRB}, 2"); g.I(f"s_lshl_b32 s82, s{sPI}, 2"); g.I("s_add_u32 s81, s81, s82"); g.I("s_sub_u32 s81, s81, 8")
    g.I("s_lshl_b32 s81, s81, 4"); g.I(f"s_add_u32 s81, s81, s{sCS}"); g.I(f"s_mul_i32 s81, s81, {SLOTG}"); g.I(f"s_add_u32 s{sSRC}, s81, {KV}")
    g.I(f"s_lshl_b32 s81, s{sRB}, 2"); g.I(f"s_lshl_b32 s82, s{sPI}, 1"); g.I("s_add_u32 s81, s81, s82")
    g.I(f"s_lshl_b32 s{sKVo}, s81, 4"); g.I(f"s_add_u32 s{sKVo}, s{sKVo}, s{sCS}"); g.I(f"s_mul_i32 s{sKVo}, s{sKVo}, {SLOTG}"); g.I(f"s_add_u32 s{sKVo}, s{sKVo}, {KV}")
    g.I(f"s_mul_i32 s{sAHo}, s81, {NSTEP}"); g.I(f"s_lshl_b32 s82, s{sU32}, 1"); g.I(f"s_add_u32 s{sAHo}, s{sAHo}, s82"); g.I(f"s_lshl_b32 s{sAHo}, s{sAHo}, 10"); g.I(f"s_add_u32 s{sAHo}, s{sAHo}, {AH}")
    g.I(f"s_lshl_b32 s81, s{sPI}, 1"); g.I(f"s_add_u32 s81, s81, 8"); g.I(f"s_mul_i32 s81, s81, {SLOT}"); g.I("v_add_u32 v19, s81, v7")
    g.I(f"s_lshl_b32 s81, s{sPI}, 12"); g.I("v_add_u32 v20, s81, v7")
    g.lg0()
    get_tag()
    def exA(): g.I("s_mov_b32 exec_lo, 0x0000ffff"); g.I("s_mov_b32 exec_hi, 0x0000ffff")
    def exB(): g.I("s_mov_b32 exec_lo, 0xffff0000"); g.I("s_mov_b32 exec_hi, 0xffff0000")
    def remote_dma(kind):
        if kind=="K":
            for tt in range(4):
                for i in range(2):
                    g.I(f"s_add_u32 m0, s{sSL}, {tt*SLOT+i*1024}")
                    g.I(f"s_add_u32 s82, s{sSRC}, {tt*16*SLOTG+i*1024}")
                    g.vmem(f"buffer_load_dwordx4 v7, {sWS}, s82 offen sc1 lds", cond=True)
        else:
            for hh in range(2):
                (exA if hh==0 else exB)()
                for tt in range(4):
                    for i in range(2):
                        g.I(f"s_add_u32 m0, s{sSL}, {tt*SLOT+2048+hh*2048+i*1024}")
                        g.I(f"s_add_u32 s82, s{sSRC}, {tt*16*SLOTG+2048+i*1024}")
                        g.vmem(f"buffer_load_dwordx4 v7, {sWS}, s82 offen sc1 lds", cond=True)
            g.I("s_mov_b64 exec, -1")
        g.I(f"s_mov_b32 s{sDONE if kind=='K' else sDV}, 1")
    def remote_poll(kind):
        g.I(f"s_load_dword s{8 if kind=='K' else 9}, s[64:65], s{sFK if kind=='K' else sFV} glc")
    def remote_check(kind):
        Lskip=g.newlab("RSK")
        g.I(f"s_cmp_eq_u32 s{sDONE if kind=='K' else sDV}, 1"); g.I(f"s_cbranch_scc1 {Lskip}")
        g.I(f"s_cmp_lg_u32 s{8 if kind=='K' else 9}, s{sTAG}"); g.I(f"s_cbranch_scc1 {Lskip}")
        remote_dma(kind)
        g.lab(Lskip)
    def remote_block(kind,err):
        Lskip=g.newlab("RSK")
        g.I(f"s_cmp_eq_u32 s{sDONE if kind=='K' else sDV}, 1"); g.I(f"s_cbranch_scc1 {Lskip}")
        spoll(g,sFK if kind=="K" else sFV,1,err,29)
        remote_dma(kind)
        g.lab(Lskip)
    def publish(kind):
        for tt in range(2):
            if kind=="K":
                b=PB_+8*tt
                for i in range(2): g.ds(f"ds_read_b128 v[{b+4*i}:{b+4*i+3}], v19 offset:{tt*SLOT+i*1024}",tag=f"pb{tt}")
            elif kind=="V":
                b=PB_+8*tt
                for hh in range(2):
                    (exA if hh==0 else exB)()
                    for i in range(2): g.ds(f"ds_read_b128 v[{b+4*i}:{b+4*i+3}], v19 offset:{tt*SLOT+2048+hh*2048+i*1024} ;merge",tag=f"pb{tt}")
                g.I("s_mov_b64 exec, -1")
            else:
                b=PB_+8*tt
                for i in range(2): g.ds(f"ds_read_b128 v[{b+4*i}:{b+4*i+3}], v21 offset:{tt*2048+i*1024}",tag=f"pb{tt}")
        for tt in range(2):
            g.wait_lg(f"pb{tt}")
            if kind=="K":
                g.I(f"s_add_u32 s82, s{sKVo}, {tt*16*SLOTG}")
                for i in range(2): g.vmem(f"buffer_store_dwordx4 v[{PB_+8*tt+4*i}:{PB_+8*tt+4*i+3}], v7, {sWS}, s82 offen offset:{i*1024} sc1",tag="kst")
            elif kind=="V":
                g.I(f"s_add_u32 s82, s{sKVo}, {tt*16*SLOTG+2048}")
                for i in range(2): g.vmem(f"buffer_store_dwordx4 v[{PB_+8*tt+4*i}:{PB_+8*tt+4*i+3}], v7, {sWS}, s82 offen offset:{i*1024} sc1",tag="vst")
            else:
                g.I(f"s_add_u32 s82, s{sAHo}, {tt*NSTEP*1024+2*kind*1024}")
                for i in range(2): g.vmem(f"buffer_store_dwordx4 v[{PB_+8*tt+4*i}:{PB_+8*tt+4*i+3}], v7, {sWS}, s82 offen offset:{i*1024} sc1",tag="hst")
    def touch(srd,nl,reg,vaddr=15,mul=None):
        g.I(f"s_mul_i32 s81, s2, {mul if mul else nl*128}")
        if nl>32: g.I(f"s_mov_b32 exec_hi, {hex((1<<(nl-32))-1)}")
        else: g.I(f"s_mov_b32 exec_hi, 0"); g.I(f"s_mov_b32 exec_lo, {hex((1<<nl)-1)}")
        g.vmem(f"buffer_load_dword v{reg}, v{vaddr}, {srd}, s81 offen ;pf")
        g.I("s_mov_b64 exec, -1")
    def by_pi(k,fn):
        Lq=g.newlab("PI"); g.I(f"s_cmp_eq_u32 s{sPI}, {k}"); g.I(f"s_cbranch_scc0 {Lq}")
        save=list(g.vm); fn(); g.vm=save; g.lab(Lq)
    for it in range(8):
        bar([],it)
        if it==0: g.ts(1)
        kv_stats(it)
        if it==OPT.get('pf0it',4) and OPT["pf0"]:
            by_pi(0,lambda: touch(sW1,43,244))
            def wq():
                g.I("v_lshrrev_b32 v22, 3, v0"); g.I("v_mul_u32_u24 v22, 3072, v22"); g.I("v_and_b32 v23, 7, v0"); g.I("v_lshl_add_u32 v22, v23, 7, v22")
                touch(sWQ,16,245,vaddr=22,mul=2*3072)
            by_pi(1,wq)
        if it==OPT.get('pf1it',6) and OPT["pf1"]:
            by_pi(0,lambda: touch(sW2,43,246)); by_pi(1,lambda: touch(sWO,16,247))
        kv_stats2(it)
    KN,VN,H0N=OPT["kn"],OPT["vn"],OPT["h0n"]
    for n in range(8):
        tags=[]
        if n==KN+OPT["fd"]: tags.append("kst")
        if n==VN+OPT["fd"]: tags.append("vst")
        bar(tags,8+n)
        if n==0: g.ts(2)
        if n==KN+OPT["fd"]: by_pi(0,lambda: flag_store1(g,FKV,16,17))
        if n==VN+OPT["fd"]: by_pi(0,lambda: flag_store1(g,FVV,16,17))
        if n>KN+OPT["fd"]: remote_poll("K")
        if n>VN+OPT["fd"]: remote_poll("V")
        ht_reads(n)
        ht_cs(n)
        if n>KN+OPT["fd"]: remote_check("K")
        if n>VN+OPT["fd"]: remote_check("V")
        if n==7: break
        if n==KN: publish("K")
        if n==VN: publish("V")
        if n==KN:
            def pub_r():
                Lr=g.newlab("NOR")
                g.I(f"s_cmp_eq_u32 s{sCS}, 0"); g.I(f"s_cbranch_scc0 {Lr}")
                g.I("v_lshlrev_b32 v22, 3, v0"); g.I(f"v_add_u32 v23, {RL}, v22")
                g.I("ds_read_b64 v[40:41], v23"); g.I("s_waitcnt lgkmcnt(0)")
                g.I(f"s_lshl_b32 s82, s{sRB}, 9"); g.I(f"s_add_u32 s82, s82, {STR}")
                g.vmem(f"buffer_store_dwordx2 v[40:41], v22, {sWS}, s82 offen sc1")
                g.lab(Lr)
            by_pi(0,pub_r); g.lg=[]
        if n==H0N:
            g.I(f"v_add_u32 v21, {HST[0]}, v20"); publish(0)
        if n==0:
            for r_ in range(24,28): g.I(f"v_mov_b32 v{r_}, 0x3f803f80")
            for hh in range(2):
                (exB if hh==0 else exA)()
                for tt in range(2):
                    for i in range(2): g.ds(f"ds_write_b128 v19, v[24:27] offset:{tt*SLOT+2048+hh*2048+i*1024}")
            g.I("s_mov_b64 exec, -1")
        if n in (1,3):
            tts=(0,1) if n==1 else (2,3)
            Lnz=g.newlab("NOZF"); Lnz2=g.newlab("NOZG")
            g.I(f"v_add_u32 v8, s{sSL}, v7")
            g.I(f"s_cmp_eq_u32 s{need}, 1"); g.I(f"s_cbranch_scc1 {Lnz}")
            for r_ in range(28,32): g.I(f"v_mov_b32 v{r_}, 0")
            for tt in tts:
                for i in range(6): g.ds(f"ds_write_b128 v8, v[28:31] offset:{tt*SLOT+i*1024}",cond=True)
            g.I(f"s_branch {Lnz2}")
            g.lab(Lnz)
            for hh in range(2):
                (exB if hh==0 else exA)()
                for tt in tts:
                    for i in range(2): g.ds(f"ds_write_b128 v8, v[24:27] offset:{tt*SLOT+2048+hh*2048+i*1024}",cond=True)
            g.I("s_mov_b64 exec, -1")
            g.lab(Lnz2)
    g.lg0()
    g.wait_vm("hst")
    g.I("s_barrier")
    by_pi(0,lambda: flag_store16(g,FH,16,17))
    g.I(f"v_add_u32 v21, {HST[1]}, v20"); publish(1)
    g.ts(9)
    g.lg0()
    g.I("s_barrier")
    remote_block("K",0x102)
    g.vm0(" lgkmcnt(0)")
    g.I(f"v_mov_b32 v8, {CNT+12}"); g.I("v_mov_b32 v9, 1")
    g.I("s_mov_b64 exec, 1"); g.I("ds_add_u32 v8, v9"); g.I("s_mov_b64 exec, -1")
    g.ts(10)
    g.lab("L_ATT"); g.vm=[]; g.lg=[]
    pub_remote_block=remote_block
    g.I(f"v_mov_b32 v8, {CNT+12}")
    Lk=g.newlab("KSP"); Dk=g.newlab("KSD")
    g.I(f"s_mov_b32 s{sSPIN}, {OPT['spin']}")
    g.lab(Lk)
    g.I("ds_read_b32 v9, v8"); g.I("s_waitcnt lgkmcnt(0)")
    g.I("v_cmp_ne_u32 vcc, 2, v9"); g.I("s_nop 0"); g.I(f"s_cbranch_vccz {Dk}")
    g.I(f"s_sub_u32 s{sSPIN}, s{sSPIN}, 1"); g.I(f"s_cbranch_scc0 {Lk}")
    g.lab(Dk)
    Lf=g.newlab("NOFH")
    g.I(f"s_cmp_eq_u32 s{sHW}, 2"); g.I(f"s_cbranch_scc0 {Lf}")
    flag_store16(g,FH+0x8000,16,17)
    g.lab(Lf)
    g.ts(3)
    if OPT["prio"]: g.I("s_setprio 3")
    QF=16
    g.I(f"s_lshl_b32 s81, s{sHW}, 11"); g.I(f"s_add_u32 s81, s81, {QL}")
    g.I("v_add_u32 v10, s81, v7")
    g.ds(f"ds_read_b128 v[{QF}:{QF+3}], v10", tag="q"); g.ds(f"ds_read_b128 v[{QF+4}:{QF+7}], v10 offset:1024", tag="q")
    g.I(f"s_mul_i32 s81, s{sHW}, {SLOT}")
    g.I("v_add_u32 v11, s81, v7")
    Lgen=g.newlab("ATG"); Lfin=g.newlab("ATF")
    g.I(f"s_cmp_eq_u32 s{sTM}, 0"); g.I(f"s_cbranch_scc0 {Lgen}")
    def vsync():
        Lnp=g.newlab("NPUB")
        g.I(f"v_mov_b32 v8, {CNT+8}")
        g.I(f"s_cmp_ge_u32 s{sHW}, 2"); g.I(f"s_cbranch_scc0 {Lnp}")
        pub_remote_block("V",0x105)
        g.I("s_waitcnt vmcnt(0)"); g.vm=[]
        g.I("v_mov_b32 v9, 1")
        g.I("s_mov_b64 exec, 1"); g.I("ds_add_u32 v8, v9"); g.I("s_mov_b64 exec, -1")
        g.lab(Lnp)
        L=g.newlab("LSP"); D=g.newlab("LSD")
        g.I(f"s_mov_b32 s{sSPIN}, {OPT['spin']}")
        g.lab(L)
        g.I("ds_read_b32 v9, v8"); g.I("s_waitcnt lgkmcnt(0)"); g.lg=[]
        g.I("v_cmp_ne_u32 vcc, 2, v9"); g.I("s_nop 0"); g.I(f"s_cbranch_vccz {D}")
        g.I(f"s_sub_u32 s{sSPIN}, s{sSPIN}, 1"); g.I(f"s_cbranch_scc0 {L}")
        g.lab(D)
    lg=list(g.lg); vm=list(g.vm)
    OA=attention(g,False,QF,BD,BO,sTM,vsync)
    g.I(f"s_branch {Lfin}")
    g.lab(Lgen); g.lg=lg; g.vm=vm
    attention(g,True,QF,BD,BO,sTM,vsync)
    g.lab(Lfin)
    g.nop(12)
    g.lta_dump()
    g.ts(5)
    g.I(f"v_rcp_f32 v72, v{OA[0]+8}"); g.I(f"v_rcp_f32 v73, v{OA[1]}"); g.I("s_nop 0")
    for e in range(8):
        g.I(f"v_mul_f32 v{OA[0]+e}, v{OA[0]+e}, v72"); g.I(f"v_mul_f32 v{OA[1]+8+e}, v{OA[1]+8+e}, v73")
    for e in range(4):
        g.I(f"v_cvt_pk_bf16_f32 v{76+e}, v{OA[0]+2*e}, v{OA[0]+2*e+1}")
        g.I(f"v_cvt_pk_bf16_f32 v{80+e}, v{OA[1]+8+2*e}, v{OA[1]+8+2*e+1}")
    g.I(f"s_lshl_b32 s81, s{sRB}, 2"); g.I(f"s_add_u32 s81, s81, s{sHW}"); g.I(f"s_mul_i32 s81, s81, {NSTEP}")
    g.I(f"s_lshl_b32 s82, s{sCS}, 1"); g.I("s_add_u32 s81, s81, s82"); g.I("s_add_u32 s81, s81, 86")
    g.I("s_lshl_b32 s81, s81, 10"); g.I(f"s_add_u32 s81, s81, {AH}")
    g.vmem(f"buffer_store_dwordx4 v[76:79], v7, {sWS}, s81 offen sc1")
    g.vmem(f"buffer_store_dwordx4 v[80:83], v7, {sWS}, s81 offen offset:1024 sc1")
    g.vm0()
    g.I(f"v_mov_b32 v8, {CNT+4}"); g.I("v_mov_b32 v9, 1")
    g.I("s_mov_b64 exec, 1")
    g.I("ds_add_rtn_u32 v10, v8, v9"); g.I("s_waitcnt lgkmcnt(0)")
    g.I("v_readfirstlane_b32 s81, v10"); g.I("s_mov_b64 exec, -1")
    Lno=g.newlab("NOFO")
    g.I("s_cmp_eq_u32 s81, 3"); g.I(f"s_cbranch_scc0 {Lno}")
    flag_store16(g,FO,3,4)
    g.lab(Lno)
    g.ts(6)
    g.I(f"s_or_b32 s81, s2, s{sHW}")
    g.I("s_cmp_eq_u32 s81, 0"); g.I("s_cbranch_scc0 L_END")
    g.I("v_lshrrev_b32 v3, 2, v0"); g.I("v_lshlrev_b32 v3, 11, v3"); g.I("v_and_b32 v4, 3, v0"); g.I("v_lshl_add_u32 v3, v4, 4, v3")
    g.I(f"v_add_u32 v3, {FH}, v3")
    Ln=g.newlab("NB"); Dn=g.newlab("NBD")
    g.I(f"s_mov_b32 s{sSPIN}, {OPT['spin']}")
    g.lab(Ln)
    g.vmem(f"buffer_load_dwordx4 v[12:15], v3, {sWS}, 0 offen sc1")
    g.I("s_waitcnt vmcnt(0)")
    for k in range(4): g.I(f"v_xor_b32 v{12+k}, s{sTAG}, v{12+k}")
    g.I("v_or_b32 v12, v12, v13"); g.I("v_or_b32 v14, v14, v15"); g.I("v_or_b32 v12, v12, v14")
    g.I("v_cmp_ne_u32 vcc, 0, v12"); g.I("s_nop 0"); g.I(f"s_cbranch_vccz {Dn}")
    g.I(f"s_sub_u32 s{sSPIN}, s{sSPIN}, 1"); g.I(f"s_cbranch_scc0 {Ln}")
    g.lab(Dn)
    g.I("v_mov_b32 v3, 0"); g.I(f"v_mov_b32 v5, s{sTAG}")
    g.I("s_mov_b64 exec, 1")
    g.vmem(f"buffer_store_dword v5, v3, {sWS}, 0 offen sc1")
    g.I("s_waitcnt vmcnt(0)")
    g.I("s_branch L_END")

def gwave(g):
    g.lab("L_GWAVE")
    XF=128
    ACC=[64,80,96,112]
    vXa=8; vWkv=12; vWt=13; vL16=7; vSL=51
    g.I("s_load_dwordx2 s[52:53], s[0:1], 40"); g.I("s_load_dwordx2 s[56:57], s[0:1], 16")
    g.I("s_load_dwordx2 s[60:61], s[0:1], 48"); g.I("s_load_dwordx2 s[68:69], s[0:1], 56")
    g.I("v_lshlrev_b32 v7, 4, v0")
    for base,size in ((52,1409024),(56,524288),(60,2097152)):
        g.I(f"s_mov_b32 s{base+2}, {size}"); g.I(f"s_mov_b32 s{base+3}, 0x20000")
    g.I("v_and_b32 v2, 31, v0")
    g.I("v_lshrrev_b32 v3, 3, v2"); g.I("v_lshlrev_b32 v3, 10, v3"); g.I("v_and_b32 v4, 7, v2"); g.I("v_lshl_add_u32 v3, v4, 7, v3")
    g.I("v_bfe_u32 v4, v0, 1, 3"); g.I("v_lshrrev_b32 v5, 5, v0"); g.I("v_xor_b32 v4, v4, v5"); g.I("v_lshl_add_u32 v3, v4, 4, v3")
    g.I(f"s_lshl_b32 s72, s{sW}, 12"); g.I(f"v_add_u32 v{vXa}, s72, v3")
    for t in range(1,4): g.I(f"v_xor_b32 v{vXa+t}, {t<<5}, v{vXa}")
    g.I("v_lshrrev_b32 v3, 5, v0"); g.I("v_lshlrev_b32 v3, 3, v3"); g.I("v_bfe_u32 v4, v0, 2, 2"); g.I("v_add_u32 v3, v3, v4")
    g.I("v_lshlrev_b32 v3, 6, v3"); g.I("v_bfe_u32 v4, v0, 4, 1"); g.I("v_lshl_add_u32 v3, v4, 5, v3")
    g.I("v_and_b32 v4, 3, v0"); g.I("v_lshl_add_u32 v3, v4, 3, v3")
    g.I(f"v_add_u32 v{vWkv}, 16384, v3"); g.I(f"v_add_u32 v{vWt}, {R2}, v3")
    g.I(f"v_lshlrev_b32 v{vSL}, 4, v2"); g.I(f"v_add_u32 v{vSL}, {SL}, v{vSL}")
    g.I("v_lshrrev_b32 v6, 5, v0"); g.I("v_add_u32 v6, -1, v6")
    g.I(f"s_add_u32 s73, s{sW}, 8"); g.I(f"s_mul_i32 s73, s73, {SLOT}"); g.I("v_add_u32 v14, s73, v7")
    g.I(f"s_lshl_b32 s72, s{sW}, 7"); g.I("v_lshlrev_b32 v4, 2, v2"); g.I("v_add_u32 v4, s72, v4"); g.I(f"v_add_u32 v4, {NM}, v4")
    g.I("v_lshrrev_b32 v3, 5, v0"); g.I("v_lshlrev_b32 v3, 4, v3"); g.I(f"s_add_u32 s72, s72, {RL}"); g.I("v_add_u32 v3, s72, v3")
    g.I(f"s_lshl_b32 s76, s{sW}, 11"); g.I(f"s_add_u32 s76, s76, {HST[0]}"); g.I("v_add_u32 v15, s76, v7")
    g.I(f"s_and_b32 s72, s{sIDX}, 3")
    g.I(f"s_lshl_b32 s{sA3}, s{sJ}, 3"); g.I("s_lshl_b32 s73, s72, 1"); g.I(f"s_add_u32 s{sA3}, s{sA3}, s73")
    g.I(f"s_lshr_b32 s{sCT}, s{sIDX}, 2"); g.I(f"s_lshr_b32 s{sRB3}, s{sA3}, 2")
    g.I("s_waitcnt lgkmcnt(0)")
    g.I("v_mov_b32 v5, 0")
    g.vmem(f"buffer_load_dword v28, v5, {sWS}, 0 offen sc1", tag="nonce")
    sKVo=74; sAHo=93
    g.I(f"s_lshl_b32 s72, s{sRB}, 2"); g.I(f"s_add_u32 s72, s72, s{sW}")
    g.I(f"s_lshl_b32 s{sKVo}, s72, 4"); g.I(f"s_add_u32 s{sKVo}, s{sKVo}, s{sCS}"); g.I(f"s_mul_i32 s{sKVo}, s{sKVo}, {SLOT}"); g.I(f"s_add_u32 s{sKVo}, s{sKVo}, {KV}")
    g.I(f"s_mul_i32 s{sAHo}, s72, {NSTEP}"); g.I(f"s_lshl_b32 s73, s{sU32}, 1"); g.I(f"s_add_u32 s{sAHo}, s{sAHo}, s73"); g.I(f"s_lshl_b32 s{sAHo}, s{sAHo}, 10"); g.I(f"s_add_u32 s{sAHo}, s{sAHo}, {AH}")
    g.wait_vm("cpf","nonce")
    g.I(f"v_readfirstlane_b32 s{sTAG}, v28"); g.I("s_nop 1")
    g.I(f"s_add_u32 s{sTAG}, s{sTAG}, {TAGC}"); g.I(f"s_mov_b32 s24, s{sTAG}"); g.I(f"s_mov_b32 s25, s{sTAG}")
    g.ts(0)
    steps=[]
    WKV=[16,24,32,40]
    for it in range(8):
        st=KVB(it); off0 = st if st<R2 else st-R2
        for t in range(4):
            n=it*4+t; wb=WKV[n%4]; xf=XF+4*n
            rd=[(f"ds_read_b128 v[{xf}:{xf+3}], v{vXa+t} offset:{off0}")]
            for u in range(2):
                off=off0+u*4096+t*1024
                rd.append(f"ds_read_b64_tr_b16 v[{wb+4*u}:{wb+4*u+1}], v{vWkv} offset:{off}")
                rd.append(f"ds_read_b64_tr_b16 v[{wb+4*u+2}:{wb+4*u+3}], v{vWkv} offset:{off+256}")
            X=f"v[{xf}:{xf+3}]"; a0=ACC[0]; a1=ACC[1]
            mf=[f"v_mfma_f32_32x32x16_bf16 v[{a0}:{a0+15}], v[{wb}:{wb+3}], {X}, {'0' if n==0 else f'v[{a0}:{a0+15}]'}",
                f"v_mfma_f32_32x32x16_bf16 v[{a1}:{a1+15}], {X}, v[{wb+4}:{wb+7}], {'0' if n==0 else f'v[{a1}:{a1+15}]'}"]
            GR=112
            post=[f"v_mfma_f32_32x32x16_bf16 v[{GR}:{GR+15}], {X}, {X}, {'0' if n==0 else f'v[{GR}:{GR+15}]'}"]
            pre_rd=[]
            if t==0 and it==3:
                pre_rd=[f"v_add_u32 v{vXa+k}, {R2}, v{vXa+k}" for k in range(4)]+[f"v_add_u32 v{vWkv}, {R2}, v{vWkv}"]
            if t==0 and it==5:
                pre_rd=[f"v_subrev_u32 v{vXa+k}, {R2}, v{vXa+k}" for k in range(4)]+[f"v_subrev_u32 v{vWkv}, {R2}, v{vWkv}"]
            steps.append(dict(rd=rd,mf=mf,post=post,pre_rd=pre_rd,bar=(t==0),lag=3,hold=0,idx=it))
    WT=[32,36,40,16,20,24,28]
    tacc=[ACC[2],ACC[3],ACC[0],ACC[1]]
    cnt=0
    for P in range(2):
        for n4 in range(4):
            for kk in range(2):
                for t in range(4):
                    for y in range(2):
                        T=2*P+y; sx=(2*n4+kk)*4+t
                        wb=WT[cnt%7]; off=n4*16384+(kk*2+y)*4096+t*1024
                        rd=[f"ds_read_b64_tr_b16 v[{wb}:{wb+1}], v{vWt} offset:{off}", f"ds_read_b64_tr_b16 v[{wb+2}:{wb+3}], v{vWt} offset:{off+256}"]
                        a=tacc[T]; xf=XF+4*sx
                        mf=[f"v_mfma_f32_32x32x16_bf16 v[{a}:{a+15}], v[{wb}:{wb+3}], v[{xf}:{xf+3}], {'0' if sx==0 else f'v[{a}:{a+15}]'}"]
                        j=cnt%64
                        steps.append(dict(rd=rd,mf=mf,post=[],pre_rd=[],bar=(cnt%16==0),lag=OPT.get('lag',6),hold=OPT.get('hold',0),idx=8+cnt//16,T=P,s=j))
                        cnt+=1
    CX=44; RI=48; SJ4=52; CW=56
    fill={}
    def I(t): return lambda: g.I(t)
    def DS(t,tag=None): return lambda: g.ds(t,tag)
    def VM(t,tag=None,cond=False): return (lambda: g.vmem(t,tag,cond)) if not OPT.get("nogst") else None
    def WL(*tg): return lambda: g.wait_lg(*tg)
    SKIP=None
    GAP=OPT.get("gap",18)
    def sj_read(tile,reg): return [DS(f"ds_read_b128 v[{reg}:{reg+3}], v{vSL} offset:{tile*512}",f"sj{tile}")]
    def corr_prep(tile,reg=None):
        s_=reg if reg is not None else SJ4; w=CW
        return [WL(f"sj{tile}"), I(f"v_add_f32 v{s_}, v{s_}, v{s_+1}"), I(f"v_add_f32 v{s_+2}, v{s_+2}, v{s_+3}"), I(f"v_add_f32 v{s_}, v{s_}, v{s_+2}"),
                I(f"v_and_b32 v{s_}, v6, v{s_}"), I(f"v_cvt_pk_bf16_f32 v60, v{s_}, v{s_}"), I("v_and_b32 v61, 0xffff0000, v60"),
                I(f"v_sub_f32 v62, v{s_}, v61"), I("v_cvt_pk_bf16_f32 v63, v62, v62"), I("v_and_b32 v63, 0xffff0000, v63"),
                I("v_sub_f32 v62, v62, v63"), I(f"v_cvt_pk_bf16_f32 v{w}, v61, v63"), I(f"v_cvt_pk_bf16_f32 v{w+1}, v62, 0"), I("s_nop 1")]
    def corr_mfma(a,normal):
        W=f"v[{CW}:{CW+3}]"; X=f"v[{CX}:{CX+3}]"
        return [I(f"v_mfma_f32_32x32x16_bf16 v[{a}:{a+15}], {X if normal else W}, {W if normal else X}, v[{a}:{a+15}]")]
    GR=112
    a1,a2=49,50
    diag=[]
    for lvl,bit in enumerate((0,1,3,4)): diag.append(f"v_bfe_i32 v{60+lvl}, v0, {bit}, 1")
    diag+=["v_bfe_u32 v52, v0, 2, 1","v_lshrrev_b32 v53, 5, v0","v_xor_b32 v52, v52, v53","v_add_u32 v52, -1, v52","s_nop 4"]
    n=16
    for lvl in range(4):
        n//=2
        for k in range(n): diag.append(f"v_bfi_b32 v{GR+k}, v{60+lvl}, v{GR+2*k+1}, v{GR+2*k}")
    diag+=[f"v_and_b32 v{a2}, v52, v{GR}", f"v_mov_b32 v61, v{a2}", f"v_mov_b32 v{CX+2}, 0", f"v_mov_b32 v{CX+3}, 0",
           f"v_permlane32_swap_b32 v{a2}, v61", f"v_mov_b32 v{CW+2}, 0", f"v_add_f32 v{a2}, v{a2}, v61", f"v_mov_b32 v{CW+3}, 0"]
    stf0=[DS(f"ds_read_b32 v{a1}, v4","st")]+sj_read(0,SJ4)
    stf=[SKIP]*3
    aK=ACC[0]; aV=ACC[1]
    RVR=aK+8
    st2=[WL("st"),
          I(f"v_mul_f32 v{a1}, 0x3b000000, v{a1}"), I(f"v_mul_f32 v{a2}, 0x3b000000, v{a2}"),
          I(f"v_fma_f32 v{a2}, -v{a1}, v{a1}, v{a2}"), I(f"v_cvt_pk_bf16_f32 v{CX}, -v{a1}, -v{a1}"), I(f"v_max_f32 v{a2}, 0, v{a2}"),
          I(f"v_mov_b32 v{CX+1}, v{CX}"), I(f"v_cvt_pk_bf16_f32 v{a2}, v{a2}, v{a2}"),
          I(f"v_and_b32 v{a2}, 0xffff0000, v{a2}"),
          I(f"v_add_f32 v{a2}, 0x3727c5ac, v{a2}"), I(f"v_cvt_pk_bf16_f32 v{a2}, v{a2}, v{a2}"), I(f"v_and_b32 v{a2}, 0xffff0000, v{a2}"),
          I(f"v_sqrt_f32 v{a2}, v{a2}"), I("s_nop 0"), I(f"v_cvt_pk_bf16_f32 v{a2}, v{a2}, v{a2}"), I(f"v_and_b32 v{a2}, 0xffff0000, v{a2}"),
          I(f"v_rcp_f32 v{RI}, v{a2}"), I("s_nop 0"),
          DS(f"ds_write_b32 v4, v{RI} offset:{RL-NM}","rlw")]
    def rvload(q0,tag): return [DS(f"ds_read_b128 v[{RVR+4*q}:{RVR+4*q+3}], v3 offset:{(q0+q)*32}",tag) for q in range(2)]
    kmul=[I(f"v_mul_f32 v{aK+r}, v{aK+r}, v{RI}") for r in range(16)]
    kcvt=[I(f"v_cvt_pk_bf16_f32 v{aK+e}, v{aK+2*e}, v{aK+2*e+1}") for e in range(8)]
    kst=[]
    for hh in range(2):
        kst.append(DS(f"ds_write_b128 v14, v[{aK+4*hh}:{aK+4*hh+3}] offset:{hh*1024}","kw"))
    vmulA=[WL("rv0")]+[I(f"v_mul_f32 v{aV+r}, v{aV+r}, v{RVR+r}") for r in range(8)]
    vmulB=[WL("rv1")]+[I(f"v_mul_f32 v{aV+8+r}, v{aV+8+r}, v{RVR+r}") for r in range(8)]
    vcvtA=[I(f"v_cvt_pk_bf16_f32 v{aV+e}, v{aV+2*e}, v{aV+2*e+1}") for e in range(4)]
    vcvtB=[I(f"v_cvt_pk_bf16_f32 v{aV+e}, v{aV+2*e}, v{aV+2*e+1}") for e in range(4,8)]
    vst=[I("s_mov_b32 exec_lo, 0x0000ffff"), I("s_mov_b32 exec_hi, 0x0000ffff")]
    for half in range(2): vst.append(DS(f"ds_write_b128 v14, v[{aV+4*half}:{aV+4*half+3}] offset:{2048+half*1024}","vw"))
    vst+=[I("s_mov_b32 exec_lo, 0xffff0000"), I("s_mov_b32 exec_hi, 0xffff0000")]
    for half in range(2): vst.append(DS(f"ds_write_b128 v14, v[{aV+4*half}:{aV+4*half+3}] offset:{4096+half*1024}","vw"))
    vst.append(I("s_mov_b64 exec, -1"))
    def atomic(L):
        def f():
            for x in L:
                if x is not None: x()
        return [f]
    fill[0]=(stf+st2+corr_prep(0)+corr_mfma(aK,False)+sj_read(1,SJ4)+[SKIP]*12+kmul+kcvt+rvload(0,"rv0")+kst
             +corr_prep(1)+corr_mfma(aV,True)+[SKIP]*12+vmulA+rvload(2,"rv1")+vcvtA+[SKIP]*10+vmulB+vcvtB+atomic(vst))
    def hep(T):
        a=tacc[T]
        L=sj_read(2+T,SJ4)+[SKIP]*GAP+corr_prep(2+T)+corr_mfma(a,False)+[SKIP]*13
        L+=[I(f"v_max_f32 v{a+r}, 0, v{a+r}") for r in range(16)]
        L+=[I(f"v_cvt_pk_bf16_f32 v{a+e}, v{a+2*e}, v{a+2*e+1}") for e in range(8)]
        if T<2:
            for half in range(2):
                L.append(DS(f"ds_write_b128 v15, v[{a+4*half}:{a+4*half+3}] offset:{(HST[T]-HST[0])+half*1024}",f"hw{T}"))
        else:
            def cond_store():
                Ls=g.newlab("NOT2")
                g.I(f"s_cmp_eq_u32 s{sNT}, 3"); g.I(f"s_cbranch_scc0 {Ls}")
                g.I(f"s_add_u32 s96, s{sAHo}, 4096")
                for half in range(2):
                    g.vmem(f"buffer_store_dwordx4 v[{a+4*half}:{a+4*half+3}], v7, {sWS}, s96 offen offset:{half*1024} sc1",tag="hst2",cond=True)
                g.lab(Ls)
            L.append(cond_store)
        return L
    fill[1]=hep(0)+hep(1)
    N=len(steps); rd=0; ex=0; passed=set(); fq=[]
    rq=[]
    defer=[False]
    def issue(n):
        for r_ in steps[n]["pre_rd"]: g.I(r_)
        for r_ in steps[n]["rd"]:
            if defer[0]: rq.append((r_,f"s{n}"))
            else: g.ds(r_,tag=f"s{n}")
    def flush_rq(k=99):
        while rq and k>0:
            r_,t_=rq.pop(0); g.ds(r_,tag=t_); k-=1
    def try_issue():
        nonlocal rd
        budget=2
        while rd<N and rd-ex<steps[rd]["lag"] and budget>0:
            if steps[rd]["bar"] and rd not in passed:
                if rd-ex<=(0 if rd==32 else steps[rd]["lag"]-steps[rd]["hold"]):
                    idx=steps[rd]["idx"]
                    if rd==32:
                        for t_ in diag: g.I(t_)
                        g.lg0()
                    if idx==8+OPT["kn"]: g.wait_lg_must("kw")
                    if idx==8+OPT["vn"]: g.wait_lg_must("vw")
                    if idx==8+OPT["h0n"]: g.wait_lg_must("hw0")
                    g.ts(idx,2)
                    if idx>=8: g.ts(idx-8,3)
                    if idx>=8: g.lts(idx-8)
                    g.I("s_barrier"); passed.add(rd)
                    if idx>=8: g.lts(idx)
                    if idx>=8: g.ts(idx,3)
                    if idx==8:
                        for f_ in stf0: f_()
                    if idx==8: g.ts(2)
                    if idx==0: g.ts(1)
                else: break
            issue(rd); rd+=1; budget-=1
    while ex<N:
        st=steps[ex]
        if rd<=ex: try_issue()
        if "T" in st and st["s"]==0: fq+=fill[st["T"]]
        if "T" in st and st["T"]==1 and st["s"]==OPT.get("h7b",56):
            g.wait_lg_must("hw1")
            g.I("s_barrier")
            fq[:0]=sj_read(5,SJ4)+[SKIP]*9+corr_prep(5)
        g.wait_lg(f"s{ex}")
        if OPT["ts"]==6 and ex>=32+OPT.get("st0",0) and (ex-32-OPT.get("st0",0))%OPT.get("sts",4)==0 and (ex-32-OPT.get("st0",0))//OPT.get("sts",4)<16:
            i_=(ex-32-OPT.get("st0",0))//OPT.get("sts",4)
            g.I(f"s_memtime s[{g.LP[i_]}:{g.LP[i_]+1}]")
        if "T" not in st and ex+1<32 and not (rd<N and steps[rd]["bar"] and rd not in passed):
            ex+=1; defer[0]=True; try_issue(); defer[0]=False; ex-=1
            ms=st["mf"]+st["post"]
            for m in ms:
                g.I(m); flush_rq(2)
            flush_rq()
            ex+=1
            continue
        for m in st["mf"]: g.I(m)
        for m in st["post"]: g.I(m)
        ex+=1
        try_issue()
        if "T" in st:
            rem=N-ex+1
            k=OPT["nfill0"] if st["T"]==0 else OPT["nfill1"]
            if OPT.get("nofill"): k=0
            while k>0 and fq:
                f=fq.pop(0)
                if f is not None: f()
                k-=1
    for f in fq:
        if f is not None: f()
        else: g.I("s_nop 0")
    aQ=tacc[3]
    for f in corr_mfma(aQ,False):
        if f is not None: f()
    g.I("v_mov_b32 v60, 0x3eb8aa3b"); g.I(f"v_mul_f32 v60, v{RI}, v60")
    g.I(f"s_lshl_b32 s72, s{sW}, 11"); g.I(f"s_add_u32 s72, s72, {QL}"); g.I("v_add_u32 v5, s72, v7")
    g.nop(9)
    for r in range(16): g.I(f"v_mul_f32 v{aQ+r}, v{aQ+r}, v60")
    for e in range(8): g.I(f"v_cvt_pk_bf16_f32 v{aQ+e}, v{aQ+2*e}, v{aQ+2*e+1}")
    for hh in range(2): g.ds(f"ds_write_b128 v5, v[{aQ+4*hh}:{aQ+4*hh+3}] offset:{hh*1024}")
    g.lg0()
    g.ts(9)
    g.I("s_barrier")
    g.lts_dump()
    g.ts(3)
    PF=OPT["pf3"]; NS=8
    AHR=128; WSR=[16,24]; PA=64; vWd=8; vWr=[9,10]
    g.I("v_lshrrev_b32 v3, 3, v0"); g.I("v_lshlrev_b32 v3, 10, v3")
    g.I("v_and_b32 v4, 7, v0"); g.I("v_bfe_u32 v5, v0, 4, 1"); g.I("v_lshlrev_b32 v5, 2, v5"); g.I("v_xor_b32 v4, v4, v5")
    g.I("v_lshl_add_u32 v3, v4, 4, v3")
    g.I(f"s_lshl_b32 s72, s{sCT}, 7"); g.I(f"v_add_u32 v{vWd}, s72, v3")
    sRG=73
    g.I(f"s_lshl_b32 s{sRG}, s{sW}, 14"); g.I(f"s_add_u32 s{sRG}, s{sRG}, {RING}")
    sA=[74,75,76]
    sWb=[77,78,79]
    sT=80; sFH=81
    g.I(f"s_lshr_b32 s82, s{sW}, 1"); g.I(f"s_and_b32 s83, s{sW}, 1")
    g.I("s_mul_i32 s84, s82, 6"); g.I("s_add_u32 s84, s84, s83")
    g.I("s_lshl_b32 s85, s82, 2"); g.I("s_add_u32 s85, s85, s83")
    g.I(f"s_mul_i32 s86, s{sA3}, {NSTEP}")
    for k,src in ((0,84),(1,85)):
        g.I(f"s_add_u32 s{sA[k]}, s86, s{src}"); g.I(f"s_lshl_b32 s{sA[k]}, s{sA[k]}, 10"); g.I(f"s_add_u32 s{sA[k]}, s{sA[k]}, {AH}")
        g.I(f"s_lshl_b32 s{sWb[k]}, s{src}, 14")
    g.I(f"s_add_u32 s{sA[2]}, s86, s{sW}"); g.I(f"s_add_u32 s{sA[2]}, s{sA[2]}, 86"); g.I(f"s_lshl_b32 s{sA[2]}, s{sA[2]}, 10"); g.I(f"s_add_u32 s{sA[2]}, s{sA[2]}, {AH}")
    g.I(f"s_lshl_b32 s{sWb[2]}, s{sW}, 14")
    NH=22; NO=8; NT=NH+NO
    def stepinfo(i):
        if i>=NH: return (2, 4*(i-NH), None)
        c = 0 if i<8 else (1 if i<16 else 2); ii = i-8*c
        if ii<=5: return (0, 2*(6*ii+c), c)
        return (1, 2*(11+4*ii+c), c)
    def w_issue1(i,k):
        kind,ks,c=stepinfo(i); srd=sW2 if kind<2 else sWO
        g.I(f"s_add_u32 m0, s{sRG}, {(i%NS)*2048+k*1024}")
        g.I(f"s_add_u32 s{sT}, s{sWb[kind]}, {ks*16384+k*8192}")
        g.vmem(f"buffer_load_dwordx4 v{vWd}, {srd}, s{sT} offen lds", tag=f"w{i}")
    def a_issue1(i,k):
        kind,ks,c=stepinfo(i); b=AHR+(i%8)*8+4*k
        g.I(f"s_add_u32 s{sT}, s{sA[kind]}, {ks*1024+k*NSTEP*1024}")
        g.vmem(f"buffer_load_dwordx4 v[{b}:{b+3}], v{vL16}, {sWS}, s{sT} offen sc1", tag=f"a{i}")
    def w_issue(i): w_issue1(i,0); w_issue1(i,1)
    def a_issue(i): a_issue1(i,0); a_issue1(i,1)
    for i in range(PF): w_issue(i)
    g.I(f"s_lshl_b32 s{sFH}, s{sRB3}, 4"); g.I(f"s_lshl_b32 s89, s{sCT}, 1"); g.I(f"s_add_u32 s{sFH}, s{sFH}, s89"); g.I(f"s_and_b32 s89, s{sIDX}, 1"); g.I(f"s_add_u32 s{sFH}, s{sFH}, s89")
    g.I(f"s_lshl_b32 s{sFH}, s{sFH}, 7"); g.I(f"s_add_u32 s94, s{sFH}, {FO}"); g.I(f"s_add_u32 s{sFH}, s{sFH}, {FH}")
    spoll_issue(g,sFH,16)
    XR=192
    g.I(f"s_lshl_b32 s87, s{sW}, 3"); g.I("v_lshrrev_b32 v3, 3, v0"); g.I("v_add_u32 v3, s87, v3")
    g.I("v_lshlrev_b32 v3, 10, v3"); g.I("v_and_b32 v4, 7, v0"); g.I("v_lshl_add_u32 v11, v4, 4, v3")
    g.I(f"s_lshl_b32 s87, s{sA3}, 15"); g.I(f"s_lshl_b32 s88, s{sCT}, 7"); g.I("s_add_u32 s87, s87, s88"); g.I("s_add_u32 s88, s87, 32768")
    g.vmem(f"buffer_load_dwordx4 v[{XR}:{XR+3}], v11, {sX}, s87 offen", tag="xr")
    g.vmem(f"buffer_load_dwordx4 v[{XR+4}:{XR+7}], v11, {sX}, s88 offen", tag="xr")
    g.I("v_lshrrev_b32 v3, 5, v0"); g.I("v_lshlrev_b32 v3, 2, v3"); g.I("v_bfe_u32 v4, v0, 2, 2"); g.I("v_add_u32 v3, v3, v4")
    g.I("v_lshlrev_b32 v3, 7, v3")
    g.I("v_bfe_u32 v4, v0, 3, 1"); g.I("v_lshl_add_u32 v3, v4, 6, v3")
    g.I("v_bfe_u32 v4, v0, 4, 1"); g.I("v_lshl_add_u32 v3, v4, 5, v3")
    g.I("v_and_b32 v4, 3, v0"); g.I("v_lshl_add_u32 v3, v4, 3, v3")
    g.I(f"v_add_u32 v{vWr[0]}, s{sRG}, v3"); g.I(f"v_xor_b32 v{vWr[1]}, 64, v{vWr[0]}")
    GAP=4
    g.I("s_waitcnt lgkmcnt(0)"); g.lg=[]
    spoll_test(g,16); g.I("s_cselect_b32 s95, 1, 0")
    for f in hep(2):
        if f is not None: f()
        else: g.I("s_nop 0")
    Lok=g.newlab("FHOK")
    g.I("s_cmp_eq_u32 s95, 0"); g.I(f"s_cbranch_scc1 {Lok}")
    spoll(g,sFH,16,0x201,13)
    g.lab(Lok)
    g.ts(4)
    g.I("v_and_b32 v3, 31, v0"); g.I("v_lshlrev_b32 v3, 2, v3"); g.I(f"s_lshl_b32 s87, s{sA3}, 7"); g.I(f"s_add_u32 s87, s87, {STR}")
    g.vmem(f"buffer_load_dword v200, v3, {sWS}, s87 offen sc1", tag="rr")
    g.vmem(f"buffer_load_dword v201, v3, {sWS}, s87 offen offset:128 sc1", tag="rr")
    for i in range(PF): a_issue(i)
    def fh2_publish():
        g.wait_vm("hst2")
        g.I(f"v_mov_b32 v3, {CNT}"); g.I("v_mov_b32 v4, 1")
        g.I("s_mov_b64 exec, 1")
        g.I("ds_add_rtn_u32 v5, v3, v4"); g.I("s_waitcnt lgkmcnt(0)"); g.lg=[]
        g.I("v_readfirstlane_b32 s87, v5"); g.I("s_mov_b64 exec, -1")
        Lno=g.newlab("NOFH")
        g.I("s_cmp_eq_u32 s87, 3"); g.I(f"s_cbranch_scc0 {Lno}")
        flag_store16(g,FH+0x10000,3,4,st=87)
        g.lab(Lno)
    fh2_publish()
    def w_read(i):
        slot=i%NS; ws_=WSR[i%2]
        for tn in range(2):
            g.ds(f"ds_read_b64_tr_b16 v[{ws_+4*tn}:{ws_+4*tn+1}], v{vWr[tn]} offset:{slot*2048}",tag=f"r{i}")
            g.ds(f"ds_read_b64_tr_b16 v[{ws_+4*tn+2}:{ws_+4*tn+3}], v{vWr[tn]} offset:{slot*2048+1024}",tag=f"r{i}")
    def p3m(i,tn,ti):
        ws_=WSR[i%2]; b=AHR+(i%8)*8; a=PA+(tn*2+ti)*16
        g.I(f"v_mfma_f32_32x32x16_bf16 v[{a}:{a+15}], v[{ws_+4*tn}:{ws_+4*tn+3}], v[{b+4*ti}:{b+4*ti+3}], {'0' if i==0 else f'v[{a}:{a+15}]'}")
    g.wait_vm("a0","w0"); w_read(0)
    for i in range(NT):
        if i==NH:
            g.ts(5)
            g.wait_vm("rr")
            g.nop(10)
            for tn in range(2):
                for ti in range(2):
                    a=PA+(tn*2+ti)*16
                    for r in range(16): g.I(f"v_mul_f32 v{a+r}, v{a+r}, v{200+ti}")
            spoll(g,94,16,0x202,13)
            g.ts(6)
            for k in range(NH,NT): a_issue(k)
            for k in range(NH+PF,NT): w_issue(k)
            g.wait_vm(f"a{NH}",f"w{NH}"); w_read(NH)
        k=i+PF
        if k<NH and stepinfo(k)[2]!=stepinfo(k-1)[2]:
            g.I(f"s_add_u32 s{sFH}, s{sFH}, 0x8000")
            spoll(g,sFH,16,0x210+stepinfo(k)[2],13)
        nxt=i+1
        if nxt<NT and nxt!=NH:
            g.wait_vm(f"a{nxt}",f"w{nxt}"); w_read(nxt)
        g.wait_lg(f"r{i}")
        todo=[]
        if k<NH: todo=[lambda: a_issue1(k,0), lambda: a_issue1(k,1), lambda: w_issue1(k,0), lambda: w_issue1(k,1)]
        elif k<NH+PF and i<NH: todo=[lambda: w_issue1(k,0), lambda: w_issue1(k,1)]
        if i==NH-1:
            Ls=g.newlab("SKIPM")
            g.I(f"s_cmp_ge_u32 s{sW}, 2"); g.I(f"s_cbranch_scc1 {Ls}")
            for tn in range(2):
                for ti in range(2): p3m(i,tn,ti)
            g.lab(Ls)
            for f in todo: f()
        else:
            q=0
            for tn in range(2):
                for ti in range(2):
                    p3m(i,tn,ti)
                    if q<len(todo): todo[q]()
                    q+=1
    g.ts(7)
    g.I("v_and_b32 v2, 31, v0"); g.I("v_lshlrev_b32 v3, 8, v2"); g.I(f"v_add_u32 v3, s{sRG}, v3")
    g.I("v_and_b32 v4, 7, v0"); g.I("v_lshrrev_b32 v5, 5, v0")
    for q in range(4):
        g.I(f"v_add_u32 v6, {2*q}, v5"); g.I("v_xor_b32 v6, v6, v4"); g.I(f"v_lshl_add_u32 v{16+q}, v6, 4, v3")
    g.nop(4)
    for tn in range(2):
        for ti in range(2):
            a=PA+(tn*2+ti)*16
            for q in range(4): g.ds(f"ds_write_b128 v{16+q}, v[{a+4*q}:{a+4*q+3}] offset:{ti*8192+tn*128}")
    g.lg0()
    g.I("s_barrier")
    g.I(f"s_lshl_b32 s78, s{sW}, 3"); g.I("v_lshrrev_b32 v3, 3, v0"); g.I("v_add_u32 v3, s78, v3")
    g.I("v_and_b32 v4, 7, v3"); g.I("v_and_b32 v5, 7, v0"); g.I("v_lshlrev_b32 v5, 1, v5")
    g.I("v_xor_b32 v6, v5, v4"); g.I("v_or_b32 v5, 1, v5"); g.I("v_xor_b32 v5, v5, v4")
    g.I("v_lshlrev_b32 v3, 8, v3"); g.I(f"v_add_u32 v3, {RING}, v3")
    g.I("v_lshl_add_u32 v16, v6, 4, v3"); g.I("v_lshl_add_u32 v17, v5, 4, v3")
    R=64
    for p in range(2):
        for k in range(4):
            for e in range(2):
                b=R+(p*8+k*2+e)*4
                g.ds(f"ds_read_b128 v[{b}:{b+3}], v{16+e} offset:{p*8192+k*16384}",tag=f"f{p}")
    g.I(f"s_lshl_b32 s78, s{sA3}, 15"); g.I(f"s_lshl_b32 s79, s{sCT}, 7"); g.I("s_add_u32 s78, s78, s79"); g.I("s_add_u32 s79, s78, 32768")
    g.wait_vm("xr")
    for p in range(2):
        g.wait_lg(f"f{p}")
        for e in range(2):
            for c in range(4):
                b0=R+(p*8+0+e)*4+c
                for k in range(1,4): g.I(f"v_add_f32 v{b0}, v{b0}, v{R+(p*8+k*2+e)*4+c}")
        for e4 in range(4):
            xr=XR+4*p+e4
            g.I(f"v_lshlrev_b32 v20, 16, v{xr}"); g.I(f"v_and_b32 v21, 0xffff0000, v{xr}")
            o0=R+(p*8+(e4>>1))*4+2*(e4&1)
            g.I(f"v_add_f32 v{o0}, v{o0}, v20"); g.I(f"v_add_f32 v{o0+1}, v{o0+1}, v21")
            g.I(f"v_cvt_pk_bf16_f32 v{24+4*p+e4}, v{o0}, v{o0+1}")
        g.vmem(f"buffer_store_dwordx4 v[{24+4*p}:{27+4*p}], v11, {sOUT}, s{78+p} offen")
    g.ts(8)

def build():
    g=G()
    prologue(g)
    vm0=list(g.vm)
    hwave(g)
    g.vm=vm0; g.lg=[]
    gwave(g)
    g.lab("L_END")
    g.I("s_endpgm")
    return g.L

HEAD=f"""; fused persistent kernel: LN + QKV/W1 GEMM + sliding-window attention + W2/WO GEMM
; @launch grid=(256,1,1) block=(512,1,1) lds={LDS_TOTAL}
.amdgcn_target "amdgcn-amd-amdhsa--gfx950"
.text
.globl {KNAME}
.p2align 8
.type {KNAME},@function
{KNAME}:
"""
TAIL=f""".section .rodata,"a"
.p2align 6
.amdhsa_kernel {KNAME}
  .amdhsa_next_free_vgpr 256
  .amdhsa_next_free_sgpr 102
  .amdhsa_accum_offset 256
  .amdhsa_group_segment_fixed_size 0
  .amdhsa_kernarg_size 72
  .amdhsa_user_sgpr_count 2
  .amdhsa_user_sgpr_kernarg_segment_ptr 1
  .amdhsa_system_sgpr_workgroup_id_x 1
  .amdhsa_float_denorm_mode_32 3
.end_amdhsa_kernel
"""
if __name__=="__main__":
    out=sys.argv[1] if len(sys.argv)>1 else "k.s"
    for a in sys.argv[2:]:
        k,_,val=a.partition("="); OPT[k]=int(val,0) if val else True
    L=build()
    errs=lint(L)
    for e in errs[:60]: print("LINT:",e)
    print(len(errs),"lint errors;",len(L),"lines")
    open(out,"w").write(HEAD+"\n".join(L)+"\n"+TAIL)
```

```python
import sys
from lint import lint

KNAME = "parallel_sum__sliding_block__dense_activation_relu__prompt_kernel"
OPT = dict(ts=0, spin=1<<20, cyc=0, prio=1, l2pf=1, kvq=5, rot=1, pf0=1, pf1=1, rp0=5, l2n=1, fkvn=5, nfill=3, nfill0=4, nfill1=4, kn=2, vn=4, h0n=6, fd=2, gap=12, pf3=3)

KVST = 24576
def R1(s): return s*KVST
R2 = 73728
def R2S(s): return R2 + s*16384
def KVB(it): return [0,KVST,2*KVST,R2,R2+32768,0,KVST,2*KVST][it]
KVL = 0; SLOT = 4096; SLOTG = 4096
QL = 139264
RING = R2
HST=[49152,57344]
NM = 159744; RL = 160256; SL = 160768; CNT = 147456; SY = 147456+128
LDS_TOTAL = 163840
WS_NONCE=0; FKV=0x8000; FVV=0x30000; FH=0x10000; FO=0x28000
STR=0x40000; KV=0x100000; AH=0x800000; TS=0xF80000; WS_SIZE=0x1000000
NSTEP=118
TAGC=0x9E3779B9
sX="s[40:43]"; sWQ="s[44:47]"; sW1="s[48:51]"; sW2="s[52:55]"; sWO="s[56:59]"; sOUT="s[60:63]"; sWS="s[64:67]"
sW=26; sRB=27; sCS=28; sJ=29; sIDX=30; sTAG=31; sU32=33; sNT=34; sA3=35; sCT=36; sRB3=37; sHW=38; sSPIN=39

class G:
    def __init__(s):
        s.L=[]; s.vm=[]; s.lg=[]; s.nlab=0; s.seen=set(); s.tsreg=1
    def I(s,t): s.L.append(" "+t)
    def C(s,t): s.L.append(" ; "+t)
    def lab(s,n): s.L.append(n+":")
    def newlab(s,p="L"):
        s.nlab+=1; return f"{p}_{s.nlab}"
    def vmem(s,t,tag=None,cond=False):
        s.L.append(" "+t+(f" ;@tag {tag}" if tag else ""))
        if not cond: s.vm.append(tag)
        elif tag: s.vm.append(("cond",tag))
    def ds(s,t,tag=None,cond=False):
        s.L.append(" "+t+(f" ;@tag {tag}" if tag else ""))
        s.seen.add(tag)
        if not cond: s.lg.append(tag)
        elif tag: s.lg.append(("cond",tag))
    @staticmethod
    def _ny(q,tag):
        n=0
        for x in reversed(q):
            if x==tag or x==("cond",tag): return n
            if not isinstance(x,tuple): n+=1
        return None
    def wait_vm(s,*tags,extra=""):
        ns=[s._ny(s.vm,t) for t in tags]; ns=[n for n in ns if n is not None]
        n=min(min(ns) if ns else 63,63)
        s.I(f"s_waitcnt vmcnt({n}){extra}")
        s.L.append(" ;@need "+",".join(tags))
        if "lgkmcnt(0)" in extra: s.lg=[]
    def wait_lg_must(s,tag):
        assert tag in s.seen, f"tag {tag} not emitted yet"
        s.wait_lg(tag)
    def wait_lg(s,*tags):
        ns=[s._ny(s.lg,t) for t in tags]; ns=[n for n in ns if n is not None]
        if not ns: return
        n=min(min(ns),15)
        s.I(f"s_waitcnt lgkmcnt({n})")
        s.L.append(" ;@need "+",".join(tags))
        if n==0: s.lg=[]
    def lg0(s):
        s.I("s_waitcnt lgkmcnt(0)"); s.lg=[]
    def vm0(s,extra=""):
        s.I("s_waitcnt vmcnt(0)"+extra); s.vm=[]
        if "lgkmcnt(0)" in extra: s.lg=[]
    def nop(s,n):
        while n>0:
            k=min(n,16); s.I(f"s_nop {k-1}"); n-=k
    LP=[8,10,12,14,16,18,20,22,78,80,82,84,86,88,96,98]
    def lts(s,i):
        if OPT["ts"]==5: s.I(f"s_memtime s[{s.LP[i]}:{s.LP[i]+1}]")
    LH=[10,12,14,16,18,20,22,4]
    def lts2(s,i):
        if OPT["ts"]==5: s.I(f"s_memtime s[{s.LH[i]}:{s.LH[i]+1}]")
    def lts2_dump(s):
        if OPT["ts"]!=5: return
        s.I("s_waitcnt lgkmcnt(0)"); s.lg=[]
        for i in range(8):
            s.I(f"v_mov_b32 v1, s{s.LH[i]}")
            s.vmem(f"buffer_store_dword v1, off, {sWS}, s92 offset:{i*4}", tag=None)
            s.I("s_nop 1")
    LA=[10,12,14,16,18,20,22,70,72,74,76,78,96,4,6,2]
    def lx(s,i):
        if OPT["ts"]==10: s.I(f"s_memtime s[{s.LA[i]}:{s.LA[i]+1}]")
    def lta(s,i):
        if OPT["ts"]==7 and i<15: s.I(f"s_memtime s[{s.LA[i]}:{s.LA[i]+1}]")
    def lta_dump(s,final=False):
        if OPT["ts"] not in (7,10) or (OPT["ts"]==10 and not final): return
        if OPT["ts"]==7 and final: return
        s.I("s_waitcnt lgkmcnt(0)"); s.lg=[]
        for i in range(15):
            s.I(f"v_mov_b32 v1, s{s.LA[i]}")
            s.vmem(f"buffer_store_dword v1, off, {sWS}, s92 offset:{i*4}", tag=None)
            s.I("s_nop 1")
    def lts_dump(s):
        if OPT["ts"] not in (5,6): return
        s.I("s_waitcnt lgkmcnt(0)"); s.lg=[]
        for i in range(16):
            s.I(f"v_mov_b32 v5, s{s.LP[i]}")
            s.vmem(f"buffer_store_dword v5, off, {sWS}, s92 offset:{i*4}", tag=None)
            s.I("s_nop 1")
    def ts(s,i,mode=1):
        if OPT["ts"]!=mode: return
        s.I("s_memrealtime s[90:91]" if not OPT.get("cyc") else "s_memtime s[90:91]")
        s.I("s_waitcnt lgkmcnt(0)"); s.lg=[]
        s.I(f"v_mov_b32 v{s.tsreg}, s90")
        s.vmem(f"buffer_store_dword v{s.tsreg}, off, {sWS}, s92 offset:{i*4}", tag=None)

def errmark(g,vtmp,errcode):
    g.I(f"v_mov_b32 v{vtmp}, {errcode}")
    g.I(f"v_mov_b32 v{vtmp+1}, 0")
    g.vmem(f"global_store_dword v{vtmp+1}, v{vtmp}, s[68:69]")
    g.I("s_waitcnt vmcnt(0)")
def spoll_issue(g, soff, n):
    if n==1: g.I(f"s_load_dword s8, s[64:65], s{soff} glc")
    else: g.I(f"s_load_dwordx16 s[8:23], s[64:65], s{soff} glc")
def spoll_test(g, n):
    if n==1:
        g.I(f"s_cmp_lg_u32 s8, s{sTAG}")
    else:
        for k in range(8): g.I(f"s_xor_b64 s[{8+2*k}:{9+2*k}], s[{8+2*k}:{9+2*k}], s[24:25]")
        for k in (1,2,3,4,5,6,7): g.I(f"s_or_b64 s[8:9], s[8:9], s[{8+2*k}:{9+2*k}]")
        g.I("s_or_b32 s8, s8, s9")
def spoll(g, soff, n, errcode, vtmp, issued=False):
    L=g.newlab("SPL"); D=g.newlab("SPD"); F=g.newlab("SPF")
    g.I(f"s_mov_b32 s{sSPIN}, {OPT['spin']}")
    if issued: g.I(f"s_branch {F}")
    g.lab(L)
    spoll_issue(g,soff,n)
    g.lab(F)
    g.I("s_waitcnt lgkmcnt(0)"); g.lg=[]
    spoll_test(g,n)
    g.I(f"s_cbranch_scc0 {D}")
    if OPT.get("psl"): g.I(f"s_sleep {OPT['psl']}")
    g.I(f"s_sub_u32 s{sSPIN}, s{sSPIN}, 1")
    g.I(f"s_cbranch_scc0 {L}")
    save=list(g.vm); errmark(g,vtmp,errcode); g.vm=save
    g.lab(D)
def lspin(g, vaddr, off, N, vtmp, first_done=False, sleep=False):
    L=g.newlab("LS"); D=g.newlab("LD")
    if first_done:
        g.I(f"v_cmp_gt_u32 vcc, {N}, v{vtmp}"); g.I("s_nop 0"); g.I(f"s_cbranch_vccz {D}")
    g.I(f"s_mov_b32 s{sSPIN}, {OPT['spin']}")
    g.lab(L)
    if sleep: g.I("s_sleep 1")
    g.I(f"ds_read_b32 v{vtmp}, v{vaddr} offset:{off}"); g.I("s_waitcnt lgkmcnt(0)")
    g.I(f"v_cmp_gt_u32 vcc, {N}, v{vtmp}"); g.I("s_nop 0"); g.I(f"s_cbranch_vccz {D}")
    g.I(f"s_sub_u32 s{sSPIN}, s{sSPIN}, 1"); g.I(f"s_cbranch_scc0 {L}")
    g.lab(D)
    if not first_done: g.lg=[]
def flag_store1(g, base, va, vb, st=81):
    g.I(f"s_lshl_b32 s{st}, s{sRB}, 4"); g.I(f"s_add_u32 s{st}, s{st}, s{sCS}"); g.I(f"s_lshl_b32 s{st}, s{st}, 7"); g.I(f"s_add_u32 s{st}, s{st}, {base}")
    g.I(f"v_mov_b32 v{va}, s{st}"); g.I(f"v_mov_b32 v{vb}, s{sTAG}")
    g.I("s_mov_b64 exec, 1")
    g.vmem(f"buffer_store_dword v{vb}, v{va}, {sWS}, 0 offen sc1", cond=True)
    g.I("s_mov_b64 exec, -1")
def flag_store16(g, base, va, vb, st=81):
    g.I(f"s_lshl_b32 s{st}, s{sRB}, 11"); g.I(f"s_lshl_b32 s{st+1}, s{sCS}, 2"); g.I(f"s_add_u32 s{st}, s{st}, s{st+1}"); g.I(f"s_add_u32 s{st}, s{st}, {base}")
    g.I(f"v_lshlrev_b32 v{va}, 7, v0"); g.I(f"v_add_u32 v{va}, s{st}, v{va}"); g.I(f"v_mov_b32 v{vb}, s{sTAG}")
    g.I("s_mov_b64 exec, 0xffff")
    g.vmem(f"buffer_store_dword v{vb}, v{va}, {sWS}, 0 offen sc1", cond=True)
    g.I("s_mov_b64 exec, -1")

def prologue(g):
    g.I("s_cmp_ge_u32 s2, 256")
    g.I("s_cbranch_scc1 L_END")
    g.I("s_getpc_b64 s[4:5]")
    g.lab("L_PCREF")
    g.I("v_lshlrev_b32 v1, 7, v0")
    g.I("v_min_u32 v1, L_END-L_PCREF, v1")
    g.I("s_load_dwordx2 s[40:41], s[0:1], 0")
    g.I("s_load_dwordx2 s[44:45], s[0:1], 8")
    g.I("s_load_dwordx2 s[48:49], s[0:1], 32")
    g.I("s_load_dwordx2 s[64:65], s[0:1], 64")
    g.vmem("global_load_dword v250, v1, s[4:5]", tag="cpf")
    g.I("v_lshrrev_b32 v1, 6, v0")
    g.I("v_and_b32 v0, 63, v0")
    g.I(f"v_readfirstlane_b32 s{sW}, v1")
    g.I(f"s_and_b32 s{sJ}, s2, 7")
    g.I(f"s_lshr_b32 s{sIDX}, s2, 3")
    g.I(f"s_and_b32 s3, s{sJ}, 1")
    g.I(f"s_lshl_b32 s3, s3, 3")
    g.I(f"s_and_b32 s{sRB}, s{sIDX}, 7")
    g.I(f"s_or_b32 s{sRB}, s{sRB}, s3")
    g.I(f"s_lshr_b32 s3, s{sJ}, 1")
    g.I(f"s_lshl_b32 s3, s3, 2")
    g.I(f"s_lshr_b32 s{sCS}, s{sIDX}, 3")
    g.I(f"s_or_b32 s{sCS}, s{sCS}, s3")
    for base,size in ((40,2097152),(44,1572864),(48,1409024),(64,WS_SIZE)):
        g.I(f"s_mov_b32 s{base+2}, {size}")
        g.I(f"s_mov_b32 s{base+3}, 0x20000")
    g.I(f"s_mul_i32 s{sU32}, s{sCS}, 3")
    g.I(f"s_lshl_b32 s3, s{sCS}, 1"); g.I("s_add_u32 s3, s3, 11")
    g.I(f"s_min_u32 s{sU32}, s{sU32}, s3")
    g.I(f"s_cmp_lt_u32 s{sCS}, 11"); g.I(f"s_cselect_b32 s{sNT}, 3, 2")
    if OPT["ts"]:
        g.I(f"s_lshl_b32 s92, s2, 3"); g.I(f"s_add_u32 s92, s92, s{sW}"); g.I(f"s_lshl_b32 s92, s92, 6"); g.I(f"s_add_u32 s92, s92, {TS}")
    g.I(f"s_cmp_lt_u32 s{sW}, 4")
    g.I("s_cbranch_scc1 L_GWAVE")


def attention(g, general, QF, BD, BO, sTM, vsync, fh1):
    KB=[24,28,32]; SB=[160,176,224]; CZ=192; MC=208; PB=[36,44]; VBH=[[52,60],[80,88]]; OA=[96,112]
    M=[[68,69,70,71],[72,73,74,75]]; NEG=76
    seq=[(t,h) for h in range(2) for t in range(9)]
    def kread(n):
        t,h=seq[n]; b=KB[n%3]; g.ds(f"ds_read_b128 v[{b}:{b+3}], v11 offset:{t*SLOT+h*1024}", tag=f"k{n}")
    def setC(val):
        for r in range(16): g.I(f"v_mov_b32 v{CZ+r}, {val}")
    def cz_init(val):
        if not general:
            if val!="0": setC(val)
            return
        La=g.newlab("CZA"); Lb2=g.newlab("CZB")
        g.I(f"s_cmp_gt_u32 s{sTM}, 1"); g.I(f"s_cbranch_scc1 {La}")
        setC(val); g.I(f"s_branch {Lb2}"); g.lab(La); setC("v5"); g.lab(Lb2)
    def cz_switch(t,val):
        if not general: return
        Ls=g.newlab("CZS")
        g.I(f"s_cmp_eq_u32 s{sTM}, {t}"); g.I(f"s_cbranch_scc0 {Ls}")
        g.nop(8); setC(val); g.I("s_nop 1"); g.lab(Ls)
    NS1=3
    def smfma1(n,Cr):
        t,h=seq[n]; b=KB[n%3]; S=SB[n%NS1]
        g.I(f"v_mfma_f32_32x32x16_bf16 v[{S}:{S+15}], v[{b}:{b+3}], v[{QF+4*h}:{QF+4*h+3}], {Cr}")
    for h in range(2):
        for m in M[h]: g.I(f"v_mov_b32 v{m}, v5")
    kread(0); kread(1)
    cz_init("0")
    g.wait_lg("q")
    for n in range(20):
        if n==OPT.get("fh1p",9): fh1()
        if n<18:
            t,h=seq[n]
            if n==9: cz_init("0")
            elif 2<=t<=7: cz_switch(t,"0")
            g.wait_lg(f"k{n}")
            mid = f"v[{CZ}:{CZ+15}]" if general else "0"
            Cr = f"v[{BO}:{BO+15}]" if t==0 else (f"v[{BD}:{BD+15}]" if t==8 else mid)
            if n==9 and general: g.I("s_nop 0")
            smfma1(n,Cr)
            if n+2<18: kread(n+2)
        if n==2: g.nop(6)
        if n==19: g.nop(4)
        if n>=2:
            tp,hp=seq[n-2]; Sp=SB[(n-2)%NS1]
            for e in range(8): g.I(f"v_max3_f32 v{M[hp][e%4]}, v{Sp+2*e}, v{Sp+2*e+1}, v{M[hp][e%4]}")
    for h in range(2):
        g.I(f"v_max3_f32 v{M[h][0]}, v{M[h][0]}, v{M[h][1]}, v{M[h][2]}")
    for h in range(2):
        g.I(f"v_max_f32 v{M[h][0]}, v{M[h][0]}, v{M[h][3]}")
    for h in range(2): g.I(f"v_mov_b32 v{NEG+h}, v{M[h][0]}")
    g.I("s_nop 1")
    for h in range(2): g.I(f"v_permlane32_swap_b32 v{M[h][0]}, v{NEG+h}")
    g.I("s_nop 0")
    for h in range(2): g.I(f"v_max_f32 v{M[h][0]}, v{M[h][0]}, v{NEG+h}")
    for h in range(2): g.I(f"v_sub_f32 v{NEG+h}, 0, v{M[h][0]}")
    g.ts(4)
    g.lx(2)
    for r in list(range(52,68))+list(range(80,96)): g.I(f"v_mov_b32 v{r}, 0x3f803f80")
    g.ts(12,8)
    g.lx(3)
    vsync()
    g.lx(4)
    g.ts(13,8)
    def smfma(n,Cr):
        t,h=seq[n]; b=KB[n%3]; S=SB[n%2]
        g.I(f"v_mfma_f32_32x32x16_bf16 v[{S}:{S+15}], v[{b}:{b+3}], v[{QF+4*h}:{QF+4*h+3}], {Cr}")
    def vread(n):
        t,h=seq[n]; b=VBH[h][n%2]
        m="0x0000ffff" if h==0 else "0xffff0000"
        g.I(f"s_mov_b32 exec_lo, {m}"); g.I(f"s_mov_b32 exec_hi, {m}")
        g.ds(f"ds_read_b128 v[{b}:{b+3}], v11 offset:{t*SLOT+2048}", tag=f"v{n}")
        g.ds(f"ds_read_b128 v[{b+4}:{b+7}], v11 offset:{t*SLOT+2048+1024}", tag=f"v{n}")
        g.I("s_mov_b64 exec, -1")
    def prepC(n):
        t,h=seq[n]
        if t==0:
            for r in range(16): g.I(f"v_add_f32 v{MC+r}, v{BO+r}, v{NEG+h}")
            cz_init(f"v{NEG+h}")
            if not general: g.I("s_nop 0")
            return f"v[{MC}:{MC+15}]"
        if t==8:
            for r in range(16): g.I(f"v_add_f32 v{MC+r}, v{BD+r}, v{NEG+h}")
            g.I("s_nop 0")
            return f"v[{MC}:{MC+15}]"
        if t>=2: cz_switch(t,f"v{NEG+h}")
        return f"v[{CZ}:{CZ+15}]"
    def pv(n,k):
        t,h=seq[n]; Vb=VBH[h][n%2]; P=PB[n%2]; O=OA[h]
        Cin='0' if (t==0 and k==0) else f'v[{O}:{O+15}]'
        g.I(f"v_mfma_f32_32x32x16_bf16 v[{O}:{O+15}], v[{Vb+4*k}:{Vb+4*k+3}], v[{P+4*k}:{P+4*k+3}], {Cin}")
    kread(0); kread(1)
    Cr=prepC(0)
    g.wait_lg("k0"); g.I("s_nop 0")
    smfma(0,Cr)
    vread(0)
    for n in range(19):
        g.lta(n)
        if n==OPT.get("fh1n",-1): fh1()
        if n<18:
            if n+2<18: kread(n+2)
            if n+1<18:
                Cr=prepC(n+1); g.wait_lg(f"k{n+1}"); smfma(n+1,Cr)
            if n==0: g.nop(10)
            Sn=SB[n%2]; P=PB[n%2]
            ops=[]
            for e in range(8):
                ops.append(f"v_exp_f32 v{Sn+2*e}, v{Sn+2*e}"); ops.append(f"v_exp_f32 v{Sn+2*e+1}, v{Sn+2*e+1}")
                if e>=2: ops.append(f"v_cvt_pk_bf16_f32 v{P+e-2}, v{Sn+2*e-4}, v{Sn+2*e-3}")
            ops.append(f"v_cvt_pk_bf16_f32 v{P+6}, v{Sn+12}, v{Sn+13}"); ops.append(f"v_cvt_pk_bf16_f32 v{P+7}, v{Sn+14}, v{Sn+15}")
            for i,o in enumerate(ops):
                g.I(o)
                if n>=1 and i==4: g.wait_lg(f"v{n-1}"); pv(n-1,0)
                if n>=1 and i==10:
                    pv(n-1,1)
                    if n+1<18: vread(n+1) if False else None
                if i==13 and n>=0:
                    if n>=1: vread(n)
        else:
            g.wait_lg("v17"); g.I("s_nop 1"); pv(17,0); pv(17,1)
    return OA

def hwave(g):
    vXe=8; vXo=9; vWq=10; vW1=11; vTK=12; vTK2=13; vTT=14
    sXb=70; sMx=73; sMw=74; sT=78; sCK=75; sCV=76; sCQ=77; sC1=79; sKB0=95; sKB=96; sU=97
    BD=128; BO=144; sTM=84; need=85; sSL=86; sDONE=87; sSRC=88; sFK=89; sDV=94; sFV=99; sKVo=100; sAHo=101; sH1=71; sH4=72
    SEL=60; CA=[56,64]; SX=[68,72]; XH=76; vXh=92; FB=32; PB_=96
    g.I(f"s_sub_u32 s{sHW}, s{sW}, 4")
    g.I(f"s_cmp_ge_u32 s{sHW}, 2"); g.I("s_cbranch_scc1 L_HPUB")
    def kbof(tb):
        g.I(f"s_add_u32 s{sKB}, s{sKB0}, {tb}"); g.I(f"s_and_b32 s{sKB}, s{sKB}, 7")
    def kv_issue(it):
        st=KVB(it)
        kbof(it)
        g.I(f"s_lshl_b32 s{sU}, s{sKB}, 7"); g.I(f"s_add_u32 s{sU}, s{sU}, s{sXb}")
        for i in range(8):
            g.I(f"s_add_u32 m0, s{sMx}, {st+i*1024}")
            g.I(f"s_add_u32 s{sT}, s{sU}, {i*8192}")
            g.vmem(f"buffer_load_dwordx4 v{vXe if i%2==0 else vXo}, {sX}, s{sT} offen lds", tag=f"kv{it}")
        g.I(f"s_mul_i32 s{sU}, s{sKB}, 196608")
        for u,sc in ((0,sCK),(1,sCV)):
            g.I(f"s_add_u32 s3, s{sc}, s{sU}")
            for sub in range(2):
                g.I(f"s_add_u32 m0, s{sMw}, {st+16384+u*4096+sub*1024}")
                g.I(f"s_add_u32 s{sT}, s3, {sub*49152}")
                g.vmem(f"buffer_load_dwordx4 v{vWq}, {sWQ}, s{sT} offen lds", tag=f"kv{it}")
    def ht_issue(n):
        for kk in range(2):
            kbof(2*(n%4)+kk)
            for y in range(2):
                T=(0 if n<4 else 2)+y
                if T<3: g.I(f"s_mul_i32 s{sU}, s{sKB}, 176128"); g.I(f"s_add_u32 s3, s{sC1}, s{sU}")
                else: g.I(f"s_mul_i32 s{sU}, s{sKB}, 196608"); g.I(f"s_add_u32 s3, s{sCQ}, s{sU}")
                for sub in range(2):
                    g.I(f"s_add_u32 m0, s{sMw}, {R2S(n%4)+(kk*2+y)*4096+sub*1024}")
                    if T<3:
                        g.I(f"s_add_u32 s{sT}, s3, {T*64+sub*44032}")
                        g.vmem(f"buffer_load_dwordx4 v{vW1}, {sW1}, s{sT} offen lds", tag=f"ht{n}")
                    else:
                        g.I(f"s_add_u32 s{sT}, s3, {sub*49152}")
                        g.vmem(f"buffer_load_dwordx4 v{vWq}, {sWQ}, s{sT} offen lds", tag=f"ht{n}")
    def setup_common():
        g.I("s_load_dwordx2 s[68:69], s[0:1], 56")
        g.I(f"s_lshl_b32 s{sH1}, s{sHW}, 10"); g.I(f"s_lshl_b32 s{sH4}, s{sHW}, 12")
        g.I("v_lshlrev_b32 v15, 7, v0"); g.I("v_lshlrev_b32 v7, 4, v0")
        g.I("v_lshrrev_b32 v3, 5, v0"); g.I("v_lshlrev_b32 v3, 3, v3"); g.I("v_bfe_u32 v4, v0, 2, 2"); g.I("v_add_u32 v3, v3, v4")
        g.I("v_lshlrev_b32 v3, 6, v3"); g.I("v_bfe_u32 v4, v0, 4, 1"); g.I("v_lshl_add_u32 v3, v4, 5, v3")
        g.I("v_and_b32 v4, 3, v0"); g.I("v_lshl_add_u32 v3, v4, 3, v3")
        g.I(f"s_add_u32 s81, s{sH1}, 16384"); g.I(f"v_add_u32 v{vTK}, s81, v3"); g.I(f"v_add_u32 v{vTK2}, {R2}, v{vTK}")
        g.I(f"s_add_u32 s81, s{sH1}, {R2}"); g.I(f"v_add_u32 v{vTT}, s81, v3")
        g.I("v_and_b32 v3, 31, v0"); g.I("v_lshrrev_b32 v4, 5, v0"); g.I("v_lshlrev_b32 v4, 2, v4")
        g.I("v_sub_u32 v3, v3, v4"); g.I("v_mov_b32 v5, 0xf149f2ca")
        g.I(f"s_lshl_b32 s81, s{sRB}, 2"); g.I(f"s_add_u32 s81, s81, s{sHW}")
        g.I(f"s_sub_i32 s{sTM}, 8, s81"); g.I(f"s_max_i32 s{sTM}, s{sTM}, 0")
        for r in range(16):
            kk=(r&3)+8*(r>>2)
            g.I(f"v_subrev_u32 v6, {kk}, v3"); g.I(f"v_ashrrev_i32 v6, 31, v6")
            g.I(f"v_and_b32 v{BD+r}, v6, v5"); g.I(f"v_bfi_b32 v{BO+r}, v6, 0, v5")
        Lb=g.newlab("BOK")
        g.I(f"s_cmp_eq_u32 s{sTM}, 0"); g.I(f"s_cbranch_scc1 {Lb}")
        for r in range(16): g.I(f"v_mov_b32 v{BO+r}, v5")
        g.lab(Lb)
        g.I("v_and_b32 v3, 15, v0"); g.I("v_bfe_u32 v4, v0, 4, 1"); g.I("v_cmp_eq_u32 vcc, v3, v4"); g.I("v_mov_b32 v6, 0x3f803f80")
        g.I("s_nop 0"); g.I(f"v_cndmask_b32 v{SEL}, 0, v6, vcc")
        for k in range(1,4): g.I(f"v_mov_b32 v{SEL+k}, v{SEL}")
        g.I("v_and_b32 v2, 31, v0")
        g.I("v_lshrrev_b32 v3, 3, v2"); g.I("v_lshlrev_b32 v3, 10, v3"); g.I("v_and_b32 v4, 7, v2"); g.I("v_lshl_add_u32 v3, v4, 7, v3")
        g.I("v_bfe_u32 v4, v0, 1, 3"); g.I("v_lshrrev_b32 v6, 5, v0"); g.I("v_xor_b32 v4, v4, v6"); g.I("v_lshl_add_u32 v3, v4, 4, v3")
        g.I(f"v_add_u32 v{vXh}, s{sH4}, v3")
        for t in range(1,4): g.I(f"v_xor_b32 v{vXh+t}, {t<<5}, v{vXh}")
        g.I("v_lshlrev_b32 v3, 4, v0"); g.I(f"s_lshl_b32 s81, s{sHW}, 2"); g.I(f"s_add_u32 s81, s81, {SL}"); g.I(f"v_add_u32 v18, s81, v3")
    def get_tag():
        g.wait_vm("nonce")
        g.I(f"v_readfirstlane_b32 s{sTAG}, v28"); g.I("s_nop 1")
        g.I(f"s_add_u32 s{sTAG}, s{sTAG}, {TAGC}"); g.I(f"s_mov_b32 s24, s{sTAG}"); g.I(f"s_mov_b32 s25, s{sTAG}")
    def cs_mfma(b,a,first):
        g.I(f"v_mfma_f32_16x16x32_bf16 v[{a}:{a+3}], v[{SEL}:{SEL+3}], v[{b}:{b+3}], {'0' if first else f'v[{a}:{a+3}]'}")
    def cs_final(a,tile):
        g.I("s_mov_b64 exec, 0xffff")
        g.ds(f"ds_write_b32 v18, v{a} offset:{tile*512}")
        g.ds(f"ds_write_b32 v18, v{a+1} offset:{tile*512+256}")
        g.I("s_mov_b64 exec, -1")
    def bar(tags,idx):
        if tags: g.wait_vm(*tags,extra=" lgkmcnt(0)")
        else: g.lg0()
        g.ts(idx,2)
        if idx>=8: g.lts2(idx-8)
        g.I("s_barrier")
    def kv_stats(it):
        st=KVB(it); base=vTK if st<R2 else vTK2; off=st if st<R2 else st-R2
        if it==3:
            for k in range(4): g.I(f"v_add_u32 v{vXh+k}, {R2}, v{vXh+k}")
        if it==5:
            for k in range(4): g.I(f"v_subrev_u32 v{vXh+k}, {R2}, v{vXh+k}")
        for t in range(4):
            g.ds(f"ds_read_b128 v[{XH+4*t}:{XH+4*t+3}], v{vXh+t} offset:{off}",tag=f"xh{t}")
        for u in range(2):
            g.ds(f"ds_read_b64_tr_b16 v[{FB+4*u}:{FB+4*u+1}], v{base} offset:{off+u*4096}",tag="cf")
            g.ds(f"ds_read_b64_tr_b16 v[{FB+4*u+2}:{FB+4*u+3}], v{base} offset:{off+u*4096+256}",tag="cf")
    def kv_stats2(it):
        for t in range(4):
            g.wait_lg(f"xh{t}")
            cs_mfma(XH+4*t,SX[t%2],it==0 and t<2)
        g.wait_lg("cf")
        cs_mfma(FB,CA[0],it==0); cs_mfma(FB+4,CA[1],it==0)
        if it==7:
            g.I("v_lshlrev_b32 v3, 2, v0"); g.I(f"s_lshl_b32 s81, s{sHW}, 7"); g.I(f"s_add_u32 s81, s81, {NM}"); g.I("v_add_u32 v3, s81, v3")
            g.nop(10)
            for k in range(2): g.I(f"v_add_f32 v{SX[0]+k}, v{SX[0]+k}, v{SX[1]+k}")
            g.I("s_mov_b64 exec, 0xffff")
            g.ds(f"ds_write_b32 v3, v{SX[0]}"); g.ds(f"ds_write_b32 v3, v{SX[0]+1} offset:64")
            g.I("s_mov_b64 exec, -1")
            cs_final(CA[0],0); cs_final(CA[1],1)
    def ht_reads(n):
        for t in range(4):
            g.ds(f"ds_read_b64_tr_b16 v[{FB+4*t}:{FB+4*t+1}], v{vTT} offset:{(n%4)*16384+t*4096}",tag="cf")
            g.ds(f"ds_read_b64_tr_b16 v[{FB+4*t+2}:{FB+4*t+3}], v{vTT} offset:{(n%4)*16384+t*4096+256}",tag="cf")
    def ht_cs(n):
        g.lg0()
        for t in range(4): cs_mfma(FB+4*t,CA[t%2],(n%4)==0 and t<2)
        if n%4==3:
            g.nop(12)
            cs_final(CA[0],2 if n<4 else 4); cs_final(CA[1],3 if n<4 else 5)
    g.I("v_lshrrev_b32 v3, 3, v0"); g.I("v_lshlrev_b32 v3, 10, v3"); g.I("v_and_b32 v4, 7, v0"); g.I("v_lshrrev_b32 v5, 4, v0")
    g.I("v_xor_b32 v4, v4, v5"); g.I(f"v_lshl_or_b32 v{vXe}, v4, 4, v3"); g.I(f"v_xor_b32 v{vXo}, 64, v{vXe}")
    g.I("v_lshrrev_b32 v3, 2, v0"); g.I("v_and_b32 v4, 3, v0"); g.I("v_lshlrev_b32 v4, 4, v4")
    g.I(f"v_mov_b32 v5, 3072"); g.I(f"v_mad_u32_u24 v{vWq}, v3, v5, v4")
    g.I(f"v_mov_b32 v5, 2752"); g.I(f"v_mad_u32_u24 v{vW1}, v3, v5, v4")
    g.I(f"s_lshl_b32 s{sXb}, s{sRB}, 17"); g.I(f"s_lshl_b32 s{sT}, s{sHW}, 16"); g.I(f"s_add_u32 s{sXb}, s{sXb}, s{sT}")
    g.I(f"s_lshl_b32 s{sMx}, s{sHW}, 13"); g.I(f"s_lshl_b32 s{sMw}, s{sHW}, 11")
    g.I(f"s_mul_i32 s{sCQ}, s{sHW}, {2*49152}"); g.I(f"s_lshl_b32 s{sT}, s{sCS}, 6"); g.I(f"s_add_u32 s{sCQ}, s{sCQ}, s{sT}")
    g.I(f"s_add_u32 s{sCK}, s{sCQ}, 1024"); g.I(f"s_add_u32 s{sCV}, s{sCQ}, 2048")
    g.I(f"s_mul_i32 s{sC1}, s{sHW}, {2*44032}"); g.I(f"s_lshl_b32 s{sT}, s{sU32}, 6"); g.I(f"s_add_u32 s{sC1}, s{sC1}, s{sT}")
    if OPT["rot"]==2:
        g.I(f"s_add_u32 s{sKB0}, s{sCS}, s{sRB}"); g.I(f"s_and_b32 s{sKB0}, s{sKB0}, 3"); g.I(f"s_lshl_b32 s{sKB0}, s{sKB0}, 1")
    elif OPT["rot"]==3:
        g.I(f"s_add_u32 s{sKB0}, s{sCS}, s{sRB}"); g.I(f"s_and_b32 s{sKB0}, s{sKB0}, 1"); g.I(f"s_lshl_b32 s{sKB0}, s{sKB0}, 2")
    elif OPT["rot"]==4:
        g.I(f"s_add_u32 s{sKB0}, s{sCS}, s{sRB}")
    elif OPT["rot"]:
        g.I(f"s_and_b32 s{sKB0}, s{sCS}, 3"); g.I(f"s_lshl_b32 s{sKB0}, s{sKB0}, 1"); g.I(f"s_bfe_u32 s{sKB}, s{sCS}, 0x10002")
        g.I(f"s_add_u32 s{sKB0}, s{sKB0}, s{sKB}"); g.I(f"s_add_u32 s{sKB0}, s{sKB0}, s{sRB}")
    else: g.I(f"s_mov_b32 s{sKB0}, 0")
    g.I("s_waitcnt lgkmcnt(0)")
    g.ts(0)
    if OPT["prio"]: g.I("s_setprio 2")
    g.I("v_mov_b32 v3, 0")
    g.vmem(f"buffer_load_dword v28, v3, {sWS}, 0 offen sc1", tag="nonce")
    kv_issue(0); kv_issue(1)
    setup_common()
    g.lg0()
    for it in range(2,5): kv_issue(it)
    get_tag()
    for it in range(8):
        bar([f"kv{it}"],it)
        if it==0: g.ts(1)
        kv_stats(it)
        if 2<=it<=4: kv_issue(it+3)
        if it>=5: ht_issue(it-5)
        kv_stats2(it)
    bar(["ht0"],8)
    g.ts(2)
    g.I("v_and_b32 v3, 3, v0"); g.I("v_lshlrev_b32 v3, 3, v3"); g.I(f"v_add_u32 v24, {SY+64}, v3")
    g.I(f"s_lshl_b32 s81, s{sHW}, 2"); g.I(f"s_add_u32 s81, s81, {SY}"); g.I("v_add_u32 v22, s81, v3")
    g.I(f"s_xor_b32 s81, s{sHW}, 1"); g.I("s_lshl_b32 s81, s81, 2"); g.I(f"s_add_u32 s81, s81, {SY}"); g.I("v_mov_b32 v23, s81")
    g.I(f"s_lshl_b32 s81, s{sHW}, 11"); g.I(f"s_add_u32 s81, s81, {R2}"); g.I(f"v_subrev_u32 v25, s{sH1}, v{vTT}"); g.I(f"v_subrev_u32 v25, {R2}, v25"); g.I("v_add_u32 v25, s81, v25")
    def lwrite(off,val):
        g.I(f"v_mov_b32 v26, {val}"); g.I("s_mov_b64 exec, 0xf"); g.ds(f"ds_write_b32 v22, v26 offset:{off}"); g.I("s_mov_b64 exec, -1")
    FL=32
    FR=[32,36,40,44,76,80,84,88]
    ht_issue(3)
    g.wait_vm("ht1"); lwrite(0,2)
    for n in range(8):
        k=0
        for u in range(4):
            for tt in range(2):
                b_=FR[k]; k+=1
                g.ds(f"ds_read_b64_tr_b16 v[{b_}:{b_+1}], v25 offset:{(n%4)*16384+u*4096+tt*1024}",tag="cf")
                g.ds(f"ds_read_b64_tr_b16 v[{b_+2}:{b_+3}], v25 offset:{(n%4)*16384+u*4096+tt*1024+256}",tag="cf")
        g.lg0()
        k=0
        for u in range(4):
            for tt in range(2):
                cs_mfma(FR[k],CA[u%2],(n%4)==0 and u<2 and tt==0); k+=1
        if n%4==3:
            g.nop(12)
            cs_final(CA[0],2 if n<4 else 4); cs_final(CA[1],3 if n<4 else 5)
            lwrite(32,1 if n<4 else 2)
        if 1<=n<=4:
            lspin(g,24,0,n,27)
            ht_issue(n+3)
        if n+2<=7:
            g.wait_vm(f"ht{n+2}"); lwrite(0,n+3)
    g.ts(9)
    g.vm0(" lgkmcnt(0)")
    g.I("s_barrier")
    g.ts(10)
    g.I("s_branch L_ATT")
    g.lab("L_HPUB"); g.vm=[("cond","cpf")]; g.lg=[]
    sPI=73
    g.I(f"s_sub_u32 s{sPI}, s{sHW}, 2")
    g.I("s_waitcnt lgkmcnt(0)")
    g.ts(0)
    if OPT["prio"]: g.I("s_setprio 2")
    g.I("v_mov_b32 v3, 0")
    g.vmem(f"buffer_load_dword v28, v3, {sWS}, 0 offen sc1", tag="nonce")
    g.I("s_load_dwordx2 s[52:53], s[0:1], 40"); g.I("s_load_dwordx2 s[56:57], s[0:1], 16")
    g.I("s_mov_b32 s54, 1409024"); g.I("s_mov_b32 s55, 0x20000"); g.I("s_mov_b32 s58, 524288"); g.I("s_mov_b32 s59, 0x20000")
    setup_common()
    g.I(f"v_lshlrev_b32 v3, 4, v0"); g.I(f"v_add_u32 v3, {CNT}, v3")
    for r_ in range(20,24): g.I(f"v_mov_b32 v{r_}, 0")
    g.I("s_mov_b64 exec, 0xffff"); g.ds("ds_write_b128 v3, v[20:23]"); g.I("s_mov_b64 exec, -1")
    for tile in range(2,6): cs_final(20,tile)
    g.I(f"s_sub_u32 s82, 2, s{sPI}"); g.I(f"s_sub_i32 s83, s{sRB}, s82")
    g.I(f"s_cmp_ge_i32 s83, 0"); g.I(f"s_cselect_b32 s{need}, 1, 0")
    g.I(f"s_xor_b32 s{sDONE}, s{need}, 1"); g.I(f"s_mov_b32 s{sDV}, s{sDONE}")
    g.I(f"s_mul_i32 s{sSL}, s{sPI}, {4*SLOT}")
    g.I(f"s_max_i32 s83, s83, 0")
    g.I(f"s_lshl_b32 s81, s83, 4"); g.I(f"s_add_u32 s81, s81, s{sCS}"); g.I("s_lshl_b32 s81, s81, 7"); g.I(f"s_add_u32 s{sFK}, s81, {FKV}"); g.I(f"s_add_u32 s{sFV}, s81, {FVV}")
    g.I(f"s_lshl_b32 s81, s{sRB}, 2"); g.I(f"s_lshl_b32 s82, s{sPI}, 2"); g.I("s_add_u32 s81, s81, s82"); g.I("s_sub_u32 s81, s81, 8")
    g.I("s_lshl_b32 s81, s81, 4"); g.I(f"s_add_u32 s81, s81, s{sCS}"); g.I(f"s_mul_i32 s81, s81, {SLOTG}"); g.I(f"s_add_u32 s{sSRC}, s81, {KV}")
    g.I(f"s_lshl_b32 s81, s{sRB}, 2"); g.I(f"s_lshl_b32 s82, s{sPI}, 1"); g.I("s_add_u32 s81, s81, s82")
    g.I(f"s_lshl_b32 s{sKVo}, s81, 4"); g.I(f"s_add_u32 s{sKVo}, s{sKVo}, s{sCS}"); g.I(f"s_mul_i32 s{sKVo}, s{sKVo}, {SLOTG}"); g.I(f"s_add_u32 s{sKVo}, s{sKVo}, {KV}")
    g.I(f"s_mul_i32 s{sAHo}, s81, {NSTEP}"); g.I(f"s_lshl_b32 s82, s{sU32}, 1"); g.I(f"s_add_u32 s{sAHo}, s{sAHo}, s82"); g.I(f"s_lshl_b32 s{sAHo}, s{sAHo}, 10"); g.I(f"s_add_u32 s{sAHo}, s{sAHo}, {AH}")
    g.I(f"s_lshl_b32 s81, s{sPI}, 1"); g.I(f"s_add_u32 s81, s81, 8"); g.I(f"s_mul_i32 s81, s81, {SLOT}"); g.I("v_add_u32 v19, s81, v7")
    g.I(f"s_lshl_b32 s81, s{sPI}, 12"); g.I("v_add_u32 v20, s81, v7")
    g.lg0()
    get_tag()
    def exA(): g.I("s_mov_b32 exec_lo, 0x0000ffff"); g.I("s_mov_b32 exec_hi, 0x0000ffff")
    def exB(): g.I("s_mov_b32 exec_lo, 0xffff0000"); g.I("s_mov_b32 exec_hi, 0xffff0000")
    def remote_dma(kind):
        o=0 if kind=="K" else 2048
        for tt in range(4):
            for i in range(2):
                g.I(f"s_add_u32 m0, s{sSL}, {tt*SLOT+o+i*1024}")
                g.I(f"s_add_u32 s82, s{sSRC}, {tt*16*SLOTG+o+i*1024}")
                g.vmem(f"buffer_load_dwordx4 v7, {sWS}, s82 offen sc1 lds", cond=True)
        g.I(f"s_mov_b32 s{sDONE if kind=='K' else sDV}, 1")
    def remote_poll(kind):
        g.I(f"s_load_dword s{8 if kind=='K' else 9}, s[64:65], s{sFK if kind=='K' else sFV} glc")
    def remote_check(kind):
        Lskip=g.newlab("RSK")
        g.I(f"s_cmp_eq_u32 s{sDONE if kind=='K' else sDV}, 1"); g.I(f"s_cbranch_scc1 {Lskip}")
        g.I(f"s_cmp_lg_u32 s{8 if kind=='K' else 9}, s{sTAG}"); g.I(f"s_cbranch_scc1 {Lskip}")
        remote_dma(kind)
        g.lab(Lskip)
    def remote_block(kind,err):
        Lskip=g.newlab("RSK")
        g.I(f"s_cmp_eq_u32 s{sDONE if kind=='K' else sDV}, 1"); g.I(f"s_cbranch_scc1 {Lskip}")
        spoll(g,sFK if kind=="K" else sFV,1,err,29)
        remote_dma(kind)
        g.lab(Lskip)
    def publish(kind):
        for tt in range(2):
            if kind=="K":
                b=PB_+8*tt
                for i in range(2): g.ds(f"ds_read_b128 v[{b+4*i}:{b+4*i+3}], v19 offset:{tt*SLOT+i*1024}",tag=f"pb{tt}")
            elif kind=="V":
                b=PB_+8*tt
                for i in range(2): g.ds(f"ds_read_b128 v[{b+4*i}:{b+4*i+3}], v19 offset:{tt*SLOT+2048+i*1024}",tag=f"pb{tt}")
            else:
                b=PB_+8*tt
                for i in range(2): g.ds(f"ds_read_b128 v[{b+4*i}:{b+4*i+3}], v21 offset:{tt*2048+i*1024}",tag=f"pb{tt}")
        for tt in range(2):
            g.wait_lg(f"pb{tt}")
            if kind=="K":
                g.I(f"s_add_u32 s82, s{sKVo}, {tt*16*SLOTG}")
                for i in range(2): g.vmem(f"buffer_store_dwordx4 v[{PB_+8*tt+4*i}:{PB_+8*tt+4*i+3}], v7, {sWS}, s82 offen offset:{i*1024} sc1",tag="kst")
            elif kind=="V":
                g.I(f"s_add_u32 s82, s{sKVo}, {tt*16*SLOTG+2048}")
                for i in range(2): g.vmem(f"buffer_store_dwordx4 v[{PB_+8*tt+4*i}:{PB_+8*tt+4*i+3}], v7, {sWS}, s82 offen offset:{i*1024} sc1",tag="vst")
            else:
                g.I(f"s_add_u32 s82, s{sAHo}, {tt*NSTEP*1024+2*kind*1024}")
                for i in range(2): g.vmem(f"buffer_store_dwordx4 v[{PB_+8*tt+4*i}:{PB_+8*tt+4*i+3}], v7, {sWS}, s82 offen offset:{i*1024} sc1",tag="hst")
    def touch(srd,nl,reg,vaddr=15,mul=None):
        g.I(f"s_mul_i32 s81, s2, {mul if mul else nl*128}")
        if nl>32: g.I(f"s_mov_b32 exec_hi, {hex((1<<(nl-32))-1)}")
        else: g.I(f"s_mov_b32 exec_hi, 0"); g.I(f"s_mov_b32 exec_lo, {hex((1<<nl)-1)}")
        g.vmem(f"buffer_load_dword v{reg}, v{vaddr}, {srd}, s81 offen ;pf")
        g.I("s_mov_b64 exec, -1")
    def by_pi(k,fn):
        Lq=g.newlab("PI"); g.I(f"s_cmp_eq_u32 s{sPI}, {k}"); g.I(f"s_cbranch_scc0 {Lq}")
        save=list(g.vm); fn(); g.vm=save; g.lab(Lq)
    for it in range(8):
        bar([],it)
        if it==0: g.ts(1)
        kv_stats(it)
        if it==OPT.get('pf0it',4) and OPT["pf0"]:
            by_pi(0,lambda: touch(sW1,43,244))
            def wq():
                g.I("v_lshrrev_b32 v22, 3, v0"); g.I("v_mul_u32_u24 v22, 3072, v22"); g.I("v_and_b32 v23, 7, v0"); g.I("v_lshl_add_u32 v22, v23, 7, v22")
                touch(sWQ,16,245,vaddr=22,mul=2*3072)
            by_pi(1,wq)
        if it==OPT.get('pf1it',6) and OPT["pf1"]:
            by_pi(0,lambda: touch(sW2,43,246)); by_pi(1,lambda: touch(sWO,16,247))
        kv_stats2(it)
    bar([],8)
    g.ts(2)
    g.ts(0,8)
    g.I("v_and_b32 v3, 1, v0"); g.I("v_lshlrev_b32 v3, 3, v3"); g.I(f"s_lshl_b32 s81, s{sPI}, 4"); g.I(f"s_add_u32 s81, s81, {SY+96}"); g.I("v_add_u32 v22, s81, v3")
    g.I(f"s_lshl_b32 s81, s{sPI}, 2"); g.I(f"s_add_u32 s81, s81, {CNT+16}"); g.I("v_mov_b32 v23, s81")
    g.I(f"v_mov_b32 v3, {CNT+20}")
    g.I("v_mov_b32 v30, v3")
    def pmark(val,flagfn):
        g.I(f"v_mov_b32 v26, {val}"); g.ds("ds_write_b32 v23, v26")
        Lq=g.newlab("PI"); g.I(f"s_cmp_eq_u32 s{sPI}, 0"); g.I(f"s_cbranch_scc0 {Lq}")
        save=list(g.vm); lspin(g,30,0,val,31); flagfn(); g.vm=save; g.lab(Lq); g.lg=[]
    Lnz=g.newlab("NOZF")
    g.I(f"s_cmp_eq_u32 s{need}, 1"); g.I(f"s_cbranch_scc1 {Lnz}")
    g.I(f"v_add_u32 v8, s{sSL}, v7")
    for r_ in range(24,28): g.I(f"v_mov_b32 v{r_}, 0")
    for i in range(16): g.ds(f"ds_write_b128 v8, v[24:27] offset:{i*1024}",cond=True)
    g.lab(Lnz)
    g.lg0()
    lspin(g,22,0,1,31,sleep=True); publish("K")
    g.ts(1,8)
    def pub_r():
        Lr=g.newlab("NOR")
        g.I(f"s_cmp_eq_u32 s{sCS}, 0"); g.I(f"s_cbranch_scc0 {Lr}")
        g.I("v_lshlrev_b32 v28, 3, v0"); g.I(f"v_add_u32 v29, {RL}, v28")
        g.I("ds_read_b64 v[40:41], v29"); g.I("s_waitcnt lgkmcnt(0)")
        g.I(f"s_lshl_b32 s82, s{sRB}, 9"); g.I(f"s_add_u32 s82, s82, {STR}")
        g.vmem(f"buffer_store_dwordx2 v[40:41], v28, {sWS}, s82 offen sc1")
        g.lab(Lr)
    def pub_r2():
        g.I(f"v_add_u32 v29, 16, v22"); lspin(g,29,0,1,31,sleep=True); pub_r()
    by_pi(0,pub_r2); g.lg=[]
    lspin(g,22,0,2,31,sleep=True); publish("V")
    g.ts(2,8)
    g.wait_vm("kst"); pmark(1,lambda: flag_store1(g,FKV,16,17))
    g.ts(3,8)
    g.wait_vm("vst"); pmark(2,lambda: flag_store1(g,FVV,16,17))
    g.ts(4,8)
    def tries():
        remote_check("K"); remote_check("V")
    def polls():
        remote_poll("K"); remote_poll("V")
    polls()
    lspin(g,22,0,3,31,sleep=True)
    g.ts(5,8)
    tries()
    g.I(f"v_add_u32 v21, {HST[0]}, v20"); publish(0)
    g.ts(6,8)
    polls()
    g.wait_vm("hst",extra=" lgkmcnt(0)")
    pmark(3,lambda: flag_store16(g,FH,16,17))
    g.ts(7,8)
    tries(); polls()
    lspin(g,22,0,4,31,sleep=True)
    g.ts(8,8)
    tries()
    remote_block("K",0x102)
    g.vm0(" lgkmcnt(0)")
    g.I(f"v_mov_b32 v8, {CNT+12}"); g.I("v_mov_b32 v9, 1")
    g.I("s_mov_b64 exec, 1"); g.I("ds_add_u32 v8, v9"); g.I("s_mov_b64 exec, -1")
    g.I(f"s_mov_b32 s98, s{sDV}")
    g.I(f"v_add_u32 v21, {HST[1]}, v20"); publish(1)
    g.ts(9)
    g.lg0()
    g.ts(9,8)
    g.I("s_barrier")
    g.ts(10,8)
    g.ts(10)
    g.ts(11,8)
    g.lab("L_ATT"); g.vm=[]; g.lg=[]
    g.lx(0)
    pub_remote_block=remote_block; pub_pmark=pmark
    g.I(f"v_mov_b32 v8, {CNT+12}")
    Lk=g.newlab("KSP"); Dk=g.newlab("KSD")
    g.I(f"s_mov_b32 s{sSPIN}, {OPT['spin']}")
    g.lab(Lk)
    g.I("ds_read_b32 v9, v8"); g.I("s_waitcnt lgkmcnt(0)")
    g.I("v_cmp_ne_u32 vcc, 2, v9"); g.I("s_nop 0"); g.I(f"s_cbranch_vccz {Dk}")
    g.I(f"s_sub_u32 s{sSPIN}, s{sSPIN}, 1"); g.I(f"s_cbranch_scc0 {Lk}")
    g.lab(Dk)
    g.lx(1)
    g.ts(3)
    if OPT["prio"]: g.I("s_setprio 3")
    QF=16
    g.I(f"s_lshl_b32 s81, s{sHW}, 11"); g.I(f"s_add_u32 s81, s81, {QL}")
    g.I("v_add_u32 v10, s81, v7")
    g.ds(f"ds_read_b128 v[{QF}:{QF+3}], v10", tag="q"); g.ds(f"ds_read_b128 v[{QF+4}:{QF+7}], v10 offset:1024", tag="q")
    g.I(f"s_mul_i32 s81, s{sHW}, {SLOT}")
    g.I("v_add_u32 v11, s81, v7")
    Lgen=g.newlab("ATG"); Lfin=g.newlab("ATF")
    g.I(f"s_cmp_eq_u32 s{sTM}, 0"); g.I(f"s_cbranch_scc0 {Lgen}")
    def vsync():
        Lnp=g.newlab("NPUB")
        g.I(f"v_mov_b32 v8, {CNT+8}")
        g.I(f"s_cmp_ge_u32 s{sHW}, 2"); g.I(f"s_cbranch_scc0 {Lnp}")
        Lve=g.newlab("VE")
        g.I("s_cmp_eq_u32 s98, 1"); g.I(f"s_cbranch_scc1 {Lve}")
        pub_remote_block("V",0x105)
        g.I("s_waitcnt vmcnt(0)"); g.vm=[]
        g.lab(Lve)
        g.I("v_mov_b32 v9, 1")
        g.I("s_mov_b64 exec, 1"); g.I("ds_add_u32 v8, v9"); g.I("s_mov_b64 exec, -1")
        g.lab(Lnp)
        L=g.newlab("LSP"); D=g.newlab("LSD")
        g.I(f"s_mov_b32 s{sSPIN}, {OPT['spin']}")
        g.lab(L)
        g.I("ds_read_b32 v9, v8"); g.I("s_waitcnt lgkmcnt(0)"); g.lg=[]
        g.I("v_cmp_ne_u32 vcc, 2, v9"); g.I("s_nop 0"); g.I(f"s_cbranch_vccz {D}")
        g.I(f"s_sub_u32 s{sSPIN}, s{sSPIN}, 1"); g.I(f"s_cbranch_scc0 {L}")
        g.lab(D)
    def fh1():
        Lnp=g.newlab("NPB")
        g.I(f"s_cmp_ge_u32 s{sHW}, 2"); g.I(f"s_cbranch_scc0 {Lnp}")
        lgs=list(g.lg)
        g.I("s_waitcnt vmcnt(0)")
        g.I("s_lshl_b32 s81, s73, 2"); g.I(f"s_add_u32 s81, s81, {CNT+16}"); g.I("v_mov_b32 v12, s81"); g.I(f"v_mov_b32 v13, {CNT+20}")
        g.I("v_mov_b32 v14, 4"); g.I("ds_write_b32 v12, v14")
        Lq=g.newlab("PI"); g.I("s_cmp_eq_u32 s73, 0"); g.I(f"s_cbranch_scc0 {Lq}")
        lspin(g,13,0,4,14); flag_store16(g,FH+0x8000,14,15); g.lab(Lq)
        g.lab(Lnp); g.lg=lgs
    lg=list(g.lg); vm=list(g.vm)
    OA=attention(g,False,QF,BD,BO,sTM,vsync,fh1)
    g.I(f"s_branch {Lfin}")
    g.lab(Lgen); g.lg=lg; g.vm=vm
    attention(g,True,QF,BD,BO,sTM,vsync,fh1)
    g.lab(Lfin)
    g.nop(12)
    g.lta_dump()
    g.lx(5)
    g.ts(14,8)
    g.ts(5)
    g.I(f"v_rcp_f32 v72, v{OA[0]+8}"); g.I(f"v_rcp_f32 v73, v{OA[1]}"); g.I("s_nop 0")
    for e in range(8):
        g.I(f"v_mul_f32 v{OA[0]+e}, v{OA[0]+e}, v72"); g.I(f"v_mul_f32 v{OA[1]+8+e}, v{OA[1]+8+e}, v73")
    for e in range(4):
        g.I(f"v_cvt_pk_bf16_f32 v{76+e}, v{OA[0]+2*e}, v{OA[0]+2*e+1}")
        g.I(f"v_cvt_pk_bf16_f32 v{80+e}, v{OA[1]+8+2*e}, v{OA[1]+8+2*e+1}")
    g.I(f"s_lshl_b32 s81, s{sRB}, 2"); g.I(f"s_add_u32 s81, s81, s{sHW}"); g.I(f"s_mul_i32 s81, s81, {NSTEP}")
    g.I(f"s_lshl_b32 s82, s{sCS}, 1"); g.I("s_add_u32 s81, s81, s82"); g.I("s_add_u32 s81, s81, 86")
    g.I("s_lshl_b32 s81, s81, 10"); g.I(f"s_add_u32 s81, s81, {AH}")
    g.vmem(f"buffer_store_dwordx4 v[76:79], v7, {sWS}, s81 offen sc1")
    g.vmem(f"buffer_store_dwordx4 v[80:83], v7, {sWS}, s81 offen offset:1024 sc1")
    g.lx(6)
    g.vm0()
    g.lx(7)
    g.I(f"v_mov_b32 v8, {CNT+4}"); g.I("v_mov_b32 v9, 1")
    g.I("s_mov_b64 exec, 1")
    g.I("ds_add_rtn_u32 v10, v8, v9"); g.I("s_waitcnt lgkmcnt(0)")
    g.I("v_readfirstlane_b32 s81, v10"); g.I("s_mov_b64 exec, -1")
    Lno=g.newlab("NOFO")
    g.I("s_cmp_eq_u32 s81, 3"); g.I(f"s_cbranch_scc0 {Lno}")
    flag_store16(g,FO,3,4)
    g.lab(Lno)
    g.lx(8)
    g.lta_dump(final=True)
    g.ts(6)
    g.ts(15,8)
    g.I(f"s_or_b32 s81, s2, s{sHW}")
    g.I("s_cmp_eq_u32 s81, 0"); g.I("s_cbranch_scc0 L_END")
    g.I("v_lshrrev_b32 v3, 2, v0"); g.I("v_lshlrev_b32 v3, 11, v3"); g.I("v_and_b32 v4, 3, v0"); g.I("v_lshl_add_u32 v3, v4, 4, v3")
    g.I(f"v_add_u32 v3, {FH}, v3")
    Ln=g.newlab("NB"); Dn=g.newlab("NBD")
    g.I(f"s_mov_b32 s{sSPIN}, {OPT['spin']}")
    g.lab(Ln)
    g.vmem(f"buffer_load_dwordx4 v[12:15], v3, {sWS}, 0 offen sc1")
    g.I("s_waitcnt vmcnt(0)")
    for k in range(4): g.I(f"v_xor_b32 v{12+k}, s{sTAG}, v{12+k}")
    g.I("v_or_b32 v12, v12, v13"); g.I("v_or_b32 v14, v14, v15"); g.I("v_or_b32 v12, v12, v14")
    g.I("v_cmp_ne_u32 vcc, 0, v12"); g.I("s_nop 0"); g.I(f"s_cbranch_vccz {Dn}")
    g.I(f"s_sub_u32 s{sSPIN}, s{sSPIN}, 1"); g.I(f"s_cbranch_scc0 {Ln}")
    g.lab(Dn)
    g.I("v_mov_b32 v3, 0"); g.I(f"v_mov_b32 v5, s{sTAG}")
    g.I("s_mov_b64 exec, 1")
    g.vmem(f"buffer_store_dword v5, v3, {sWS}, 0 offen sc1")
    g.I("s_waitcnt vmcnt(0)")
    g.I("s_branch L_END")

def gwave(g):
    g.lab("L_GWAVE"); g.tsreg=5
    XF=128
    ACC=[64,80,96,112]
    vXa=8; vWkv=12; vWt=13; vL16=7; vSL=51
    g.I("s_load_dwordx2 s[52:53], s[0:1], 40"); g.I("s_load_dwordx2 s[56:57], s[0:1], 16")
    g.I("s_load_dwordx2 s[60:61], s[0:1], 48"); g.I("s_load_dwordx2 s[68:69], s[0:1], 56")
    g.I("v_lshlrev_b32 v7, 4, v0")
    for base,size in ((52,1409024),(56,524288),(60,2097152)):
        g.I(f"s_mov_b32 s{base+2}, {size}"); g.I(f"s_mov_b32 s{base+3}, 0x20000")
    g.I("v_and_b32 v2, 31, v0")
    g.I("v_lshrrev_b32 v3, 3, v2"); g.I("v_lshlrev_b32 v3, 10, v3"); g.I("v_and_b32 v4, 7, v2"); g.I("v_lshl_add_u32 v3, v4, 7, v3")
    g.I("v_bfe_u32 v4, v0, 1, 3"); g.I("v_lshrrev_b32 v5, 5, v0"); g.I("v_xor_b32 v4, v4, v5"); g.I("v_lshl_add_u32 v3, v4, 4, v3")
    g.I(f"s_lshl_b32 s72, s{sW}, 12"); g.I(f"v_add_u32 v{vXa}, s72, v3")
    for t in range(1,4): g.I(f"v_xor_b32 v{vXa+t}, {t<<5}, v{vXa}")
    g.I("v_lshrrev_b32 v3, 5, v0"); g.I("v_lshlrev_b32 v3, 3, v3"); g.I("v_bfe_u32 v4, v0, 2, 2"); g.I("v_add_u32 v3, v3, v4")
    g.I("v_lshlrev_b32 v3, 6, v3"); g.I("v_bfe_u32 v4, v0, 4, 1"); g.I("v_lshl_add_u32 v3, v4, 5, v3")
    g.I("v_and_b32 v4, 3, v0"); g.I("v_lshl_add_u32 v3, v4, 3, v3")
    g.I(f"v_add_u32 v{vWkv}, 16384, v3"); g.I(f"v_add_u32 v{vWt}, {R2}, v3")
    g.I(f"v_lshlrev_b32 v{vSL}, 4, v2"); g.I(f"v_add_u32 v{vSL}, {SL}, v{vSL}")
    g.I("v_lshrrev_b32 v6, 5, v0"); g.I("v_add_u32 v6, -1, v6")
    g.I(f"s_add_u32 s73, s{sW}, 8"); g.I(f"s_mul_i32 s73, s73, {SLOT}"); g.I("v_add_u32 v14, s73, v7")
    g.I(f"s_lshl_b32 s72, s{sW}, 7"); g.I("v_lshlrev_b32 v4, 2, v2"); g.I("v_add_u32 v4, s72, v4"); g.I(f"v_add_u32 v4, {NM}, v4")
    g.I("v_lshrrev_b32 v3, 5, v0"); g.I("v_lshlrev_b32 v3, 4, v3"); g.I(f"s_add_u32 s72, s72, {RL}"); g.I("v_add_u32 v3, s72, v3")
    g.I(f"s_lshl_b32 s76, s{sW}, 11"); g.I(f"s_add_u32 s76, s76, {HST[0]}"); g.I("v_add_u32 v15, s76, v7")
    g.I("v_and_b32 v1, 1, v0"); g.I("v_lshlrev_b32 v1, 2, v1"); g.I(f"s_lshl_b32 s76, s{sW}, 3"); g.I(f"s_add_u32 s76, s76, {SY}"); g.I("v_add_u32 v1, s76, v1")
    g.I(f"s_and_b32 s72, s{sIDX}, 3")
    g.I(f"s_lshl_b32 s{sA3}, s{sJ}, 3"); g.I("s_lshl_b32 s73, s72, 1"); g.I(f"s_add_u32 s{sA3}, s{sA3}, s73")
    g.I(f"s_lshr_b32 s{sCT}, s{sIDX}, 2"); g.I(f"s_lshr_b32 s{sRB3}, s{sA3}, 2")
    g.I("s_waitcnt lgkmcnt(0)")
    g.I("v_mov_b32 v5, 0")
    g.vmem(f"buffer_load_dword v28, v5, {sWS}, 0 offen sc1", tag="nonce")
    sRG=82; sA=[83,84,85]; sWb=[86,87,88]; sFH=89; sFO=94; sXo=78
    g.I(f"s_lshl_b32 s{sRG}, s{sW}, 14"); g.I(f"s_add_u32 s{sRG}, s{sRG}, {RING}")
    g.I(f"s_lshr_b32 s95, s{sW}, 1"); g.I(f"s_and_b32 s96, s{sW}, 1")
    g.I("s_mul_i32 s97, s95, 6"); g.I("s_add_u32 s97, s97, s96")
    g.I("s_lshl_b32 s98, s95, 2"); g.I("s_add_u32 s98, s98, s96")
    g.I(f"s_mul_i32 s99, s{sA3}, {NSTEP}")
    for k,src in ((0,97),(1,98)):
        g.I(f"s_add_u32 s{sA[k]}, s99, s{src}"); g.I(f"s_lshl_b32 s{sA[k]}, s{sA[k]}, 10"); g.I(f"s_add_u32 s{sA[k]}, s{sA[k]}, {AH}")
        g.I(f"s_lshl_b32 s{sWb[k]}, s{src}, 14")
    g.I(f"s_add_u32 s{sA[2]}, s99, s{sW}"); g.I(f"s_add_u32 s{sA[2]}, s{sA[2]}, 86"); g.I(f"s_lshl_b32 s{sA[2]}, s{sA[2]}, 10"); g.I(f"s_add_u32 s{sA[2]}, s{sA[2]}, {AH}")
    g.I(f"s_lshl_b32 s{sWb[2]}, s{sW}, 14")
    g.I(f"s_lshl_b32 s{sFH}, s{sRB3}, 4"); g.I(f"s_lshl_b32 s95, s{sCT}, 1"); g.I(f"s_add_u32 s{sFH}, s{sFH}, s95"); g.I(f"s_and_b32 s95, s{sIDX}, 1"); g.I(f"s_add_u32 s{sFH}, s{sFH}, s95")
    g.I(f"s_lshl_b32 s{sFH}, s{sFH}, 7"); g.I(f"s_add_u32 s{sFO}, s{sFH}, {FO}"); g.I(f"s_add_u32 s{sFH}, s{sFH}, {FH}")
    sKVo=74; sAHo=93
    g.I(f"s_lshl_b32 s72, s{sRB}, 2"); g.I(f"s_add_u32 s72, s72, s{sW}")
    g.I(f"s_lshl_b32 s{sKVo}, s72, 4"); g.I(f"s_add_u32 s{sKVo}, s{sKVo}, s{sCS}"); g.I(f"s_mul_i32 s{sKVo}, s{sKVo}, {SLOT}"); g.I(f"s_add_u32 s{sKVo}, s{sKVo}, {KV}")
    g.I(f"s_mul_i32 s{sAHo}, s72, {NSTEP}"); g.I(f"s_lshl_b32 s73, s{sU32}, 1"); g.I(f"s_add_u32 s{sAHo}, s{sAHo}, s73"); g.I(f"s_lshl_b32 s{sAHo}, s{sAHo}, 10"); g.I(f"s_add_u32 s{sAHo}, s{sAHo}, {AH}")
    g.wait_vm("cpf","nonce")
    g.I(f"v_readfirstlane_b32 s{sTAG}, v28"); g.I("s_nop 1")
    g.I(f"s_add_u32 s{sTAG}, s{sTAG}, {TAGC}"); g.I(f"s_mov_b32 s24, s{sTAG}"); g.I(f"s_mov_b32 s25, s{sTAG}")
    g.ts(0)
    steps=[]
    WKV=[16,24,32,40]
    for it in range(8):
        st=KVB(it); off0 = st if st<R2 else st-R2
        for t in range(4):
            n=it*4+t; wb=WKV[n%4]; xf=XF+4*n
            rd=[(f"ds_read_b128 v[{xf}:{xf+3}], v{vXa+t} offset:{off0}")]
            for u in range(2):
                off=off0+u*4096+t*1024
                rd.append(f"ds_read_b64_tr_b16 v[{wb+4*u}:{wb+4*u+1}], v{vWkv} offset:{off}")
                rd.append(f"ds_read_b64_tr_b16 v[{wb+4*u+2}:{wb+4*u+3}], v{vWkv} offset:{off+256}")
            X=f"v[{xf}:{xf+3}]"; a0=ACC[0]; a1=ACC[1]
            mf=[f"v_mfma_f32_32x32x16_bf16 v[{a0}:{a0+15}], v[{wb}:{wb+3}], {X}, {'0' if n==0 else f'v[{a0}:{a0+15}]'}",
                f"v_mfma_f32_32x32x16_bf16 v[{a1}:{a1+15}], {X}, v[{wb+4}:{wb+7}], {'0' if n==0 else f'v[{a1}:{a1+15}]'}"]
            GR=112
            post=[f"v_mfma_f32_32x32x16_bf16 v[{GR}:{GR+15}], {X}, {X}, {'0' if n==0 else f'v[{GR}:{GR+15}]'}"]
            pre_rd=[]
            if t==0 and it==3:
                pre_rd=[f"v_add_u32 v{vXa+k}, {R2}, v{vXa+k}" for k in range(4)]+[f"v_add_u32 v{vWkv}, {R2}, v{vWkv}"]
            if t==0 and it==5:
                pre_rd=[f"v_subrev_u32 v{vXa+k}, {R2}, v{vXa+k}" for k in range(4)]+[f"v_subrev_u32 v{vWkv}, {R2}, v{vWkv}"]
            steps.append(dict(rd=rd,mf=mf,post=post,pre_rd=pre_rd,bar=(t==0),lag=3,hold=0,idx=it))
    WT=[32,36,40,16,20,24,28]
    tacc=[ACC[2],ACC[3],ACC[0],ACC[1]]
    cnt=0
    for P in range(2):
        for n4 in range(4):
            for kk in range(2):
                for t in range(4):
                    for y in range(2):
                        T=2*P+y; sx=(2*n4+kk)*4+t
                        wb=WT[cnt%7]; off=n4*16384+(kk*2+y)*4096+t*1024
                        rd=[f"ds_read_b64_tr_b16 v[{wb}:{wb+1}], v{vWt} offset:{off}", f"ds_read_b64_tr_b16 v[{wb+2}:{wb+3}], v{vWt} offset:{off+256}"]
                        a=tacc[T]; xf=XF+4*sx
                        mf=[f"v_mfma_f32_32x32x16_bf16 v[{a}:{a+15}], v[{wb}:{wb+3}], v[{xf}:{xf+3}], {'0' if sx==0 else f'v[{a}:{a+15}]'}"]
                        j=cnt%64
                        steps.append(dict(rd=rd,mf=mf,post=[],pre_rd=[],bar=(cnt%16==0),lag=OPT.get('lag',6),hold=OPT.get('hold',0),idx=8+cnt//16,T=P,s=j))
                        cnt+=1
    CX=44; RI=48; SJ4=52; CW=56
    fill={}
    def I(t): return lambda: g.I(t)
    def DS(t,tag=None): return lambda: g.ds(t,tag)
    def VM(t,tag=None,cond=False): return (lambda: g.vmem(t,tag,cond)) if not OPT.get("nogst") else None
    def WL(*tg): return lambda: g.wait_lg(*tg)
    SKIP=None
    GAP=OPT.get("gap",18)
    def sj_read(tile,reg): return [DS(f"ds_read_b128 v[{reg}:{reg+3}], v{vSL} offset:{tile*512}",f"sj{tile}")]
    def corr_prep(tile,reg=None):
        s_=reg if reg is not None else SJ4; w=CW
        return [WL(f"sj{tile}"), I(f"v_add_f32 v{s_}, v{s_}, v{s_+1}"), I(f"v_add_f32 v{s_+2}, v{s_+2}, v{s_+3}"), I(f"v_add_f32 v{s_}, v{s_}, v{s_+2}"),
                I(f"v_and_b32 v{s_}, v6, v{s_}"), I(f"v_cvt_pk_bf16_f32 v60, v{s_}, v{s_}"), I("v_and_b32 v61, 0xffff0000, v60"),
                I(f"v_sub_f32 v62, v{s_}, v61"), I("v_cvt_pk_bf16_f32 v63, v62, v62"), I("v_and_b32 v63, 0xffff0000, v63"),
                I("v_sub_f32 v62, v62, v63"), I(f"v_cvt_pk_bf16_f32 v{w}, v61, v63"), I(f"v_cvt_pk_bf16_f32 v{w+1}, v62, 0"), I("s_nop 1")]
    def corr_mfma(a,normal):
        W=f"v[{CW}:{CW+3}]"; X=f"v[{CX}:{CX+3}]"
        return [I(f"v_mfma_f32_32x32x16_bf16 v[{a}:{a+15}], {X if normal else W}, {W if normal else X}, v[{a}:{a+15}]")]
    GR=112
    a1,a2=49,50
    diag=[]
    for lvl,bit in enumerate((0,1,3,4)): diag.append(f"v_bfe_i32 v{60+lvl}, v0, {bit}, 1")
    diag+=["v_bfe_u32 v52, v0, 2, 1","v_lshrrev_b32 v53, 5, v0","v_xor_b32 v52, v52, v53","v_add_u32 v52, -1, v52","s_nop 4"]
    n=16
    for lvl in range(4):
        n//=2
        for k in range(n): diag.append(f"v_bfi_b32 v{GR+k}, v{60+lvl}, v{GR+2*k+1}, v{GR+2*k}")
    diag+=[f"v_and_b32 v{a2}, v52, v{GR}", f"v_mov_b32 v61, v{a2}", f"v_mov_b32 v{CX+2}, 0", f"v_mov_b32 v{CX+3}, 0",
           f"v_permlane32_swap_b32 v{a2}, v61", f"v_mov_b32 v{CW+2}, 0", f"v_add_f32 v{a2}, v{a2}, v61", f"v_mov_b32 v{CW+3}, 0"]
    diag+=["v_lshrrev_b32 v8, 3, v0","v_lshlrev_b32 v8, 10, v8","v_and_b32 v9, 7, v0","v_bfe_u32 v10, v0, 4, 1","v_lshlrev_b32 v10, 2, v10","v_xor_b32 v10, v9, v10",
           "v_lshl_add_u32 v10, v10, 4, v8", f"s_lshl_b32 s72, s{sCT}, 7", "v_add_u32 v10, s72, v10",
           f"s_lshl_b32 s72, s{sW}, 13", "v_add_u32 v8, s72, v8", "v_lshl_add_u32 v11, v9, 4, v8",
           "v_lshrrev_b32 v8, 5, v0","v_lshlrev_b32 v8, 2, v8","v_bfe_u32 v9, v0, 2, 2","v_add_u32 v8, v8, v9","v_lshlrev_b32 v8, 7, v8",
           "v_bfe_u32 v9, v0, 3, 1","v_lshl_add_u32 v8, v9, 6, v8","v_bfe_u32 v9, v0, 4, 1","v_lshl_add_u32 v8, v9, 5, v8",
           "v_and_b32 v9, 3, v0","v_lshl_add_u32 v8, v9, 3, v8", f"v_add_u32 v12, s{sRG}, v8"]
    stf0=[DS(f"ds_read_b32 v{a1}, v4","st")]+sj_read(0,SJ4)
    stf=[SKIP]*3
    aK=ACC[0]; aV=ACC[1]
    RVR=aK+8
    st2=[WL("st"),
          I(f"v_mul_f32 v{a1}, 0x3b000000, v{a1}"), I(f"v_mul_f32 v{a2}, 0x3b000000, v{a2}"),
          I(f"v_fma_f32 v{a2}, -v{a1}, v{a1}, v{a2}"), I(f"v_cvt_pk_bf16_f32 v{CX}, -v{a1}, -v{a1}"), I(f"v_max_f32 v{a2}, 0, v{a2}"),
          I(f"v_mov_b32 v{CX+1}, v{CX}"), I(f"v_cvt_pk_bf16_f32 v{a2}, v{a2}, v{a2}"),
          I(f"v_and_b32 v{a2}, 0xffff0000, v{a2}"),
          I(f"v_add_f32 v{a2}, 0x3727c5ac, v{a2}"), I(f"v_cvt_pk_bf16_f32 v{a2}, v{a2}, v{a2}"), I(f"v_and_b32 v{a2}, 0xffff0000, v{a2}"),
          I(f"v_sqrt_f32 v{a2}, v{a2}"), I("s_nop 0"), I(f"v_cvt_pk_bf16_f32 v{a2}, v{a2}, v{a2}"), I(f"v_and_b32 v{a2}, 0xffff0000, v{a2}"),
          I(f"v_rcp_f32 v{RI}, v{a2}"), I("s_nop 0"),
          DS(f"ds_write_b32 v4, v{RI} offset:{RL-NM}","rlw")]
    def rvload(q0,tag): return [DS(f"ds_read_b128 v[{RVR+4*q}:{RVR+4*q+3}], v3 offset:{(q0+q)*32}",tag) for q in range(2)]
    kmul=[I(f"v_mul_f32 v{aK+r}, v{aK+r}, v{RI}") for r in range(16)]
    kcvt=[I(f"v_cvt_pk_bf16_f32 v{aK+e}, v{aK+2*e}, v{aK+2*e+1}") for e in range(8)]
    kst=[]
    for hh in range(2):
        kst.append(DS(f"ds_write_b128 v14, v[{aK+4*hh}:{aK+4*hh+3}] offset:{hh*1024}","kw"))
    vmulA=[WL("rv0")]+[I(f"v_mul_f32 v{aV+r}, v{aV+r}, v{RVR+r}") for r in range(8)]
    vmulB=[WL("rv1")]+[I(f"v_mul_f32 v{aV+8+r}, v{aV+8+r}, v{RVR+r}") for r in range(8)]
    vcvtA=[I(f"v_cvt_pk_bf16_f32 v{aV+e}, v{aV+2*e}, v{aV+2*e+1}") for e in range(4)]
    vcvtB=[I(f"v_cvt_pk_bf16_f32 v{aV+e}, v{aV+2*e}, v{aV+2*e+1}") for e in range(4,8)]
    vst=[DS(f"ds_write_b128 v14, v[{aV+4*half}:{aV+4*half+3}] offset:{2048+half*1024}","vw") for half in range(2)]
    def atomic(L):
        def f():
            for x in L:
                if x is not None: x()
        return [f]
    def mark(val): return atomic([I(f"v_mov_b32 v5, {val}"), DS("ds_write_b32 v1, v5 offset:96")])
    def chk(vaddr,off,N): return [lambda: lspin(g,vaddr,off,N,8)]
    def chk_prefill():
        g.I(f"s_lshr_b32 s76, s{sW}, 1"); g.I("s_lshl_b32 s76, s76, 2"); g.I(f"s_add_u32 s76, s76, {CNT+24}"); g.I("v_mov_b32 v9, s76")
        lspin(g,9,0,1,8)
    fill[0]=(stf+st2+corr_prep(0)+corr_mfma(aK,False)+sj_read(1,SJ4)+[SKIP]*12+kmul+kcvt+rvload(0,"rv0")+kst+mark(1)
             +corr_prep(1)+corr_mfma(aV,True)+[SKIP]*12+vmulA+rvload(2,"rv1")+vcvtA+[SKIP]*10+vmulB+vcvtB+vst+mark(2))
    def hep(T):
        a=tacc[T]
        L=sj_read(2+T,SJ4)+[SKIP]*GAP+corr_prep(2+T)+corr_mfma(a,False)+[SKIP]*13
        L+=[I(f"v_max_f32 v{a+r}, 0, v{a+r}") for r in range(16)]
        L+=[I(f"v_cvt_pk_bf16_f32 v{a+e}, v{a+2*e}, v{a+2*e+1}") for e in range(8)]
        if T<2:
            for half in range(2):
                L.append(DS(f"ds_write_b128 v15, v[{a+4*half}:{a+4*half+3}] offset:{(HST[T]-HST[0])+half*1024}",f"hw{T}"))
        else:
            def cond_store():
                Ls=g.newlab("NOT2")
                g.I(f"s_cmp_eq_u32 s{sNT}, 3"); g.I(f"s_cbranch_scc0 {Ls}")
                g.I(f"s_add_u32 s96, s{sAHo}, 4096")
                for half in range(2):
                    g.vmem(f"buffer_store_dwordx4 v[{a+4*half}:{a+4*half+3}], v7, {sWS}, s96 offen offset:{half*1024} sc1",tag="hst2",cond=True)
                g.lab(Ls)
            L.append(cond_store)
        return L
    fill[1]=chk(1,32,1)+hep(0)+mark(3)+hep(1)+mark(4)
    N=len(steps); rd=0; ex=0; passed=set(); fq=[]
    rq=[]
    defer=[False]
    def issue(n):
        for r_ in steps[n]["pre_rd"]: g.I(r_)
        for r_ in steps[n]["rd"]:
            if defer[0]: rq.append((r_,f"s{n}"))
            else: g.ds(r_,tag=f"s{n}")
    def flush_rq(k=99):
        while rq and k>0:
            r_,t_=rq.pop(0); g.ds(r_,tag=t_); k-=1
    def try_issue():
        nonlocal rd
        budget=2
        while rd<N and rd-ex<steps[rd]["lag"] and budget>0:
            if steps[rd]["bar"] and rd not in passed:
                if rd-ex<=(0 if rd==32 else steps[rd]["lag"]-steps[rd]["hold"]):
                    idx=steps[rd]["idx"]
                    if rd==32:
                        for t_ in diag: g.I(t_)
                        g.lg0()
                    if idx>8:
                        g.wait_lg(f"lp{idx}")
                        g.lts(idx-8)
                        lspin(g,1,0,idx-8+1,2,first_done=True)
                        g.lts(idx)
                        passed.add(rd)
                        issue(rd); rd+=1; budget-=1
                        continue
                    g.ts(idx,2)
                    if idx>=8: g.ts(idx-8,3)
                    if idx>=8: g.lts(idx-8)
                    g.I("s_barrier"); passed.add(rd)
                    if idx>=8: g.lts(idx)
                    if idx>=8: g.ts(idx,3)
                    if idx==8:
                        for f_ in stf0: f_()
                    if idx==8: g.ts(2)
                    if idx==0: g.ts(1)
                else: break
            if rd+3<N and steps[rd+3]["bar"] and steps[rd+3]["idx"]>8:
                g.ds(f"ds_read_b32 v2, v1", tag=f"lp{steps[rd+3]['idx']}")
            issue(rd); rd+=1; budget-=1
    while ex<N:
        st=steps[ex]
        if rd<=ex: try_issue()
        if "T" in st and st["s"]==0: fq+=fill[st["T"]]
        if "T" in st and st["T"]==1 and st["s"]==OPT.get("h7b",56):
            lspin(g,1,32,2,8)
            fq[:0]=sj_read(5,SJ4)+[SKIP]*9+corr_prep(5)
        g.wait_lg(f"s{ex}")
        if "T" in st and (ex-32)%16==15 and ex<N-1:
            g.I(f"v_mov_b32 v5, {(ex-32)//16+1}"); g.ds("ds_write_b32 v1, v5 offset:64")
        if OPT["ts"]==6 and ex>=32+OPT.get("st0",0) and (ex-32-OPT.get("st0",0))%OPT.get("sts",4)==0 and (ex-32-OPT.get("st0",0))//OPT.get("sts",4)<16:
            i_=(ex-32-OPT.get("st0",0))//OPT.get("sts",4)
            g.I(f"s_memtime s[{g.LP[i_]}:{g.LP[i_]+1}]")
        if "T" not in st and ex+1<32 and not (rd<N and steps[rd]["bar"] and rd not in passed):
            ex+=1; defer[0]=True; try_issue(); defer[0]=False; ex-=1
            ms=st["mf"]+st["post"]
            for m in ms:
                g.I(m); flush_rq(2)
            flush_rq()
            ex+=1
            continue
        for m in st["mf"]: g.I(m)
        for m in st["post"]: g.I(m)
        ex+=1
        try_issue()
        if "T" in st:
            rem=N-ex+1
            k=OPT["nfill0"] if st["T"]==0 else OPT["nfill1"]
            if OPT.get("nofill"): k=0
            while k>0 and fq:
                f=fq.pop(0)
                if f is not None: f()
                k-=1
    for f in fq:
        if f is not None: f()
        else: g.I("s_nop 0")
    aQ=tacc[3]
    for f in corr_mfma(aQ,False):
        if f is not None: f()
    g.I("v_mov_b32 v60, 0x3eb8aa3b"); g.I(f"v_mul_f32 v60, v{RI}, v60")
    g.I(f"s_lshl_b32 s72, s{sW}, 11"); g.I(f"s_add_u32 s72, s72, {QL}"); g.I("v_add_u32 v5, s72, v7")
    g.nop(9)
    for r in range(16): g.I(f"v_mul_f32 v{aQ+r}, v{aQ+r}, v60")
    for e in range(8): g.I(f"v_cvt_pk_bf16_f32 v{aQ+e}, v{aQ+2*e}, v{aQ+2*e+1}")
    for hh in range(2): g.ds(f"ds_write_b128 v5, v[{aQ+4*hh}:{aQ+4*hh+3}] offset:{hh*1024}")
    g.lg0()
    g.ts(9)
    g.I("s_barrier")
    g.lts_dump()
    g.ts(3)
    PF=OPT["pf3"]; NS=8
    AHR=128; WSR=[16,24]; PA=192; vWd=10; vWr=[12,9]; XR=96; RR=104
    sT=80
    NH=22; NO=8; NT=NH+NO
    def stepinfo(i):
        if i>=NH: return (2, 4*(i-NH), 3)
        c = 0 if i<8 else (1 if i<16 else 2); ii = i-8*c
        if ii<=5: return (0, 2*(6*ii+c), c)
        return (1, 2*(11+4*ii+c), c)
    def w_issue1(i,k):
        kind,ks,c=stepinfo(i); srd=sW2 if kind<2 else sWO
        g.I(f"s_add_u32 m0, s{sRG}, {(i%NS)*2048+k*1024}")
        g.I(f"s_add_u32 s{sT}, s{sWb[kind]}, {ks*16384+k*8192}")
        g.vmem(f"buffer_load_dwordx4 v{vWd}, {srd}, s{sT} offen lds", tag=f"w{i}")
    def a_issue1(i,k):
        kind,ks,c=stepinfo(i); b=AHR+(i%8)*8+4*k
        g.I(f"s_add_u32 s{sT}, s{sA[kind]}, {ks*1024+k*NSTEP*1024}")
        g.vmem(f"buffer_load_dwordx4 v[{b}:{b+3}], v{vL16}, {sWS}, s{sT} offen sc1", tag=f"a{i}")
    def w_issue(i): w_issue1(i,0); w_issue1(i,1)
    def a_issue(i): a_issue1(i,0); a_issue1(i,1)
    spoll_issue(g,sFH,16)
    g.I(f"v_xor_b32 v{vWr[1]}, 64, v{vWr[0]}")
    for i in range(PF): w_issue(i)
    spoll(g,sFH,16,0x201,13,issued=True)
    g.ts(4)
    for i in range(PF): a_issue(i)
    g.I("v_and_b32 v5, 31, v0"); g.I("v_lshlrev_b32 v5, 2, v5"); g.I(f"s_lshl_b32 s81, s{sA3}, 7"); g.I(f"s_add_u32 s81, s81, {STR}")
    g.vmem(f"buffer_load_dword v{RR}, v5, {sWS}, s81 offen sc1", tag="rr")
    g.vmem(f"buffer_load_dword v{RR+1}, v5, {sWS}, s81 offen offset:128 sc1", tag="rr")
    g.I(f"s_lshl_b32 s{sXo}, s{sA3}, 15"); g.I(f"s_lshl_b32 s81, s{sCT}, 7"); g.I(f"s_add_u32 s{sXo}, s{sXo}, s81"); g.I(f"s_add_u32 s{sXo+1}, s{sXo}, 32768")
    g.vmem(f"buffer_load_dwordx4 v[{XR}:{XR+3}], v11, {sX}, s{sXo} offen", tag="xr")
    g.vmem(f"buffer_load_dwordx4 v[{XR+4}:{XR+7}], v11, {sX}, s{sXo+1} offen", tag="xr")
    def fh2_publish():
        g.wait_vm("hst2")
        g.I(f"v_mov_b32 v3, {CNT}"); g.I("v_mov_b32 v4, 1")
        g.I("s_mov_b64 exec, 1")
        g.I("ds_add_rtn_u32 v5, v3, v4"); g.I("s_waitcnt lgkmcnt(0)"); g.lg=[]
        g.I("v_readfirstlane_b32 s81, v5"); g.I("s_mov_b64 exec, -1")
        Lno=g.newlab("NOFH")
        g.I("s_cmp_eq_u32 s81, 3"); g.I(f"s_cbranch_scc0 {Lno}")
        flag_store16(g,FH+0x10000,3,4,st=96)
        g.lab(Lno)
    def w_read(i):
        slot=i%NS; ws_=WSR[i%2]
        for tn in range(2):
            g.ds(f"ds_read_b64_tr_b16 v[{ws_+4*tn}:{ws_+4*tn+1}], v{vWr[tn]} offset:{slot*2048}",tag=f"r{i}")
            g.ds(f"ds_read_b64_tr_b16 v[{ws_+4*tn+2}:{ws_+4*tn+3}], v{vWr[tn]} offset:{slot*2048+1024}",tag=f"r{i}")
    def p3m(i,tn,ti):
        ws_=WSR[i%2]; b=AHR+(i%8)*8; a=PA+(tn*2+ti)*16
        g.I(f"v_mfma_f32_32x32x16_bf16 v[{a}:{a+15}], v[{ws_+4*tn}:{ws_+4*tn+3}], v[{b+4*ti}:{b+4*ti+3}], {'0' if i==0 else f'v[{a}:{a+15}]'}")
    GAP=6
    for f in hep(2):
        if f is not None: f()
        else: g.I("s_nop 0")
    f3=[]
    fin=[I("v_and_b32 v2, 31, v0"), I("v_lshlrev_b32 v3, 8, v2"), I(f"v_add_u32 v3, s{sRG}, v3"), I("v_and_b32 v4, 7, v0"), I("v_lshrrev_b32 v5, 5, v0")]
    for q in range(4): fin+=[I(f"v_add_u32 v6, {2*q}, v5"), I("v_xor_b32 v6, v6, v4"), I(f"v_lshl_add_u32 v{32+q}, v6, 4, v3")]
    fin+=[I(f"s_lshl_b32 s81, s{sW}, 3"), I("v_lshrrev_b32 v3, 3, v0"), I("v_add_u32 v3, s81, v3"), I("v_and_b32 v4, 7, v3"), I("v_and_b32 v5, 7, v0"), I("v_lshlrev_b32 v5, 1, v5"),
          I("v_xor_b32 v6, v5, v4"), I("v_or_b32 v5, 1, v5"), I("v_xor_b32 v5, v5, v4"), I("v_lshlrev_b32 v3, 8, v3"), I(f"v_add_u32 v3, {RING}, v3"),
          I("v_lshl_add_u32 v36, v6, 4, v3"), I("v_lshl_add_u32 v37, v5, 4, v3")]
    LPP=[0,2,4,6,70,98,100,72,74,76,8,8]
    g.wait_vm("a0","w0"); w_read(0)
    clsaddr={1:(sFH,0x8000),2:(sFH,0x10000),3:(sFO,0)}
    for i in range(NT):
        if i==NH:
            g.ts(5)
            g.wait_vm("rr")
            g.nop(10)
            for tn in range(2):
                for ti in range(2):
                    a=PA+(tn*2+ti)*16
                    for r in range(16): g.I(f"v_mul_f32 v{a+r}, v{a+r}, v{RR+ti}")
            g.I("s_nop 1")
        if OPT["ts"]==9 and OPT.get("i0",0)<=i<OPT.get("i0",0)+12:
            g.I(f"s_memtime s[{LPP[i-OPT.get('i0',0)]}:{LPP[i-OPT.get('i0',0)]+1}]")
        k=i+PF
        if k<NT and stepinfo(k)[2]!=stepinfo(k-1)[2]:
            c_=stepinfo(k)[2]
            Lok=g.newlab("CLOK")
            g.I("s_waitcnt lgkmcnt(0)"); g.lg=[]
            spoll_test(g,16); g.I(f"s_cbranch_scc0 {Lok}")
            spoll(g,97,16,0x210+c_,13)
            g.lab(Lok); g.lg=[]
            if c_==3: g.ts(6)
        nxt=i+1
        if nxt<NT:
            g.wait_vm(f"a{nxt}",f"w{nxt}"); w_read(nxt)
        g.wait_lg(f"r{i}")
        todo=[]
        if k<NT: todo=[lambda: a_issue1(k,0), lambda: a_issue1(k,1), lambda: w_issue1(k,0), lambda: w_issue1(k,1)]
        nf=OPT.get("nf3",10)
        def fillers(n):
            while n>0 and f3:
                f=f3.pop(0)
                if f is not None: f()
                n-=1
        if i==NH-1:
            Ls=g.newlab("SKIPM")
            g.I(f"s_cmp_ge_u32 s{sW}, 2"); g.I(f"s_cbranch_scc1 {Ls}")
            for tn in range(2):
                for ti in range(2): p3m(i,tn,ti)
            g.lab(Ls)
            for f in todo: f()
        else:
            q=0
            for tn in range(2):
                for ti in range(2):
                    p3m(i,tn,ti)
                    if q<len(todo): todo[q]()
                    fillers((nf+3-q)//4)
                    q+=1
        if i==OPT.get("fh2i",3): fh2_publish()
        if i==OPT.get("fh2i",3)+1: f3+=fin
        k2=k+1
        if k2<NT and stepinfo(k2)[2]!=stepinfo(k2-1)[2]:
            r_,o_=clsaddr[stepinfo(k2)[2]]
            g.I(f"s_add_u32 s97, s{r_}, {o_}")
            spoll_issue(g,97,16)
    assert not f3
    g.ts(7)
    if OPT["ts"]==9:
        g.lg0()
        for i_ in range(12):
            g.I(f"v_mov_b32 v5, s{LPP[i_]}"); g.vmem(f"buffer_store_dword v5, off, {sWS}, s92 offset:{i_*4}"); g.I("s_nop 1")
    g.nop(10)
    for tn in range(2):
        for ti in range(2):
            a=PA+(tn*2+ti)*16
            for q in range(4): g.ds(f"ds_write_b128 v{32+q}, v[{a+4*q}:{a+4*q+3}] offset:{ti*8192+tn*128}")
    g.lg0()
    g.I("s_barrier")
    R=128
    for p in range(2):
        for k in range(4):
            for e in range(2):
                b=R+(p*8+k*2+e)*4
                g.ds(f"ds_read_b128 v[{b}:{b+3}], v{36+e} offset:{p*8192+k*16384}",tag=f"f{p}")
    g.wait_vm("xr")
    for p in range(2):
        g.wait_lg(f"f{p}")
        for k in range(1,4):
            for e in range(2):
                for c in range(4):
                    b0=R+(p*8+0+e)*4+c
                    g.I(f"v_add_f32 v{b0}, v{b0}, v{R+(p*8+k*2+e)*4+c}")
        for e4 in range(4):
            xr=XR+4*p+e4
            g.I(f"v_lshlrev_b32 v{20+2*e4}, 16, v{xr}"); g.I(f"v_and_b32 v{21+2*e4}, 0xffff0000, v{xr}")
        for e4 in range(4):
            o0=R+(p*8+(e4>>1))*4+2*(e4&1)
            g.I(f"v_add_f32 v{o0}, v{o0}, v{20+2*e4}"); g.I(f"v_add_f32 v{o0+1}, v{o0+1}, v{21+2*e4}")
        for e4 in range(4):
            o0=R+(p*8+(e4>>1))*4+2*(e4&1)
            g.I(f"v_cvt_pk_bf16_f32 v{40+4*p+e4}, v{o0}, v{o0+1}")
        g.vmem(f"buffer_store_dwordx4 v[{40+4*p}:{43+4*p}], v11, {sOUT}, s{sXo+p} offen")
    g.ts(8)

def build():
    g=G()
    prologue(g)
    vm0=list(g.vm)
    hwave(g)
    g.vm=vm0; g.lg=[]
    gwave(g)
    g.lab("L_END")
    g.I("s_endpgm")
    return g.L

HEAD=f"""; fused persistent kernel: LN + QKV/W1 GEMM + sliding-window attention + W2/WO GEMM
; @launch grid=(256,1,1) block=(512,1,1) lds={LDS_TOTAL}
.amdgcn_target "amdgcn-amd-amdhsa--gfx950"
.text
.globl {KNAME}
.p2align 8
.type {KNAME},@function
{KNAME}:
"""
TAIL=f""".section .rodata,"a"
.p2align 6
.amdhsa_kernel {KNAME}
  .amdhsa_next_free_vgpr 256
  .amdhsa_next_free_sgpr 102
  .amdhsa_accum_offset 256
  .amdhsa_group_segment_fixed_size 0
  .amdhsa_kernarg_size 72
  .amdhsa_user_sgpr_count 2
  .amdhsa_user_sgpr_kernarg_segment_ptr 1
  .amdhsa_system_sgpr_workgroup_id_x 1
  .amdhsa_float_denorm_mode_32 3
.end_amdhsa_kernel
"""
if __name__=="__main__":
    out=sys.argv[1] if len(sys.argv)>1 else "k.s"
    for a in sys.argv[2:]:
        k,_,val=a.partition("="); OPT[k]=int(val,0) if val else True
    L=build()
    errs=lint(L)
    for e in errs[:60]: print("LINT:",e)
    print(len(errs),"lint errors;",len(L),"lines")
    open(out,"w").write(HEAD+"\n".join(L)+"\n"+TAIL)
```

```python
import sys
from lint import lint

KNAME = "parallel_sum__sliding_block__dense_activation_relu__prompt_kernel"
OPT = dict(ts=0, spin=1<<20, cyc=0, prio=1, l2pf=1, kvq=5, rot=1, pf0=1, pf1=1, rp0=5, l2n=1, fkvn=5, nfill=3, nfill0=4, nfill1=4, kn=2, vn=4, h0n=6, fd=2, gap=12, pf3=3)

KVST = 24576
def R1(s): return s*KVST
R2 = 73728
def R2S(s): return R2 + s*16384
def KVB(it): return [0,KVST,2*KVST,R2,R2+32768,0,KVST,2*KVST][it]
KVL = 0; SLOT = 4096; SLOTG = 4096
QL = 139264
RING = R2
HST=[49152,57344]
NM = 159744; RL = 160256; SL = 160768; CNT = 147456; SY = 147456+128
LDS_TOTAL = 163840
WS_NONCE=0; FKV=0x8000; FVV=0x30000; FH=0x10000; FO=0x28000
STR=0x40000; KV=0x100000; AH=0x800000; TS=0xF80000; WS_SIZE=0x1000000
NSTEP=118
TAGC=0x9E3779B9
sX="s[40:43]"; sWQ="s[44:47]"; sW1="s[48:51]"; sW2="s[52:55]"; sWO="s[56:59]"; sOUT="s[60:63]"; sWS="s[64:67]"
sW=26; sRB=27; sCS=28; sJ=29; sIDX=30; sTAG=31; sU32=33; sNT=34; sA3=35; sCT=36; sRB3=37; sHW=38; sSPIN=39

class G:
    def __init__(s):
        s.L=[]; s.vm=[]; s.lg=[]; s.nlab=0; s.seen=set(); s.tsreg=1
    def I(s,t): s.L.append(" "+t)
    def C(s,t): s.L.append(" ; "+t)
    def lab(s,n): s.L.append(n+":")
    def newlab(s,p="L"):
        s.nlab+=1; return f"{p}_{s.nlab}"
    def vmem(s,t,tag=None,cond=False):
        s.L.append(" "+t+(f" ;@tag {tag}" if tag else ""))
        if not cond: s.vm.append(tag)
        elif tag: s.vm.append(("cond",tag))
    def ds(s,t,tag=None,cond=False):
        s.L.append(" "+t+(f" ;@tag {tag}" if tag else ""))
        s.seen.add(tag)
        if not cond: s.lg.append(tag)
        elif tag: s.lg.append(("cond",tag))
    @staticmethod
    def _ny(q,tag):
        n=0
        for x in reversed(q):
            if x==tag or x==("cond",tag): return n
            if not isinstance(x,tuple): n+=1
        return None
    def wait_vm(s,*tags,extra=""):
        ns=[s._ny(s.vm,t) for t in tags]; ns=[n for n in ns if n is not None]
        n=min(min(ns) if ns else 63,63)
        s.I(f"s_waitcnt vmcnt({n}){extra}")
        s.L.append(" ;@need "+",".join(tags))
        if "lgkmcnt(0)" in extra: s.lg=[]
    def wait_lg_must(s,tag):
        assert tag in s.seen, f"tag {tag} not emitted yet"
        s.wait_lg(tag)
    def wait_lg(s,*tags):
        ns=[s._ny(s.lg,t) for t in tags]; ns=[n for n in ns if n is not None]
        if not ns: return
        n=min(min(ns),15)
        s.I(f"s_waitcnt lgkmcnt({n})")
        s.L.append(" ;@need "+",".join(tags))
        if n==0: s.lg=[]
    def lg0(s):
        s.I("s_waitcnt lgkmcnt(0)"); s.lg=[]
    def vm0(s,extra=""):
        s.I("s_waitcnt vmcnt(0)"+extra); s.vm=[]
        if "lgkmcnt(0)" in extra: s.lg=[]
    def nop(s,n):
        while n>0:
            k=min(n,16); s.I(f"s_nop {k-1}"); n-=k
    LP=[8,10,12,14,16,18,20,22,78,80,82,84,86,88,96,98]
    def lts(s,i):
        if OPT["ts"]==5: s.I(f"s_memtime s[{s.LP[i]}:{s.LP[i]+1}]")
    LH=[10,12,14,16,18,20,22,4]
    def lts2(s,i):
        if OPT["ts"]==5: s.I(f"s_memtime s[{s.LH[i]}:{s.LH[i]+1}]")
    def lts2_dump(s):
        if OPT["ts"]!=5: return
        s.I("s_waitcnt lgkmcnt(0)"); s.lg=[]
        for i in range(8):
            s.I(f"v_mov_b32 v1, s{s.LH[i]}")
            s.vmem(f"buffer_store_dword v1, off, {sWS}, s92 offset:{i*4}", tag=None)
            s.I("s_nop 1")
    LA=[10,12,14,16,18,20,22,70,72,74,76,78,96,4,6,2]
    def lx(s,i):
        if OPT["ts"]==10: s.I(f"s_memtime s[{s.LA[i]}:{s.LA[i]+1}]")
    def lta(s,i):
        if OPT["ts"]==7 and i<15: s.I(f"s_memtime s[{s.LA[i]}:{s.LA[i]+1}]")
    def lta_dump(s,final=False):
        if OPT["ts"] not in (7,10) or (OPT["ts"]==10 and not final): return
        if OPT["ts"]==7 and final: return
        s.I("s_waitcnt lgkmcnt(0)"); s.lg=[]
        for i in range(15):
            s.I(f"v_mov_b32 v1, s{s.LA[i]}")
            s.vmem(f"buffer_store_dword v1, off, {sWS}, s92 offset:{i*4}", tag=None)
            s.I("s_nop 1")
    def lts_dump(s):
        if OPT["ts"] not in (5,6): return
        s.I("s_waitcnt lgkmcnt(0)"); s.lg=[]
        for i in range(16):
            s.I(f"v_mov_b32 v5, s{s.LP[i]}")
            s.vmem(f"buffer_store_dword v5, off, {sWS}, s92 offset:{i*4}", tag=None)
            s.I("s_nop 1")
    def ts(s,i,mode=1):
        if OPT["ts"]!=mode: return
        s.I("s_memrealtime s[90:91]" if not OPT.get("cyc") else "s_memtime s[90:91]")
        s.I("s_waitcnt lgkmcnt(0)"); s.lg=[]
        s.I(f"v_mov_b32 v{s.tsreg}, s90")
        s.vmem(f"buffer_store_dword v{s.tsreg}, off, {sWS}, s92 offset:{i*4}", tag=None)

def errmark(g,vtmp,errcode):
    g.I(f"v_mov_b32 v{vtmp}, {errcode}")
    g.I(f"v_mov_b32 v{vtmp+1}, 0")
    g.vmem(f"global_store_dword v{vtmp+1}, v{vtmp}, s[68:69]")
    g.I("s_waitcnt vmcnt(0)")
def spoll_issue(g, soff, n):
    if n==1: g.I(f"s_load_dword s8, s[64:65], s{soff} glc")
    else: g.I(f"s_load_dwordx16 s[8:23], s[64:65], s{soff} glc")
def spoll_test(g, n):
    if n==1:
        g.I(f"s_cmp_lg_u32 s8, s{sTAG}")
    else:
        for k in range(8): g.I(f"s_xor_b64 s[{8+2*k}:{9+2*k}], s[{8+2*k}:{9+2*k}], s[24:25]")
        for k in (1,2,3,4,5,6,7): g.I(f"s_or_b64 s[8:9], s[8:9], s[{8+2*k}:{9+2*k}]")
        g.I("s_or_b32 s8, s8, s9")
def spoll(g, soff, n, errcode, vtmp, issued=False):
    L=g.newlab("SPL"); D=g.newlab("SPD"); F=g.newlab("SPF")
    g.I(f"s_mov_b32 s{sSPIN}, {OPT['spin']}")
    if issued: g.I(f"s_branch {F}")
    g.lab(L)
    spoll_issue(g,soff,n)
    g.lab(F)
    g.I("s_waitcnt lgkmcnt(0)"); g.lg=[]
    spoll_test(g,n)
    g.I(f"s_cbranch_scc0 {D}")
    if OPT.get("psl"): g.I(f"s_sleep {OPT['psl']}")
    g.I(f"s_sub_u32 s{sSPIN}, s{sSPIN}, 1")
    g.I(f"s_cbranch_scc0 {L}")
    save=list(g.vm); errmark(g,vtmp,errcode); g.vm=save
    g.lab(D)
def lspin(g, vaddr, off, N, vtmp, first_done=False, sleep=False):
    L=g.newlab("LS"); D=g.newlab("LD")
    if first_done:
        g.I(f"v_cmp_gt_u32 vcc, {N}, v{vtmp}"); g.I("s_nop 0"); g.I(f"s_cbranch_vccz {D}")
    g.I(f"s_mov_b32 s{sSPIN}, {OPT['spin']}")
    g.lab(L)
    if sleep: g.I("s_sleep 1")
    g.I(f"ds_read_b32 v{vtmp}, v{vaddr} offset:{off}"); g.I("s_waitcnt lgkmcnt(0)")
    g.I(f"v_cmp_gt_u32 vcc, {N}, v{vtmp}"); g.I("s_nop 0"); g.I(f"s_cbranch_vccz {D}")
    g.I(f"s_sub_u32 s{sSPIN}, s{sSPIN}, 1"); g.I(f"s_cbranch_scc0 {L}")
    g.lab(D)
    if not first_done: g.lg=[]
def flag_store1(g, base, va, vb, st=81):
    g.I(f"s_lshl_b32 s{st}, s{sRB}, 4"); g.I(f"s_add_u32 s{st}, s{st}, s{sCS}"); g.I(f"s_lshl_b32 s{st}, s{st}, 7"); g.I(f"s_add_u32 s{st}, s{st}, {base}")
    g.I(f"v_mov_b32 v{va}, s{st}"); g.I(f"v_mov_b32 v{vb}, s{sTAG}")
    g.I("s_mov_b64 exec, 1")
    g.vmem(f"buffer_store_dword v{vb}, v{va}, {sWS}, 0 offen sc1", cond=True)
    g.I("s_mov_b64 exec, -1")
def flag_store16(g, base, va, vb, st=81):
    g.I(f"s_lshl_b32 s{st}, s{sRB}, 11"); g.I(f"s_lshl_b32 s{st+1}, s{sCS}, 2"); g.I(f"s_add_u32 s{st}, s{st}, s{st+1}"); g.I(f"s_add_u32 s{st}, s{st}, {base}")
    g.I(f"v_lshlrev_b32 v{va}, 7, v0"); g.I(f"v_add_u32 v{va}, s{st}, v{va}"); g.I(f"v_mov_b32 v{vb}, s{sTAG}")
    g.I("s_mov_b64 exec, 0xffff")
    g.vmem(f"buffer_store_dword v{vb}, v{va}, {sWS}, 0 offen sc1", cond=True)
    g.I("s_mov_b64 exec, -1")

def prologue(g):
    g.I("s_cmp_ge_u32 s2, 256")
    g.I("s_cbranch_scc1 L_END")
    g.I("s_getpc_b64 s[4:5]")
    g.lab("L_PCREF")
    g.I("v_lshlrev_b32 v1, 7, v0")
    g.I("v_min_u32 v1, L_END-L_PCREF, v1")
    g.I("s_load_dwordx2 s[40:41], s[0:1], 0")
    g.I("s_load_dwordx2 s[44:45], s[0:1], 8")
    g.I("s_load_dwordx2 s[48:49], s[0:1], 32")
    g.I("s_load_dwordx2 s[64:65], s[0:1], 64")
    g.vmem("global_load_dword v250, v1, s[4:5]", tag="cpf")
    g.I("v_lshrrev_b32 v1, 6, v0")
    g.I("v_and_b32 v0, 63, v0")
    g.I(f"v_readfirstlane_b32 s{sW}, v1")
    g.I(f"s_and_b32 s{sJ}, s2, 7")
    g.I(f"s_lshr_b32 s{sIDX}, s2, 3")
    g.I(f"s_and_b32 s3, s{sJ}, 1")
    g.I(f"s_lshl_b32 s3, s3, 3")
    g.I(f"s_and_b32 s{sRB}, s{sIDX}, 7")
    g.I(f"s_or_b32 s{sRB}, s{sRB}, s3")
    g.I(f"s_lshr_b32 s3, s{sJ}, 1")
    g.I(f"s_lshl_b32 s3, s3, 2")
    g.I(f"s_lshr_b32 s{sCS}, s{sIDX}, 3")
    g.I(f"s_or_b32 s{sCS}, s{sCS}, s3")
    for base,size in ((40,2097152),(44,1572864),(48,1409024),(64,WS_SIZE)):
        g.I(f"s_mov_b32 s{base+2}, {size}")
        g.I(f"s_mov_b32 s{base+3}, 0x20000")
    g.I(f"s_mul_i32 s{sU32}, s{sCS}, 3")
    g.I(f"s_lshl_b32 s3, s{sCS}, 1"); g.I("s_add_u32 s3, s3, 11")
    g.I(f"s_min_u32 s{sU32}, s{sU32}, s3")
    g.I(f"s_cmp_lt_u32 s{sCS}, 11"); g.I(f"s_cselect_b32 s{sNT}, 3, 2")
    if OPT["ts"]:
        g.I(f"s_lshl_b32 s92, s2, 3"); g.I(f"s_add_u32 s92, s92, s{sW}"); g.I(f"s_lshl_b32 s92, s92, 6"); g.I(f"s_add_u32 s92, s92, {TS}")
    g.I(f"s_cmp_lt_u32 s{sW}, 4")
    g.I("s_cbranch_scc1 L_GWAVE")


def attention(g, general, QF, BD, BO, sTM, vsync, fh1):
    KB=[24,28,32]; SB=[160,176,224]; CZ=192; MC=208; PB=[36,44]; VBH=[[52,60],[80,88]]; OA=[96,112]
    M=[[68,69,70,71],[72,73,74,75]]; NEG=76
    seq=[(t,h) for h in range(2) for t in range(9)]
    def kread(n):
        t,h=seq[n]; b=KB[n%3]; g.ds(f"ds_read_b128 v[{b}:{b+3}], v11 offset:{t*SLOT+h*1024}", tag=f"k{n}")
    def setC(val):
        for r in range(16): g.I(f"v_mov_b32 v{CZ+r}, {val}")
    def cz_init(val):
        if not general:
            if val!="0": setC(val)
            return
        La=g.newlab("CZA"); Lb2=g.newlab("CZB")
        g.I(f"s_cmp_gt_u32 s{sTM}, 1"); g.I(f"s_cbranch_scc1 {La}")
        setC(val); g.I(f"s_branch {Lb2}"); g.lab(La); setC("v5"); g.lab(Lb2)
    def cz_switch(t,val):
        if not general: return
        Ls=g.newlab("CZS")
        g.I(f"s_cmp_eq_u32 s{sTM}, {t}"); g.I(f"s_cbranch_scc0 {Ls}")
        g.nop(8); setC(val); g.I("s_nop 1"); g.lab(Ls)
    NS1=3
    def smfma1(n,Cr):
        t,h=seq[n]; b=KB[n%3]; S=SB[n%NS1]
        g.I(f"v_mfma_f32_32x32x16_bf16 v[{S}:{S+15}], v[{b}:{b+3}], v[{QF+4*h}:{QF+4*h+3}], {Cr}")
    for h in range(2):
        for m in M[h]: g.I(f"v_mov_b32 v{m}, v5")
    kread(0); kread(1)
    cz_init("0")
    g.wait_lg("q")
    for n in range(20):
        pass
        if n<18:
            t,h=seq[n]
            if n==9: cz_init("0")
            elif 2<=t<=7: cz_switch(t,"0")
            g.wait_lg(f"k{n}")
            mid = f"v[{CZ}:{CZ+15}]" if general else "0"
            Cr = f"v[{BO}:{BO+15}]" if t==0 else (f"v[{BD}:{BD+15}]" if t==8 else mid)
            if n==9 and general: g.I("s_nop 0")
            smfma1(n,Cr)
            if n+2<18: kread(n+2)
        if n==2: g.nop(6)
        if n==19: g.nop(4)
        if n>=2:
            tp,hp=seq[n-2]; Sp=SB[(n-2)%NS1]
            for e in range(8): g.I(f"v_max3_f32 v{M[hp][e%4]}, v{Sp+2*e}, v{Sp+2*e+1}, v{M[hp][e%4]}")
    for h in range(2):
        g.I(f"v_max3_f32 v{M[h][0]}, v{M[h][0]}, v{M[h][1]}, v{M[h][2]}")
    for h in range(2):
        g.I(f"v_max_f32 v{M[h][0]}, v{M[h][0]}, v{M[h][3]}")
    for h in range(2): g.I(f"v_mov_b32 v{NEG+h}, v{M[h][0]}")
    g.I("s_nop 1")
    for h in range(2): g.I(f"v_permlane32_swap_b32 v{M[h][0]}, v{NEG+h}")
    g.I("s_nop 0")
    for h in range(2): g.I(f"v_max_f32 v{M[h][0]}, v{M[h][0]}, v{NEG+h}")
    for h in range(2): g.I(f"v_sub_f32 v{NEG+h}, 0, v{M[h][0]}")
    g.ts(4)
    g.lx(2)
    for r in list(range(52,68))+list(range(80,96)): g.I(f"v_mov_b32 v{r}, 0x3f803f80")
    g.ts(12,8)
    g.lx(3)
    vsync()
    g.lx(4)
    g.ts(13,8)
    def smfma(n,Cr):
        t,h=seq[n]; b=KB[n%3]; S=SB[n%2]
        g.I(f"v_mfma_f32_32x32x16_bf16 v[{S}:{S+15}], v[{b}:{b+3}], v[{QF+4*h}:{QF+4*h+3}], {Cr}")
    def vread(n):
        t,h=seq[n]; b=VBH[h][n%2]
        m="0x0000ffff" if h==0 else "0xffff0000"
        g.I(f"s_mov_b32 exec_lo, {m}"); g.I(f"s_mov_b32 exec_hi, {m}")
        g.ds(f"ds_read_b128 v[{b}:{b+3}], v11 offset:{t*SLOT+2048}", tag=f"v{n}")
        g.ds(f"ds_read_b128 v[{b+4}:{b+7}], v11 offset:{t*SLOT+2048+1024}", tag=f"v{n}")
        g.I("s_mov_b64 exec, -1")
    def prepC(n):
        t,h=seq[n]
        if t==0:
            for r in range(16): g.I(f"v_add_f32 v{MC+r}, v{BO+r}, v{NEG+h}")
            cz_init(f"v{NEG+h}")
            if not general: g.I("s_nop 0")
            return f"v[{MC}:{MC+15}]"
        if t==8:
            for r in range(16): g.I(f"v_add_f32 v{MC+r}, v{BD+r}, v{NEG+h}")
            g.I("s_nop 0")
            return f"v[{MC}:{MC+15}]"
        if t>=2: cz_switch(t,f"v{NEG+h}")
        return f"v[{CZ}:{CZ+15}]"
    def pv(n,k):
        t,h=seq[n]; Vb=VBH[h][n%2]; P=PB[n%2]; O=OA[h]
        Cin='0' if (t==0 and k==0) else f'v[{O}:{O+15}]'
        g.I(f"v_mfma_f32_32x32x16_bf16 v[{O}:{O+15}], v[{Vb+4*k}:{Vb+4*k+3}], v[{P+4*k}:{P+4*k+3}], {Cin}")
    kread(0); kread(1)
    Cr=prepC(0)
    g.wait_lg("k0"); g.I("s_nop 0")
    smfma(0,Cr)
    vread(0)
    for n in range(19):
        g.lta(n)
        if n==OPT.get("fh1n",-1): fh1()
        if n<18:
            if n+2<18: kread(n+2)
            if n+1<18:
                Cr=prepC(n+1); g.wait_lg(f"k{n+1}"); smfma(n+1,Cr)
            if n==0: g.nop(10)
            Sn=SB[n%2]; P=PB[n%2]
            ops=[]
            for e in range(8):
                ops.append(f"v_exp_f32 v{Sn+2*e}, v{Sn+2*e}"); ops.append(f"v_exp_f32 v{Sn+2*e+1}, v{Sn+2*e+1}")
                if e>=2: ops.append(f"v_cvt_pk_bf16_f32 v{P+e-2}, v{Sn+2*e-4}, v{Sn+2*e-3}")
            ops.append(f"v_cvt_pk_bf16_f32 v{P+6}, v{Sn+12}, v{Sn+13}"); ops.append(f"v_cvt_pk_bf16_f32 v{P+7}, v{Sn+14}, v{Sn+15}")
            for i,o in enumerate(ops):
                if not (OPT.get("noexp") and "v_exp" in o): g.I(o)
                if n>=1 and i==4: g.wait_lg(f"v{n-1}"); pv(n-1,0)
                if n>=1 and i==10:
                    pv(n-1,1)
                    if n+1<18: vread(n+1) if False else None
                if i==13 and n>=0:
                    if n>=1: vread(n)
        else:
            g.wait_lg("v17"); g.I("s_nop 1"); pv(17,0); pv(17,1)
    return OA

def hwave(g):
    vXe=8; vXo=9; vWq=10; vW1=11; vTK=12; vTK2=13; vTT=14
    sXb=70; sMx=73; sMw=74; sT=78; sCK=75; sCV=76; sCQ=77; sC1=79; sKB0=95; sKB=96; sU=97
    BD=128; BO=144; sTM=84; need=85; sSL=86; sDONE=87; sSRC=88; sFK=89; sDV=94; sFV=99; sKVo=100; sAHo=101; sH1=71; sH4=72
    SEL=60; CA=[56,64]; SX=[68,72]; XH=76; vXh=92; FB=32; PB_=96
    g.I(f"s_sub_u32 s{sHW}, s{sW}, 4")
    g.I(f"s_cmp_ge_u32 s{sHW}, 2"); g.I("s_cbranch_scc1 L_HPUB")
    def kbof(tb):
        g.I(f"s_add_u32 s{sKB}, s{sKB0}, {tb}"); g.I(f"s_and_b32 s{sKB}, s{sKB}, 7")
    def kv_issue(it):
        st=KVB(it)
        kbof(it)
        g.I(f"s_lshl_b32 s{sU}, s{sKB}, 7"); g.I(f"s_add_u32 s{sU}, s{sU}, s{sXb}")
        for i in range(8):
            g.I(f"s_add_u32 m0, s{sMx}, {st+i*1024}")
            g.I(f"s_add_u32 s{sT}, s{sU}, {i*8192}")
            g.vmem(f"buffer_load_dwordx4 v{vXe if i%2==0 else vXo}, {sX}, s{sT} offen lds", tag=f"kv{it}")
        g.I(f"s_mul_i32 s{sU}, s{sKB}, 196608")
        for u,sc in ((0,sCK),(1,sCV)):
            g.I(f"s_add_u32 s3, s{sc}, s{sU}")
            for sub in range(2):
                g.I(f"s_add_u32 m0, s{sMw}, {st+16384+u*4096+sub*1024}")
                g.I(f"s_add_u32 s{sT}, s3, {sub*49152}")
                g.vmem(f"buffer_load_dwordx4 v{vWq}, {sWQ}, s{sT} offen lds", tag=f"kv{it}")
    def ht_issue(n):
        for u in range(4):
            if n<4: tb=2*n+(u>>1); T=u&1
            else: tb=4*(n&1)+u; T=3 if n<6 else 2
            if n>=4 or (u&1)==0: kbof(tb)
            if T<3: g.I(f"s_mul_i32 s{sU}, s{sKB}, 176128"); g.I(f"s_add_u32 s3, s{sC1}, s{sU}")
            else: g.I(f"s_mul_i32 s{sU}, s{sKB}, 196608"); g.I(f"s_add_u32 s3, s{sCQ}, s{sU}")
            for sub in range(2):
                g.I(f"s_add_u32 m0, s{sMw}, {R2S(n%4)+u*4096+sub*1024}")
                if T<3:
                    g.I(f"s_add_u32 s{sT}, s3, {T*64+sub*44032}")
                    g.vmem(f"buffer_load_dwordx4 v{vW1}, {sW1}, s{sT} offen lds", tag=f"ht{n}")
                else:
                    g.I(f"s_add_u32 s{sT}, s3, {sub*49152}")
                    g.vmem(f"buffer_load_dwordx4 v{vWq}, {sWQ}, s{sT} offen lds", tag=f"ht{n}")
    def setup_common():
        g.I("s_load_dwordx2 s[68:69], s[0:1], 56")
        g.I(f"s_lshl_b32 s{sH1}, s{sHW}, 10"); g.I(f"s_lshl_b32 s{sH4}, s{sHW}, 12")
        g.I("v_lshlrev_b32 v15, 7, v0"); g.I("v_lshlrev_b32 v7, 4, v0")
        g.I("v_lshrrev_b32 v3, 5, v0"); g.I("v_lshlrev_b32 v3, 3, v3"); g.I("v_bfe_u32 v4, v0, 2, 2"); g.I("v_add_u32 v3, v3, v4")
        g.I("v_lshlrev_b32 v3, 6, v3"); g.I("v_bfe_u32 v4, v0, 4, 1"); g.I("v_lshl_add_u32 v3, v4, 5, v3")
        g.I("v_and_b32 v4, 3, v0"); g.I("v_lshl_add_u32 v3, v4, 3, v3")
        g.I(f"s_add_u32 s81, s{sH1}, 16384"); g.I(f"v_add_u32 v{vTK}, s81, v3"); g.I(f"v_add_u32 v{vTK2}, {R2}, v{vTK}")
        g.I(f"s_add_u32 s81, s{sH1}, {R2}"); g.I(f"v_add_u32 v{vTT}, s81, v3")
        g.I("v_and_b32 v3, 31, v0"); g.I("v_lshrrev_b32 v4, 5, v0"); g.I("v_lshlrev_b32 v4, 2, v4")
        g.I("v_sub_u32 v3, v3, v4"); g.I("v_mov_b32 v5, 0xf149f2ca")
        g.I(f"s_lshl_b32 s81, s{sRB}, 2"); g.I(f"s_add_u32 s81, s81, s{sHW}")
        g.I(f"s_sub_i32 s{sTM}, 8, s81"); g.I(f"s_max_i32 s{sTM}, s{sTM}, 0")
        for r in range(16):
            kk=(r&3)+8*(r>>2)
            g.I(f"v_subrev_u32 v6, {kk}, v3"); g.I(f"v_ashrrev_i32 v6, 31, v6")
            g.I(f"v_and_b32 v{BD+r}, v6, v5"); g.I(f"v_bfi_b32 v{BO+r}, v6, 0, v5")
        Lb=g.newlab("BOK")
        g.I(f"s_cmp_eq_u32 s{sTM}, 0"); g.I(f"s_cbranch_scc1 {Lb}")
        for r in range(16): g.I(f"v_mov_b32 v{BO+r}, v5")
        g.lab(Lb)
        g.I("v_and_b32 v3, 15, v0"); g.I("v_bfe_u32 v4, v0, 4, 1"); g.I("v_cmp_eq_u32 vcc, v3, v4"); g.I("v_mov_b32 v6, 0x3f803f80")
        g.I("s_nop 0"); g.I(f"v_cndmask_b32 v{SEL}, 0, v6, vcc")
        for k in range(1,4): g.I(f"v_mov_b32 v{SEL+k}, v{SEL}")
        g.I("v_and_b32 v2, 31, v0")
        g.I("v_lshrrev_b32 v3, 3, v2"); g.I("v_lshlrev_b32 v3, 10, v3"); g.I("v_and_b32 v4, 7, v2"); g.I("v_lshl_add_u32 v3, v4, 7, v3")
        g.I("v_bfe_u32 v4, v0, 1, 3"); g.I("v_lshrrev_b32 v6, 5, v0"); g.I("v_xor_b32 v4, v4, v6"); g.I("v_lshl_add_u32 v3, v4, 4, v3")
        g.I(f"v_add_u32 v{vXh}, s{sH4}, v3")
        for t in range(1,4): g.I(f"v_xor_b32 v{vXh+t}, {t<<5}, v{vXh}")
        g.I("v_lshlrev_b32 v3, 4, v0"); g.I(f"s_lshl_b32 s81, s{sHW}, 2"); g.I(f"s_add_u32 s81, s81, {SL}"); g.I(f"v_add_u32 v18, s81, v3")
    def get_tag():
        g.wait_vm("nonce")
        g.I(f"v_readfirstlane_b32 s{sTAG}, v28"); g.I("s_nop 1")
        g.I(f"s_add_u32 s{sTAG}, s{sTAG}, {TAGC}"); g.I(f"s_mov_b32 s24, s{sTAG}"); g.I(f"s_mov_b32 s25, s{sTAG}")
    def cs_mfma(b,a,first):
        g.I(f"v_mfma_f32_16x16x32_bf16 v[{a}:{a+3}], v[{SEL}:{SEL+3}], v[{b}:{b+3}], {'0' if first else f'v[{a}:{a+3}]'}")
    def cs_final(a,tile):
        g.I("s_mov_b64 exec, 0xffff")
        g.ds(f"ds_write_b32 v18, v{a} offset:{tile*512}")
        g.ds(f"ds_write_b32 v18, v{a+1} offset:{tile*512+256}")
        g.I("s_mov_b64 exec, -1")
    def bar(tags,idx):
        if tags: g.wait_vm(*tags,extra=" lgkmcnt(0)")
        else: g.lg0()
        g.ts(idx,2)
        if idx>=8: g.lts2(idx-8)
        g.I("s_barrier")
    def kv_stats(it):
        st=KVB(it); base=vTK if st<R2 else vTK2; off=st if st<R2 else st-R2
        if it==3:
            for k in range(4): g.I(f"v_add_u32 v{vXh+k}, {R2}, v{vXh+k}")
        if it==5:
            for k in range(4): g.I(f"v_subrev_u32 v{vXh+k}, {R2}, v{vXh+k}")
        for t in range(4):
            g.ds(f"ds_read_b128 v[{XH+4*t}:{XH+4*t+3}], v{vXh+t} offset:{off}",tag=f"xh{t}")
        for u in range(2):
            g.ds(f"ds_read_b64_tr_b16 v[{FB+4*u}:{FB+4*u+1}], v{base} offset:{off+u*4096}",tag="cf")
            g.ds(f"ds_read_b64_tr_b16 v[{FB+4*u+2}:{FB+4*u+3}], v{base} offset:{off+u*4096+256}",tag="cf")
    def kv_stats2(it):
        for t in range(4):
            g.wait_lg(f"xh{t}")
            cs_mfma(XH+4*t,SX[t%2],it==0 and t<2)
        g.wait_lg("cf")
        cs_mfma(FB,CA[0],it==0); cs_mfma(FB+4,CA[1],it==0)
        if it==7:
            g.I("v_lshlrev_b32 v3, 2, v0"); g.I(f"s_lshl_b32 s81, s{sHW}, 7"); g.I(f"s_add_u32 s81, s81, {NM}"); g.I("v_add_u32 v3, s81, v3")
            g.nop(10)
            for k in range(2): g.I(f"v_add_f32 v{SX[0]+k}, v{SX[0]+k}, v{SX[1]+k}")
            g.I("s_mov_b64 exec, 0xffff")
            g.ds(f"ds_write_b32 v3, v{SX[0]}"); g.ds(f"ds_write_b32 v3, v{SX[0]+1} offset:64")
            g.I("s_mov_b64 exec, -1")
            cs_final(CA[0],0); cs_final(CA[1],1)
    def ht_reads(n):
        for t in range(4):
            g.ds(f"ds_read_b64_tr_b16 v[{FB+4*t}:{FB+4*t+1}], v{vTT} offset:{(n%4)*16384+t*4096}",tag="cf")
            g.ds(f"ds_read_b64_tr_b16 v[{FB+4*t+2}:{FB+4*t+3}], v{vTT} offset:{(n%4)*16384+t*4096+256}",tag="cf")
    def ht_cs(n):
        g.lg0()
        for t in range(4): cs_mfma(FB+4*t,CA[t%2],(n%4)==0 and t<2)
        if n%4==3:
            g.nop(12)
            cs_final(CA[0],2 if n<4 else 4); cs_final(CA[1],3 if n<4 else 5)
    g.I("v_lshrrev_b32 v3, 3, v0"); g.I("v_lshlrev_b32 v3, 10, v3"); g.I("v_and_b32 v4, 7, v0"); g.I("v_lshrrev_b32 v5, 4, v0")
    g.I("v_xor_b32 v4, v4, v5"); g.I(f"v_lshl_or_b32 v{vXe}, v4, 4, v3"); g.I(f"v_xor_b32 v{vXo}, 64, v{vXe}")
    g.I("v_lshrrev_b32 v3, 2, v0"); g.I("v_and_b32 v4, 3, v0"); g.I("v_lshlrev_b32 v4, 4, v4")
    g.I(f"v_mov_b32 v5, 3072"); g.I(f"v_mad_u32_u24 v{vWq}, v3, v5, v4")
    g.I(f"v_mov_b32 v5, 2752"); g.I(f"v_mad_u32_u24 v{vW1}, v3, v5, v4")
    g.I(f"s_lshl_b32 s{sXb}, s{sRB}, 17"); g.I(f"s_lshl_b32 s{sT}, s{sHW}, 16"); g.I(f"s_add_u32 s{sXb}, s{sXb}, s{sT}")
    g.I(f"s_lshl_b32 s{sMx}, s{sHW}, 13"); g.I(f"s_lshl_b32 s{sMw}, s{sHW}, 11")
    g.I(f"s_mul_i32 s{sCQ}, s{sHW}, {2*49152}"); g.I(f"s_lshl_b32 s{sT}, s{sCS}, 6"); g.I(f"s_add_u32 s{sCQ}, s{sCQ}, s{sT}")
    g.I(f"s_add_u32 s{sCK}, s{sCQ}, 1024"); g.I(f"s_add_u32 s{sCV}, s{sCQ}, 2048")
    g.I(f"s_mul_i32 s{sC1}, s{sHW}, {2*44032}"); g.I(f"s_lshl_b32 s{sT}, s{sU32}, 6"); g.I(f"s_add_u32 s{sC1}, s{sC1}, s{sT}")
    if OPT["rot"]==2:
        g.I(f"s_add_u32 s{sKB0}, s{sCS}, s{sRB}"); g.I(f"s_and_b32 s{sKB0}, s{sKB0}, 3"); g.I(f"s_lshl_b32 s{sKB0}, s{sKB0}, 1")
    elif OPT["rot"]==3:
        g.I(f"s_add_u32 s{sKB0}, s{sCS}, s{sRB}"); g.I(f"s_and_b32 s{sKB0}, s{sKB0}, 1"); g.I(f"s_lshl_b32 s{sKB0}, s{sKB0}, 2")
    elif OPT["rot"]==4:
        g.I(f"s_add_u32 s{sKB0}, s{sCS}, s{sRB}")
    elif OPT["rot"]:
        g.I(f"s_and_b32 s{sKB0}, s{sCS}, 3"); g.I(f"s_lshl_b32 s{sKB0}, s{sKB0}, 1"); g.I(f"s_bfe_u32 s{sKB}, s{sCS}, 0x10002")
        g.I(f"s_add_u32 s{sKB0}, s{sKB0}, s{sKB}"); g.I(f"s_add_u32 s{sKB0}, s{sKB0}, s{sRB}")
    else: g.I(f"s_mov_b32 s{sKB0}, 0")
    g.I("s_waitcnt lgkmcnt(0)")
    g.ts(0)
    if OPT["prio"]: g.I("s_setprio 2")
    g.I("v_mov_b32 v3, 0")
    g.vmem(f"buffer_load_dword v28, v3, {sWS}, 0 offen sc1", tag="nonce")
    kv_issue(0); kv_issue(1)
    setup_common()
    g.lg0()
    for it in range(2,5): kv_issue(it)
    get_tag()
    for it in range(8):
        bar([f"kv{it}"],it)
        if it==0: g.ts(1)
        kv_stats(it)
        if 2<=it<=4: kv_issue(it+3)
        if it>=5: ht_issue(it-5)
        kv_stats2(it)
    bar(["ht0"],8)
    g.ts(2)
    g.I("v_and_b32 v3, 3, v0"); g.I("v_lshlrev_b32 v3, 3, v3"); g.I(f"v_add_u32 v24, {SY+64}, v3")
    g.I(f"s_lshl_b32 s81, s{sHW}, 2"); g.I(f"s_add_u32 s81, s81, {SY}"); g.I("v_add_u32 v22, s81, v3")
    g.I(f"s_xor_b32 s81, s{sHW}, 1"); g.I("s_lshl_b32 s81, s81, 2"); g.I(f"s_add_u32 s81, s81, {SY}"); g.I("v_mov_b32 v23, s81")
    g.I(f"s_lshl_b32 s81, s{sHW}, 11"); g.I(f"s_add_u32 s81, s81, {R2}"); g.I(f"v_subrev_u32 v25, s{sH1}, v{vTT}"); g.I(f"v_subrev_u32 v25, {R2}, v25"); g.I("v_add_u32 v25, s81, v25")
    def lwrite(off,val):
        g.I(f"v_mov_b32 v26, {val}"); g.I("s_mov_b64 exec, 0xf"); g.ds(f"ds_write_b32 v22, v26 offset:{off}"); g.I("s_mov_b64 exec, -1")
    FL=32
    FR=[32,36,40,44,76,80,84,88]
    ht_issue(3)
    g.wait_vm("ht1"); lwrite(0,2)
    for n in range(8):
        k=0
        for u in range(4):
            for tt in range(2):
                b_=FR[k]; k+=1
                g.ds(f"ds_read_b64_tr_b16 v[{b_}:{b_+1}], v25 offset:{(n%4)*16384+u*4096+tt*1024}",tag="cf")
                g.ds(f"ds_read_b64_tr_b16 v[{b_+2}:{b_+3}], v25 offset:{(n%4)*16384+u*4096+tt*1024+256}",tag="cf")
        g.lg0()
        k=0
        for u in range(4):
            for tt in range(2):
                first = (n in (0,4,6)) and u<2 and tt==0
                cs_mfma(FR[k],CA[u%2],first); k+=1
        if n in (3,5,7):
            g.nop(12)
            if n==3: cs_final(CA[0],2); cs_final(CA[1],3)
            else:
                for q in range(2): g.I(f"v_add_f32 v{CA[0]+q}, v{CA[0]+q}, v{CA[1]+q}")
                cs_final(CA[0],5 if n==5 else 4)
            lwrite(32,{3:1,5:2,7:3}[n])
        if 1<=n<=4:
            lspin(g,24,0,n,27)
            ht_issue(n+3)
        if n+2<=7:
            g.wait_vm(f"ht{n+2}"); lwrite(0,n+3)
        if n==6:
            g.I("v_and_b32 v3, 1, v0"); g.I("v_lshlrev_b32 v3, 3, v3"); g.I(f"s_lshl_b32 s81, s{sHW}, 4"); g.I(f"s_add_u32 s81, s81, {SY+96}"); g.I("v_add_u32 v28, s81, v3")
            lspin(g,28,0,4,27,sleep=True)
            g.I(f"s_lshl_b32 s81, s{sHW}, 12"); g.I(f"s_add_u32 s81, s81, {HST[1]}"); g.I("v_add_u32 v28, s81, v7")
            for tt in range(2):
                for i in range(2): g.ds(f"ds_read_b128 v[{96+8*tt+4*i}:{96+8*tt+4*i+3}], v28 offset:{tt*2048+i*1024}",tag="pb")
            g.I(f"s_lshl_b32 s81, s{sRB}, 2"); g.I(f"s_lshl_b32 s82, s{sHW}, 1"); g.I("s_add_u32 s81, s81, s82")
            g.I(f"s_mul_i32 s81, s81, {NSTEP}"); g.I(f"s_lshl_b32 s82, s{sU32}, 1"); g.I("s_add_u32 s81, s81, s82"); g.I("s_add_u32 s81, s81, 2")
            g.I("s_lshl_b32 s81, s81, 10"); g.I(f"s_add_u32 s81, s81, {AH}")
            g.wait_lg("pb")
            for tt in range(2):
                g.I(f"s_add_u32 s82, s81, {tt*NSTEP*1024}")
                for i in range(2): g.vmem(f"buffer_store_dwordx4 v[{96+8*tt+4*i}:{96+8*tt+4*i+3}], v7, {sWS}, s82 offen offset:{i*1024} sc1",tag="h1st")
    g.ts(9)
    g.vm0(" lgkmcnt(0)")
    g.I(f"s_lshl_b32 s81, s{sHW}, 2"); g.I(f"s_add_u32 s81, s81, {CNT+24}"); g.I("v_mov_b32 v28, s81"); g.I("v_mov_b32 v26, 1"); g.ds("ds_write_b32 v28, v26")
    Lq=g.newlab("L0"); g.I(f"s_cmp_eq_u32 s{sHW}, 0"); g.I(f"s_cbranch_scc0 {Lq}")
    g.I(f"v_mov_b32 v28, {CNT+28}"); lspin(g,28,0,1,27); flag_store16(g,FH+0x8000,16,17); g.lab(Lq); g.lg=[]
    g.ts(10)
    g.I("s_branch L_ATT")
    g.lab("L_HPUB"); g.vm=[("cond","cpf")]; g.lg=[]
    sPI=73
    g.I(f"s_sub_u32 s{sPI}, s{sHW}, 2")
    g.I("s_waitcnt lgkmcnt(0)")
    g.ts(0)
    if OPT["prio"]: g.I("s_setprio 2")
    g.I("v_mov_b32 v3, 0")
    g.vmem(f"buffer_load_dword v28, v3, {sWS}, 0 offen sc1", tag="nonce")
    g.I("s_load_dwordx2 s[52:53], s[0:1], 40"); g.I("s_load_dwordx2 s[56:57], s[0:1], 16")
    g.I("s_mov_b32 s54, 1409024"); g.I("s_mov_b32 s55, 0x20000"); g.I("s_mov_b32 s58, 524288"); g.I("s_mov_b32 s59, 0x20000")
    setup_common()
    g.I(f"v_lshlrev_b32 v3, 4, v0"); g.I(f"v_add_u32 v3, {CNT}, v3")
    for r_ in range(20,24): g.I(f"v_mov_b32 v{r_}, 0")
    g.I("s_mov_b64 exec, 0xffff"); g.ds("ds_write_b128 v3, v[20:23]"); g.I("s_mov_b64 exec, -1")
    for tile in range(2,6): cs_final(20,tile)
    g.I(f"s_sub_u32 s82, 2, s{sPI}"); g.I(f"s_sub_i32 s83, s{sRB}, s82")
    g.I(f"s_cmp_ge_i32 s83, 0"); g.I(f"s_cselect_b32 s{need}, 1, 0")
    g.I(f"s_xor_b32 s{sDONE}, s{need}, 1"); g.I(f"s_mov_b32 s{sDV}, s{sDONE}")
    g.I(f"s_mul_i32 s{sSL}, s{sPI}, {4*SLOT}")
    g.I(f"s_max_i32 s83, s83, 0")
    g.I(f"s_lshl_b32 s81, s83, 4"); g.I(f"s_add_u32 s81, s81, s{sCS}"); g.I("s_lshl_b32 s81, s81, 7"); g.I(f"s_add_u32 s{sFK}, s81, {FKV}"); g.I(f"s_add_u32 s{sFV}, s81, {FVV}")
    g.I(f"s_lshl_b32 s81, s{sRB}, 2"); g.I(f"s_lshl_b32 s82, s{sPI}, 2"); g.I("s_add_u32 s81, s81, s82"); g.I("s_sub_u32 s81, s81, 8")
    g.I("s_lshl_b32 s81, s81, 4"); g.I(f"s_add_u32 s81, s81, s{sCS}"); g.I(f"s_mul_i32 s81, s81, {SLOTG}"); g.I(f"s_add_u32 s{sSRC}, s81, {KV}")
    g.I(f"s_lshl_b32 s81, s{sRB}, 2"); g.I(f"s_lshl_b32 s82, s{sPI}, 1"); g.I("s_add_u32 s81, s81, s82")
    g.I(f"s_lshl_b32 s{sKVo}, s81, 4"); g.I(f"s_add_u32 s{sKVo}, s{sKVo}, s{sCS}"); g.I(f"s_mul_i32 s{sKVo}, s{sKVo}, {SLOTG}"); g.I(f"s_add_u32 s{sKVo}, s{sKVo}, {KV}")
    g.I(f"s_mul_i32 s{sAHo}, s81, {NSTEP}"); g.I(f"s_lshl_b32 s82, s{sU32}, 1"); g.I(f"s_add_u32 s{sAHo}, s{sAHo}, s82"); g.I(f"s_lshl_b32 s{sAHo}, s{sAHo}, 10"); g.I(f"s_add_u32 s{sAHo}, s{sAHo}, {AH}")
    g.I(f"s_lshl_b32 s81, s{sPI}, 1"); g.I(f"s_add_u32 s81, s81, 8"); g.I(f"s_mul_i32 s81, s81, {SLOT}"); g.I("v_add_u32 v19, s81, v7")
    g.I(f"s_lshl_b32 s81, s{sPI}, 12"); g.I("v_add_u32 v20, s81, v7")
    g.lg0()
    get_tag()
    def exA(): g.I("s_mov_b32 exec_lo, 0x0000ffff"); g.I("s_mov_b32 exec_hi, 0x0000ffff")
    def exB(): g.I("s_mov_b32 exec_lo, 0xffff0000"); g.I("s_mov_b32 exec_hi, 0xffff0000")
    def remote_dma(kind):
        o=0 if kind=="K" else 2048
        for tt in range(4):
            for i in range(2):
                g.I(f"s_add_u32 m0, s{sSL}, {tt*SLOT+o+i*1024}")
                g.I(f"s_add_u32 s82, s{sSRC}, {tt*16*SLOTG+o+i*1024}")
                g.vmem(f"buffer_load_dwordx4 v7, {sWS}, s82 offen sc1 lds", cond=True)
        g.I(f"s_mov_b32 s{sDONE if kind=='K' else sDV}, 1")
    def remote_poll(kind):
        g.I(f"s_load_dword s{8 if kind=='K' else 9}, s[64:65], s{sFK if kind=='K' else sFV} glc")
    def remote_check(kind):
        Lskip=g.newlab("RSK")
        g.I(f"s_cmp_eq_u32 s{sDONE if kind=='K' else sDV}, 1"); g.I(f"s_cbranch_scc1 {Lskip}")
        g.I(f"s_cmp_lg_u32 s{8 if kind=='K' else 9}, s{sTAG}"); g.I(f"s_cbranch_scc1 {Lskip}")
        remote_dma(kind)
        g.lab(Lskip)
    def remote_block(kind,err):
        Lskip=g.newlab("RSK")
        g.I(f"s_cmp_eq_u32 s{sDONE if kind=='K' else sDV}, 1"); g.I(f"s_cbranch_scc1 {Lskip}")
        spoll(g,sFK if kind=="K" else sFV,1,err,29)
        remote_dma(kind)
        g.lab(Lskip)
    def publish(kind):
        for tt in range(2):
            if kind=="K":
                b=PB_+8*tt
                for i in range(2): g.ds(f"ds_read_b128 v[{b+4*i}:{b+4*i+3}], v19 offset:{tt*SLOT+i*1024}",tag=f"pb{tt}")
            elif kind=="V":
                b=PB_+8*tt
                for i in range(2): g.ds(f"ds_read_b128 v[{b+4*i}:{b+4*i+3}], v19 offset:{tt*SLOT+2048+i*1024}",tag=f"pb{tt}")
            else:
                b=PB_+8*tt
                for i in range(2): g.ds(f"ds_read_b128 v[{b+4*i}:{b+4*i+3}], v21 offset:{tt*2048+i*1024}",tag=f"pb{tt}")
        for tt in range(2):
            g.wait_lg(f"pb{tt}")
            if kind=="K":
                g.I(f"s_add_u32 s82, s{sKVo}, {tt*16*SLOTG}")
                for i in range(2): g.vmem(f"buffer_store_dwordx4 v[{PB_+8*tt+4*i}:{PB_+8*tt+4*i+3}], v7, {sWS}, s82 offen offset:{i*1024} sc1",tag="kst")
            elif kind=="V":
                g.I(f"s_add_u32 s82, s{sKVo}, {tt*16*SLOTG+2048}")
                for i in range(2): g.vmem(f"buffer_store_dwordx4 v[{PB_+8*tt+4*i}:{PB_+8*tt+4*i+3}], v7, {sWS}, s82 offen offset:{i*1024} sc1",tag="vst")
            else:
                g.I(f"s_add_u32 s82, s{sAHo}, {tt*NSTEP*1024+2*kind*1024}")
                for i in range(2): g.vmem(f"buffer_store_dwordx4 v[{PB_+8*tt+4*i}:{PB_+8*tt+4*i+3}], v7, {sWS}, s82 offen offset:{i*1024} sc1",tag="hst")
    def touch(srd,nl,reg,vaddr=15,mul=None):
        g.I(f"s_mul_i32 s81, s2, {mul if mul else nl*128}")
        if nl>32: g.I(f"s_mov_b32 exec_hi, {hex((1<<(nl-32))-1)}")
        else: g.I(f"s_mov_b32 exec_hi, 0"); g.I(f"s_mov_b32 exec_lo, {hex((1<<nl)-1)}")
        g.vmem(f"buffer_load_dword v{reg}, v{vaddr}, {srd}, s81 offen ;pf")
        g.I("s_mov_b64 exec, -1")
    def by_pi(k,fn):
        Lq=g.newlab("PI"); g.I(f"s_cmp_eq_u32 s{sPI}, {k}"); g.I(f"s_cbranch_scc0 {Lq}")
        save=list(g.vm); fn(); g.vm=save; g.lab(Lq)
    for it in range(8):
        bar([],it)
        if it==0: g.ts(1)
        kv_stats(it)
        if it==OPT.get('pf0it',4) and OPT["pf0"]:
            by_pi(0,lambda: touch(sW1,43,244))
            def wq():
                g.I("v_lshrrev_b32 v22, 3, v0"); g.I("v_mul_u32_u24 v22, 3072, v22"); g.I("v_and_b32 v23, 7, v0"); g.I("v_lshl_add_u32 v22, v23, 7, v22")
                touch(sWQ,16,245,vaddr=22,mul=2*3072)
            by_pi(1,wq)
        if it==OPT.get('pf1it',6) and OPT["pf1"]:
            by_pi(0,lambda: touch(sW2,43,246)); by_pi(1,lambda: touch(sWO,16,247))
        kv_stats2(it)
    bar([],8)
    g.ts(2)
    g.ts(0,8)
    g.I("v_and_b32 v3, 1, v0"); g.I("v_lshlrev_b32 v3, 3, v3"); g.I(f"s_lshl_b32 s81, s{sPI}, 4"); g.I(f"s_add_u32 s81, s81, {SY+96}"); g.I("v_add_u32 v22, s81, v3")
    g.I(f"s_lshl_b32 s81, s{sPI}, 2"); g.I(f"s_add_u32 s81, s81, {CNT+16}"); g.I("v_mov_b32 v23, s81")
    g.I(f"v_mov_b32 v3, {CNT+20}")
    g.I("v_mov_b32 v30, v3")
    def pmark(val,flagfn):
        g.I(f"v_mov_b32 v26, {val}"); g.ds("ds_write_b32 v23, v26")
        Lq=g.newlab("PI"); g.I(f"s_cmp_eq_u32 s{sPI}, 0"); g.I(f"s_cbranch_scc0 {Lq}")
        save=list(g.vm); lspin(g,30,0,val,31); flagfn(); g.vm=save; g.lab(Lq); g.lg=[]
    Lnz=g.newlab("NOZF")
    g.I(f"s_cmp_eq_u32 s{need}, 1"); g.I(f"s_cbranch_scc1 {Lnz}")
    g.I(f"v_add_u32 v8, s{sSL}, v7")
    for r_ in range(24,28): g.I(f"v_mov_b32 v{r_}, 0")
    for i in range(16): g.ds(f"ds_write_b128 v8, v[24:27] offset:{i*1024}",cond=True)
    g.lab(Lnz)
    g.lg0()
    lspin(g,22,0,1,31,sleep=True); publish("K")
    g.ts(1,8)
    def pub_r():
        Lr=g.newlab("NOR")
        g.I(f"s_cmp_eq_u32 s{sCS}, 0"); g.I(f"s_cbranch_scc0 {Lr}")
        g.I("v_lshlrev_b32 v28, 3, v0"); g.I(f"v_add_u32 v29, {RL}, v28")
        g.I("ds_read_b64 v[40:41], v29"); g.I("s_waitcnt lgkmcnt(0)")
        g.I(f"s_lshl_b32 s82, s{sRB}, 9"); g.I(f"s_add_u32 s82, s82, {STR}")
        g.vmem(f"buffer_store_dwordx2 v[40:41], v28, {sWS}, s82 offen sc1")
        g.lab(Lr)
    def pub_r2():
        g.I(f"v_add_u32 v29, 16, v22"); lspin(g,29,0,1,31,sleep=True); pub_r()
    by_pi(0,pub_r2); g.lg=[]
    lspin(g,22,0,2,31,sleep=True); publish("V")
    g.ts(2,8)
    g.wait_vm("kst"); pmark(1,lambda: flag_store1(g,FKV,16,17))
    g.ts(3,8)
    g.wait_vm("vst"); pmark(2,lambda: flag_store1(g,FVV,16,17))
    g.ts(4,8)
    def tries():
        remote_check("K"); remote_check("V")
    def polls():
        remote_poll("K"); remote_poll("V")
    polls()
    g.I("s_waitcnt lgkmcnt(0)"); tries(); polls()
    lspin(g,22,0,3,31,sleep=True)
    g.ts(5,8)
    tries()
    g.I(f"v_add_u32 v21, {HST[0]}, v20"); publish(0)
    remote_block("K",0x102)
    g.vm0(" lgkmcnt(0)")
    g.I(f"v_mov_b32 v8, {CNT+12}"); g.I("v_mov_b32 v9, 1")
    g.I("s_mov_b64 exec, 1"); g.I("ds_add_u32 v8, v9"); g.I("s_mov_b64 exec, -1")
    g.I(f"s_mov_b32 s98, s{sDV}")
    pmark(3,lambda: flag_store16(g,FH,16,17))
    g.ts(7,8)
    remote_poll("V"); g.I("s_waitcnt lgkmcnt(0)"); remote_check("V")
    g.ts(9); g.ts(10)
    g.lab("L_ATT"); g.vm=[]; g.lg=[]
    g.lx(0)
    pub_remote_block=remote_block; pub_pmark=pmark
    g.I(f"v_mov_b32 v8, {CNT+12}")
    Lk=g.newlab("KSP"); Dk=g.newlab("KSD")
    g.I(f"s_mov_b32 s{sSPIN}, {OPT['spin']}")
    g.lab(Lk)
    g.I("ds_read_b32 v9, v8"); g.I("s_waitcnt lgkmcnt(0)")
    g.I("v_cmp_ne_u32 vcc, 2, v9"); g.I("s_nop 0"); g.I(f"s_cbranch_vccz {Dk}")
    g.I(f"s_sub_u32 s{sSPIN}, s{sSPIN}, 1"); g.I(f"s_cbranch_scc0 {Lk}")
    g.lab(Dk)
    g.I(f"s_lshl_b32 s81, s{sHW}, 3"); g.I(f"s_add_u32 s81, s81, {SY+96}"); g.I("v_mov_b32 v8, s81")
    lspin(g,8,0,5,9,sleep=True)
    g.lx(1)
    g.ts(3)
    if OPT["prio"]: g.I("s_setprio 3")
    QF=16
    g.I(f"s_lshl_b32 s81, s{sHW}, 11"); g.I(f"s_add_u32 s81, s81, {QL}")
    g.I("v_add_u32 v10, s81, v7")
    g.ds(f"ds_read_b128 v[{QF}:{QF+3}], v10", tag="q"); g.ds(f"ds_read_b128 v[{QF+4}:{QF+7}], v10 offset:1024", tag="q")
    g.I(f"s_mul_i32 s81, s{sHW}, {SLOT}")
    g.I("v_add_u32 v11, s81, v7")
    Lgen=g.newlab("ATG"); Lfin=g.newlab("ATF")
    g.I(f"s_cmp_eq_u32 s{sTM}, 0"); g.I(f"s_cbranch_scc0 {Lgen}")
    def vsync():
        Lnp=g.newlab("NPUB")
        g.I(f"v_mov_b32 v8, {CNT+8}")
        g.I(f"s_cmp_ge_u32 s{sHW}, 2"); g.I(f"s_cbranch_scc0 {Lnp}")
        Lve=g.newlab("VE")
        g.I("s_cmp_eq_u32 s98, 1"); g.I(f"s_cbranch_scc1 {Lve}")
        pub_remote_block("V",0x105)
        g.I("s_waitcnt vmcnt(0)"); g.vm=[]
        g.lab(Lve)
        g.I("v_mov_b32 v9, 1")
        g.I("s_mov_b64 exec, 1"); g.I("ds_add_u32 v8, v9"); g.I("s_mov_b64 exec, -1")
        g.lab(Lnp)
        L=g.newlab("LSP"); D=g.newlab("LSD")
        g.I(f"s_mov_b32 s{sSPIN}, {OPT['spin']}")
        g.lab(L)
        g.I("ds_read_b32 v9, v8"); g.I("s_waitcnt lgkmcnt(0)"); g.lg=[]
        g.I("v_cmp_ne_u32 vcc, 2, v9"); g.I("s_nop 0"); g.I(f"s_cbranch_vccz {D}")
        g.I(f"s_sub_u32 s{sSPIN}, s{sSPIN}, 1"); g.I(f"s_cbranch_scc0 {L}")
        g.lab(D)
    def fh1():
        Lnp=g.newlab("NPB")
        g.I(f"s_cmp_ge_u32 s{sHW}, 2"); g.I(f"s_cbranch_scc0 {Lnp}")
        lgs=list(g.lg)
        g.I("s_waitcnt vmcnt(0)")
        g.I("s_lshl_b32 s81, s73, 2"); g.I(f"s_add_u32 s81, s81, {CNT+16}"); g.I("v_mov_b32 v12, s81"); g.I(f"v_mov_b32 v13, {CNT+20}")
        g.I("v_mov_b32 v14, 4"); g.I("ds_write_b32 v12, v14")
        Lq=g.newlab("PI"); g.I("s_cmp_eq_u32 s73, 0"); g.I(f"s_cbranch_scc0 {Lq}")
        lspin(g,13,0,4,14); flag_store16(g,FH+0x8000,14,15); g.lab(Lq)
        g.lab(Lnp); g.lg=lgs
    lg=list(g.lg); vm=list(g.vm)
    OA=attention(g,False,QF,BD,BO,sTM,vsync,fh1)
    g.I(f"s_branch {Lfin}")
    g.lab(Lgen); g.lg=lg; g.vm=vm
    attention(g,True,QF,BD,BO,sTM,vsync,fh1)
    g.lab(Lfin)
    g.nop(12)
    g.lta_dump()
    g.lx(5)
    g.ts(14,8)
    g.ts(5)
    g.I(f"v_rcp_f32 v72, v{OA[0]+8}"); g.I(f"v_rcp_f32 v73, v{OA[1]}"); g.I("s_nop 0")
    for e in range(8):
        g.I(f"v_mul_f32 v{OA[0]+e}, v{OA[0]+e}, v72"); g.I(f"v_mul_f32 v{OA[1]+8+e}, v{OA[1]+8+e}, v73")
    for e in range(4):
        g.I(f"v_cvt_pk_bf16_f32 v{76+e}, v{OA[0]+2*e}, v{OA[0]+2*e+1}")
        g.I(f"v_cvt_pk_bf16_f32 v{80+e}, v{OA[1]+8+2*e}, v{OA[1]+8+2*e+1}")
    g.I(f"s_lshl_b32 s81, s{sRB}, 2"); g.I(f"s_add_u32 s81, s81, s{sHW}"); g.I(f"s_mul_i32 s81, s81, {NSTEP}")
    g.I(f"s_lshl_b32 s82, s{sCS}, 1"); g.I("s_add_u32 s81, s81, s82"); g.I("s_add_u32 s81, s81, 86")
    g.I("s_lshl_b32 s81, s81, 10"); g.I(f"s_add_u32 s81, s81, {AH}")
    g.vmem(f"buffer_store_dwordx4 v[76:79], v7, {sWS}, s81 offen sc1")
    g.vmem(f"buffer_store_dwordx4 v[80:83], v7, {sWS}, s81 offen offset:1024 sc1")
    g.lx(6)
    g.vm0()
    g.lx(7)
    g.I(f"v_mov_b32 v8, {CNT+4}"); g.I("v_mov_b32 v9, 1")
    g.I("s_mov_b64 exec, 1")
    g.I("ds_add_rtn_u32 v10, v8, v9"); g.I("s_waitcnt lgkmcnt(0)")
    g.I("v_readfirstlane_b32 s81, v10"); g.I("s_mov_b64 exec, -1")
    Lno=g.newlab("NOFO")
    g.I("s_cmp_eq_u32 s81, 3"); g.I(f"s_cbranch_scc0 {Lno}")
    flag_store16(g,FO,3,4)
    g.lab(Lno)
    g.lx(8)
    g.lta_dump(final=True)
    g.ts(6)
    g.ts(15,8)
    g.I(f"s_or_b32 s81, s2, s{sHW}")
    g.I("s_cmp_eq_u32 s81, 0"); g.I("s_cbranch_scc0 L_END")
    g.I("v_lshrrev_b32 v3, 2, v0"); g.I("v_lshlrev_b32 v3, 11, v3"); g.I("v_and_b32 v4, 3, v0"); g.I("v_lshl_add_u32 v3, v4, 4, v3")
    g.I(f"v_add_u32 v3, {FH}, v3")
    Ln=g.newlab("NB"); Dn=g.newlab("NBD")
    g.I(f"s_mov_b32 s{sSPIN}, {OPT['spin']}")
    g.lab(Ln)
    g.vmem(f"buffer_load_dwordx4 v[12:15], v3, {sWS}, 0 offen sc1")
    g.I("s_waitcnt vmcnt(0)")
    for k in range(4): g.I(f"v_xor_b32 v{12+k}, s{sTAG}, v{12+k}")
    g.I("v_or_b32 v12, v12, v13"); g.I("v_or_b32 v14, v14, v15"); g.I("v_or_b32 v12, v12, v14")
    g.I("v_cmp_ne_u32 vcc, 0, v12"); g.I("s_nop 0"); g.I(f"s_cbranch_vccz {Dn}")
    g.I(f"s_sub_u32 s{sSPIN}, s{sSPIN}, 1"); g.I(f"s_cbranch_scc0 {Ln}")
    g.lab(Dn)
    g.I("v_mov_b32 v3, 0"); g.I(f"v_mov_b32 v5, s{sTAG}")
    g.I("s_mov_b64 exec, 1")
    g.vmem(f"buffer_store_dword v5, v3, {sWS}, 0 offen sc1")
    g.I("s_waitcnt vmcnt(0)")
    g.I("s_branch L_END")

def gwave(g):
    g.lab("L_GWAVE"); g.tsreg=5
    XF=128
    ACC=[64,80,96,112]
    vXa=8; vWkv=12; vWt=13; vL16=7; vSL=51
    g.I("s_load_dwordx2 s[52:53], s[0:1], 40"); g.I("s_load_dwordx2 s[56:57], s[0:1], 16")
    g.I("s_load_dwordx2 s[60:61], s[0:1], 48"); g.I("s_load_dwordx2 s[68:69], s[0:1], 56")
    g.I("v_lshlrev_b32 v7, 4, v0")
    for base,size in ((52,1409024),(56,524288),(60,2097152)):
        g.I(f"s_mov_b32 s{base+2}, {size}"); g.I(f"s_mov_b32 s{base+3}, 0x20000")
    g.I("v_and_b32 v2, 31, v0")
    g.I("v_lshrrev_b32 v3, 3, v2"); g.I("v_lshlrev_b32 v3, 10, v3"); g.I("v_and_b32 v4, 7, v2"); g.I("v_lshl_add_u32 v3, v4, 7, v3")
    g.I("v_bfe_u32 v4, v0, 1, 3"); g.I("v_lshrrev_b32 v5, 5, v0"); g.I("v_xor_b32 v4, v4, v5"); g.I("v_lshl_add_u32 v3, v4, 4, v3")
    g.I(f"s_lshl_b32 s72, s{sW}, 12"); g.I(f"v_add_u32 v{vXa}, s72, v3")
    for t in range(1,4): g.I(f"v_xor_b32 v{vXa+t}, {t<<5}, v{vXa}")
    g.I("v_lshrrev_b32 v3, 5, v0"); g.I("v_lshlrev_b32 v3, 3, v3"); g.I("v_bfe_u32 v4, v0, 2, 2"); g.I("v_add_u32 v3, v3, v4")
    g.I("v_lshlrev_b32 v3, 6, v3"); g.I("v_bfe_u32 v4, v0, 4, 1"); g.I("v_lshl_add_u32 v3, v4, 5, v3")
    g.I("v_and_b32 v4, 3, v0"); g.I("v_lshl_add_u32 v3, v4, 3, v3")
    g.I(f"v_add_u32 v{vWkv}, 16384, v3"); g.I(f"v_add_u32 v{vWt}, {R2}, v3")
    g.I(f"v_lshlrev_b32 v{vSL}, 4, v2"); g.I(f"v_add_u32 v{vSL}, {SL}, v{vSL}")
    g.I("v_lshrrev_b32 v6, 5, v0"); g.I("v_add_u32 v6, -1, v6")
    g.I(f"s_add_u32 s73, s{sW}, 8"); g.I(f"s_mul_i32 s73, s73, {SLOT}"); g.I("v_add_u32 v14, s73, v7")
    g.I(f"s_lshl_b32 s72, s{sW}, 7"); g.I("v_lshlrev_b32 v4, 2, v2"); g.I("v_add_u32 v4, s72, v4"); g.I(f"v_add_u32 v4, {NM}, v4")
    g.I("v_lshrrev_b32 v3, 5, v0"); g.I("v_lshlrev_b32 v3, 4, v3"); g.I(f"s_add_u32 s72, s72, {RL}"); g.I("v_add_u32 v3, s72, v3")
    g.I(f"s_lshl_b32 s76, s{sW}, 11"); g.I(f"s_add_u32 s76, s76, {HST[0]}"); g.I("v_add_u32 v15, s76, v7")
    g.I("v_and_b32 v1, 1, v0"); g.I("v_lshlrev_b32 v1, 2, v1"); g.I(f"s_lshl_b32 s76, s{sW}, 3"); g.I(f"s_add_u32 s76, s76, {SY}"); g.I("v_add_u32 v1, s76, v1")
    g.I(f"s_and_b32 s72, s{sIDX}, 3")
    g.I(f"s_lshl_b32 s{sA3}, s{sJ}, 3"); g.I("s_lshl_b32 s73, s72, 1"); g.I(f"s_add_u32 s{sA3}, s{sA3}, s73")
    g.I(f"s_lshr_b32 s{sCT}, s{sIDX}, 2"); g.I(f"s_lshr_b32 s{sRB3}, s{sA3}, 2")
    g.I("s_waitcnt lgkmcnt(0)")
    g.I("v_mov_b32 v5, 0")
    g.vmem(f"buffer_load_dword v28, v5, {sWS}, 0 offen sc1", tag="nonce")
    sRG=82; sA=[83,84,85]; sWb=[86,87,88]; sFH=89; sFO=94; sXo=78
    g.I(f"s_lshl_b32 s{sRG}, s{sW}, 14"); g.I(f"s_add_u32 s{sRG}, s{sRG}, {RING}")
    g.I(f"s_lshr_b32 s95, s{sW}, 1"); g.I(f"s_and_b32 s96, s{sW}, 1")
    g.I("s_mul_i32 s97, s95, 6"); g.I("s_add_u32 s97, s97, s96")
    g.I("s_lshl_b32 s98, s95, 2"); g.I("s_add_u32 s98, s98, s96")
    g.I(f"s_mul_i32 s99, s{sA3}, {NSTEP}")
    for k,src in ((0,97),(1,98)):
        g.I(f"s_add_u32 s{sA[k]}, s99, s{src}"); g.I(f"s_lshl_b32 s{sA[k]}, s{sA[k]}, 10"); g.I(f"s_add_u32 s{sA[k]}, s{sA[k]}, {AH}")
        g.I(f"s_lshl_b32 s{sWb[k]}, s{src}, 14")
    g.I(f"s_add_u32 s{sA[2]}, s99, s{sW}"); g.I(f"s_add_u32 s{sA[2]}, s{sA[2]}, 86"); g.I(f"s_lshl_b32 s{sA[2]}, s{sA[2]}, 10"); g.I(f"s_add_u32 s{sA[2]}, s{sA[2]}, {AH}")
    g.I(f"s_lshl_b32 s{sWb[2]}, s{sW}, 14")
    g.I(f"s_lshl_b32 s{sFH}, s{sRB3}, 4"); g.I(f"s_lshl_b32 s95, s{sCT}, 1"); g.I(f"s_add_u32 s{sFH}, s{sFH}, s95"); g.I(f"s_and_b32 s95, s{sIDX}, 1"); g.I(f"s_add_u32 s{sFH}, s{sFH}, s95")
    g.I(f"s_lshl_b32 s{sFH}, s{sFH}, 7"); g.I(f"s_add_u32 s{sFO}, s{sFH}, {FO}"); g.I(f"s_add_u32 s{sFH}, s{sFH}, {FH}")
    sKVo=74; sAHo=93
    g.I(f"s_lshl_b32 s72, s{sRB}, 2"); g.I(f"s_add_u32 s72, s72, s{sW}")
    g.I(f"s_lshl_b32 s{sKVo}, s72, 4"); g.I(f"s_add_u32 s{sKVo}, s{sKVo}, s{sCS}"); g.I(f"s_mul_i32 s{sKVo}, s{sKVo}, {SLOT}"); g.I(f"s_add_u32 s{sKVo}, s{sKVo}, {KV}")
    g.I(f"s_mul_i32 s{sAHo}, s72, {NSTEP}"); g.I(f"s_lshl_b32 s73, s{sU32}, 1"); g.I(f"s_add_u32 s{sAHo}, s{sAHo}, s73"); g.I(f"s_lshl_b32 s{sAHo}, s{sAHo}, 10"); g.I(f"s_add_u32 s{sAHo}, s{sAHo}, {AH}")
    g.wait_vm("cpf","nonce")
    g.I(f"v_readfirstlane_b32 s{sTAG}, v28"); g.I("s_nop 1")
    g.I(f"s_add_u32 s{sTAG}, s{sTAG}, {TAGC}"); g.I(f"s_mov_b32 s24, s{sTAG}"); g.I(f"s_mov_b32 s25, s{sTAG}")
    g.ts(0)
    steps=[]
    WKV=[16,24,32,40]
    for it in range(8):
        st=KVB(it); off0 = st if st<R2 else st-R2
        for t in range(4):
            n=it*4+t; wb=WKV[n%4]; xf=XF+4*n
            rd=[(f"ds_read_b128 v[{xf}:{xf+3}], v{vXa+t} offset:{off0}")]
            for u in range(2):
                off=off0+u*4096+t*1024
                rd.append(f"ds_read_b64_tr_b16 v[{wb+4*u}:{wb+4*u+1}], v{vWkv} offset:{off}")
                rd.append(f"ds_read_b64_tr_b16 v[{wb+4*u+2}:{wb+4*u+3}], v{vWkv} offset:{off+256}")
            X=f"v[{xf}:{xf+3}]"; a0=ACC[0]; a1=ACC[1]
            mf=[f"v_mfma_f32_32x32x16_bf16 v[{a0}:{a0+15}], v[{wb}:{wb+3}], {X}, {'0' if n==0 else f'v[{a0}:{a0+15}]'}",
                f"v_mfma_f32_32x32x16_bf16 v[{a1}:{a1+15}], {X}, v[{wb+4}:{wb+7}], {'0' if n==0 else f'v[{a1}:{a1+15}]'}"]
            GR=112
            post=[f"v_mfma_f32_32x32x16_bf16 v[{GR}:{GR+15}], {X}, {X}, {'0' if n==0 else f'v[{GR}:{GR+15}]'}"]
            pre_rd=[]
            if t==0 and it==3:
                pre_rd=[f"v_add_u32 v{vXa+k}, {R2}, v{vXa+k}" for k in range(4)]+[f"v_add_u32 v{vWkv}, {R2}, v{vWkv}"]
            if t==0 and it==5:
                pre_rd=[f"v_subrev_u32 v{vXa+k}, {R2}, v{vXa+k}" for k in range(4)]+[f"v_subrev_u32 v{vWkv}, {R2}, v{vWkv}"]
            steps.append(dict(rd=rd,mf=mf,post=post,pre_rd=pre_rd,bar=(t==0),lag=3,hold=0,idx=it))
    WT=[32,36,40,16,20,24,28]
    tacc=[ACC[2],ACC[3],ACC[2],ACC[0]]
    cnt=0
    def addstep(P,off,a,sx,first):
        nonlocal cnt
        wb=WT[cnt%7]; xf=XF+4*sx
        rd=[f"ds_read_b64_tr_b16 v[{wb}:{wb+1}], v{vWt} offset:{off}", f"ds_read_b64_tr_b16 v[{wb+2}:{wb+3}], v{vWt} offset:{off+256}"]
        mf=[f"v_mfma_f32_32x32x16_bf16 v[{a}:{a+15}], v[{wb}:{wb+3}], v[{xf}:{xf+3}], {'0' if first else f'v[{a}:{a+15}]'}"]
        steps.append(dict(rd=rd,mf=mf,post=[],pre_rd=[],bar=(cnt%16==0),lag=OPT.get('lag',6),hold=OPT.get('hold',0),idx=8+cnt//16,T=P,s=cnt%64))
        cnt+=1
    for n4 in range(4):
        for kk in range(2):
            for t in range(4):
                for y in range(2):
                    sx=(2*n4+kk)*4+t
                    addstep(0,n4*16384+(kk*2+y)*4096+t*1024,[ACC[2],ACC[3]][y],sx,sx==0)
    for n in range(4,8):
        for u in range(4):
            for t in range(4):
                sx=(4*(n&1)+u)*4+t
                pair=[ACC[0],ACC[1]] if n<6 else [ACC[2],ACC[3]]
                addstep(1,(n%4)*16384+u*4096+t*1024,pair[sx%2],sx,sx<2)
    CX=44; RI=48; SJ4=52; CW=56
    fill={}
    def I(t): return lambda: g.I(t)
    def DS(t,tag=None): return lambda: g.ds(t,tag)
    def VM(t,tag=None,cond=False): return (lambda: g.vmem(t,tag,cond)) if not OPT.get("nogst") else None
    def WL(*tg): return lambda: g.wait_lg(*tg)
    SKIP=None
    GAP=OPT.get("gap",18)
    def sj_read(tile,reg): return [DS(f"ds_read_b128 v[{reg}:{reg+3}], v{vSL} offset:{tile*512}",f"sj{tile}")]
    def corr_prep(tile,reg=None):
        s_=reg if reg is not None else SJ4; w=CW
        return [WL(f"sj{tile}"), I(f"v_add_f32 v{s_}, v{s_}, v{s_+1}"), I(f"v_add_f32 v{s_+2}, v{s_+2}, v{s_+3}"), I(f"v_add_f32 v{s_}, v{s_}, v{s_+2}"),
                I(f"v_and_b32 v{s_}, v6, v{s_}"), I(f"v_cvt_pk_bf16_f32 v60, v{s_}, v{s_}"), I("v_and_b32 v61, 0xffff0000, v60"),
                I(f"v_sub_f32 v62, v{s_}, v61"), I("v_cvt_pk_bf16_f32 v63, v62, v62"), I("v_and_b32 v63, 0xffff0000, v63"),
                I("v_sub_f32 v62, v62, v63"), I(f"v_cvt_pk_bf16_f32 v{w}, v61, v63"), I(f"v_cvt_pk_bf16_f32 v{w+1}, v62, 0"), I("s_nop 1")]
    def corr_mfma(a,normal):
        W=f"v[{CW}:{CW+3}]"; X=f"v[{CX}:{CX+3}]"
        return [I(f"v_mfma_f32_32x32x16_bf16 v[{a}:{a+15}], {X if normal else W}, {W if normal else X}, v[{a}:{a+15}]")]
    GR=112
    a1,a2=49,50
    diag=[]
    for lvl,bit in enumerate((0,1,3,4)): diag.append(f"v_bfe_i32 v{60+lvl}, v0, {bit}, 1")
    diag+=["v_bfe_u32 v52, v0, 2, 1","v_lshrrev_b32 v53, 5, v0","v_xor_b32 v52, v52, v53","v_add_u32 v52, -1, v52","s_nop 4"]
    n=16
    for lvl in range(4):
        n//=2
        for k in range(n): diag.append(f"v_bfi_b32 v{GR+k}, v{60+lvl}, v{GR+2*k+1}, v{GR+2*k}")
    diag+=[f"v_and_b32 v{a2}, v52, v{GR}", f"v_mov_b32 v61, v{a2}", f"v_mov_b32 v{CX+2}, 0", f"v_mov_b32 v{CX+3}, 0",
           f"v_permlane32_swap_b32 v{a2}, v61", f"v_mov_b32 v{CW+2}, 0", f"v_add_f32 v{a2}, v{a2}, v61", f"v_mov_b32 v{CW+3}, 0"]
    diag+=["v_lshrrev_b32 v8, 3, v0","v_lshlrev_b32 v8, 10, v8","v_and_b32 v9, 7, v0","v_bfe_u32 v10, v0, 4, 1","v_lshlrev_b32 v10, 2, v10","v_xor_b32 v10, v9, v10",
           "v_lshl_add_u32 v10, v10, 4, v8", f"s_lshl_b32 s72, s{sCT}, 7", "v_add_u32 v10, s72, v10",
           f"s_lshl_b32 s72, s{sW}, 13", "v_add_u32 v8, s72, v8", "v_lshl_add_u32 v11, v9, 4, v8",
           "v_lshrrev_b32 v8, 5, v0","v_lshlrev_b32 v8, 2, v8","v_bfe_u32 v9, v0, 2, 2","v_add_u32 v8, v8, v9","v_lshlrev_b32 v8, 7, v8",
           "v_bfe_u32 v9, v0, 3, 1","v_lshl_add_u32 v8, v9, 6, v8","v_bfe_u32 v9, v0, 4, 1","v_lshl_add_u32 v8, v9, 5, v8",
           "v_and_b32 v9, 3, v0","v_lshl_add_u32 v8, v9, 3, v8", f"v_add_u32 v12, s{sRG}, v8"]
    stf0=[DS(f"ds_read_b32 v{a1}, v4","st")]+sj_read(0,SJ4)
    stf=[SKIP]*3
    aK=ACC[0]; aV=ACC[1]
    RVR=aK+8
    st2=[WL("st"),
          I(f"v_mul_f32 v{a1}, 0x3b000000, v{a1}"), I(f"v_mul_f32 v{a2}, 0x3b000000, v{a2}"),
          I(f"v_fma_f32 v{a2}, -v{a1}, v{a1}, v{a2}"), I(f"v_cvt_pk_bf16_f32 v{CX}, -v{a1}, -v{a1}"), I(f"v_max_f32 v{a2}, 0, v{a2}"),
          I(f"v_mov_b32 v{CX+1}, v{CX}"), I(f"v_cvt_pk_bf16_f32 v{a2}, v{a2}, v{a2}"),
          I(f"v_and_b32 v{a2}, 0xffff0000, v{a2}"),
          I(f"v_add_f32 v{a2}, 0x3727c5ac, v{a2}"), I(f"v_cvt_pk_bf16_f32 v{a2}, v{a2}, v{a2}"), I(f"v_and_b32 v{a2}, 0xffff0000, v{a2}"),
          I(f"v_sqrt_f32 v{a2}, v{a2}"), I("s_nop 0"), I(f"v_cvt_pk_bf16_f32 v{a2}, v{a2}, v{a2}"), I(f"v_and_b32 v{a2}, 0xffff0000, v{a2}"),
          I(f"v_rcp_f32 v{RI}, v{a2}"), I("s_nop 0"),
          DS(f"ds_write_b32 v4, v{RI} offset:{RL-NM}","rlw")]
    def rvload(q0,tag): return [DS(f"ds_read_b128 v[{RVR+4*q}:{RVR+4*q+3}], v3 offset:{(q0+q)*32}",tag) for q in range(2)]
    kmul=[I(f"v_mul_f32 v{aK+r}, v{aK+r}, v{RI}") for r in range(16)]
    kcvt=[I(f"v_cvt_pk_bf16_f32 v{aK+e}, v{aK+2*e}, v{aK+2*e+1}") for e in range(8)]
    kst=[]
    for hh in range(2):
        kst.append(DS(f"ds_write_b128 v14, v[{aK+4*hh}:{aK+4*hh+3}] offset:{hh*1024}","kw"))
    vmulA=[WL("rv0")]+[I(f"v_mul_f32 v{aV+r}, v{aV+r}, v{RVR+r}") for r in range(8)]
    vmulB=[WL("rv1")]+[I(f"v_mul_f32 v{aV+8+r}, v{aV+8+r}, v{RVR+r}") for r in range(8)]
    vcvtA=[I(f"v_cvt_pk_bf16_f32 v{aV+e}, v{aV+2*e}, v{aV+2*e+1}") for e in range(4)]
    vcvtB=[I(f"v_cvt_pk_bf16_f32 v{aV+e}, v{aV+2*e}, v{aV+2*e+1}") for e in range(4,8)]
    vst=[DS(f"ds_write_b128 v14, v[{aV+4*half}:{aV+4*half+3}] offset:{2048+half*1024}","vw") for half in range(2)]
    def atomic(L):
        def f():
            for x in L:
                if x is not None: x()
        return [f]
    def mark(val): return atomic([I(f"v_mov_b32 v5, {val}"), DS("ds_write_b32 v1, v5 offset:96")])
    def chk(vaddr,off,N): return [lambda: lspin(g,vaddr,off,N,8)]
    def chk_prefill():
        g.I(f"s_lshr_b32 s76, s{sW}, 1"); g.I("s_lshl_b32 s76, s76, 2"); g.I(f"s_add_u32 s76, s76, {CNT+24}"); g.I("v_mov_b32 v9, s76")
        lspin(g,9,0,1,8)
    fill[0]=(stf+st2+corr_prep(0)+corr_mfma(aK,False)+sj_read(1,SJ4)+[SKIP]*12+kmul+kcvt+rvload(0,"rv0")+kst+mark(1)
             +corr_prep(1)+corr_mfma(aV,True)+[SKIP]*12+vmulA+rvload(2,"rv1")+vcvtA+[SKIP]*10+vmulB+vcvtB+vst+mark(2))
    def hep(T):
        a=tacc[T]
        L=sj_read(2+T,SJ4)+[SKIP]*GAP
        if T==2: L+=[I(f"v_add_f32 v{a+r}, v{a+r}, v{ACC[3]+r}") for r in range(16)]
        L+=corr_prep(2+T)+corr_mfma(a,False)+[SKIP]*13
        L+=[I(f"v_max_f32 v{a+r}, 0, v{a+r}") for r in range(16)]
        L+=[I(f"v_cvt_pk_bf16_f32 v{a+e}, v{a+2*e}, v{a+2*e+1}") for e in range(8)]
        if T<2:
            for half in range(2):
                L.append(DS(f"ds_write_b128 v15, v[{a+4*half}:{a+4*half+3}] offset:{(HST[T]-HST[0])+half*1024}",f"hw{T}"))
        else:
            def cond_store():
                Ls=g.newlab("NOT2")
                g.I(f"s_cmp_eq_u32 s{sNT}, 3"); g.I(f"s_cbranch_scc0 {Ls}")
                g.I(f"s_add_u32 s96, s{sAHo}, 4096")
                for half in range(2):
                    g.vmem(f"buffer_store_dwordx4 v[{a+4*half}:{a+4*half+3}], v7, {sWS}, s96 offen offset:{half*1024} sc1",tag="hst2",cond=True)
                g.lab(Ls)
            L.append(cond_store)
        return L
    aQ=tacc[3]
    qep=(chk(1,32,2)+sj_read(5,SJ4)+[SKIP]*8+[I(f"v_add_f32 v{aQ+r}, v{aQ+r}, v{ACC[1]+r}") for r in range(16)]+corr_prep(5)+corr_mfma(aQ,False)+[I("v_mov_b32 v60, 0x3eb8aa3b"), I(f"v_mul_f32 v60, v{RI}, v60"),
         I(f"s_lshl_b32 s72, s{sW}, 11"), I(f"s_add_u32 s72, s72, {QL}"), I("v_add_u32 v9, s72, v7")]+[SKIP]*10
         +[I(f"v_mul_f32 v{aQ+r}, v{aQ+r}, v60") for r in range(16)]+[I(f"v_cvt_pk_bf16_f32 v{aQ+e}, v{aQ+2*e}, v{aQ+2*e+1}") for e in range(8)]
         +[DS(f"ds_write_b128 v9, v[{aQ+4*hh}:{aQ+4*hh+3}] offset:{hh*1024}") for hh in range(2)])
    def hep_tail(T):
        a=tacc[T]
        return ([I(f"v_max_f32 v{a+r}, 0, v{a+r}") for r in range(16)]+[I(f"v_cvt_pk_bf16_f32 v{a+e}, v{a+2*e}, v{a+2*e+1}") for e in range(8)]
                +[DS(f"ds_write_b128 v15, v[{a+4*half}:{a+4*half+3}] offset:{(HST[T]-HST[0])+half*1024}",f"hw{T}") for half in range(2)])
    fill[1]=(chk(1,32,1)+sj_read(2,SJ4)+[SKIP]*9+corr_prep(2)+corr_mfma(tacc[0],False)+sj_read(3,SJ4)+[SKIP]*12+hep_tail(0)+mark(3)
             +corr_prep(3)+corr_mfma(tacc[1],False)+[SKIP]*12+hep_tail(1)+mark(4))
    fill[2]=qep+mark(5)
    N=len(steps); rd=0; ex=0; passed=set(); fq=[]
    rq=[]
    defer=[False]
    def issue(n):
        for r_ in steps[n]["pre_rd"]: g.I(r_)
        for r_ in steps[n]["rd"]:
            if defer[0]: rq.append((r_,f"s{n}"))
            else: g.ds(r_,tag=f"s{n}")
    def flush_rq(k=99):
        while rq and k>0:
            r_,t_=rq.pop(0); g.ds(r_,tag=t_); k-=1
    def try_issue():
        nonlocal rd
        budget=2
        while rd<N and rd-ex<steps[rd]["lag"] and budget>0:
            if steps[rd]["bar"] and rd not in passed:
                if rd-ex<=(0 if rd==32 else steps[rd]["lag"]-steps[rd]["hold"]):
                    idx=steps[rd]["idx"]
                    if rd==32:
                        for t_ in diag: g.I(t_)
                        g.lg0()
                    if idx>8:
                        g.wait_lg(f"lp{idx}")
                        g.lts(idx-8)
                        lspin(g,1,0,idx-8+1,2,first_done=True)
                        g.lts(idx)
                        passed.add(rd)
                        issue(rd); rd+=1; budget-=1
                        continue
                    g.ts(idx,2)
                    if idx>=8: g.ts(idx-8,3)
                    g.I("s_barrier"); passed.add(rd)
                    if idx>=8: g.lts(idx)
                    if idx>=8: g.ts(idx,3)
                    if idx==8:
                        for f_ in stf0: f_()
                    if idx==8: g.ts(2)
                    if idx==0: g.ts(1)
                else: break
            if rd+3<N and steps[rd+3]["bar"] and steps[rd+3]["idx"]>8:
                g.ds(f"ds_read_b32 v2, v1", tag=f"lp{steps[rd+3]['idx']}")
            issue(rd); rd+=1; budget-=1
    while ex<N:
        st=steps[ex]
        if rd<=ex: try_issue()
        if "T" in st and st["s"]==0: fq+=fill[st["T"]]
        if "T" in st and st["T"]==1 and st["s"]==32:
            assert not any(f is not None for f in fq), "t0/t1 epilogues must be finished before t2 reuses their accumulators"
        if "T" in st and st["T"]==1 and st["s"]==OPT.get("qs",34): fq+=fill[2]
        g.wait_lg(f"s{ex}")
        if "T" in st and (ex-32)%16==15:
            g.I(f"v_mov_b32 v5, {(ex-32)//16+1}"); g.ds("ds_write_b32 v1, v5 offset:64")
        if OPT["ts"]==6 and ex>=32+OPT.get("st0",0) and (ex-32-OPT.get("st0",0))%OPT.get("sts",4)==0 and (ex-32-OPT.get("st0",0))//OPT.get("sts",4)<16:
            i_=(ex-32-OPT.get("st0",0))//OPT.get("sts",4)
            g.I(f"s_memtime s[{g.LP[i_]}:{g.LP[i_]+1}]")
        if "T" not in st and ex+1<32 and not (rd<N and steps[rd]["bar"] and rd not in passed):
            ex+=1; defer[0]=True; try_issue(); defer[0]=False; ex-=1
            ms=st["mf"]+st["post"]
            for m in ms:
                g.I(m); flush_rq(2)
            flush_rq()
            ex+=1
            continue
        for m in st["mf"]: g.I(m)
        for m in st["post"]: g.I(m)
        ex+=1
        try_issue()
        if "T" in st:
            rem=N-ex+1
            k=OPT["nfill0"] if st["T"]==0 else OPT["nfill1"]
            if OPT.get("nofill"): k=0
            while k>0 and fq:
                f=fq.pop(0)
                if f is not None: f()
                k-=1
    for f in fq:
        if f is not None: f()
        else: g.I("s_nop 0")
    g.lg0()
    g.ts(9)
    g.I("v_and_b32 v8, 3, v0"); g.I("v_lshlrev_b32 v8, 3, v8"); g.I(f"v_add_u32 v8, {SY+64}, v8")
    g.lts(0)
    lspin(g,8,0,8,2)
    lspin(g,1,32,3,2)
    g.lts_dump()
    g.ts(3)
    PF=OPT["pf3"]; NS=8
    AHR=128; WSR=[16,24]; PA=192; vWd=10; vWr=[12,9]; XR=64; RR=72
    sT=80
    NH=22; NO=8; NT=NH+NO
    def stepinfo(i):
        if i>=NH: return (2, 4*(i-NH), 3)
        c = 0 if i<8 else (1 if i<16 else 2); ii = i-8*c
        cf = c
        if ii<=5: return (0, 2*(6*ii+c), cf)
        return (1, 2*(11+4*ii+c), cf)
    def w_issue1(i,k):
        kind,ks,c=stepinfo(i); srd=sW2 if kind<2 else sWO
        g.I(f"s_add_u32 m0, s{sRG}, {(i%NS)*2048+k*1024}")
        g.I(f"s_add_u32 s{sT}, s{sWb[kind]}, {ks*16384+k*8192}")
        g.vmem(f"buffer_load_dwordx4 v{vWd}, {srd}, s{sT} offen lds", tag=f"w{i}")
    def a_issue1(i,k):
        kind,ks,c=stepinfo(i); b=AHR+(i%8)*8+4*k
        g.I(f"s_add_u32 s{sT}, s{sA[kind]}, {ks*1024+k*NSTEP*1024}")
        g.vmem(f"buffer_load_dwordx4 v[{b}:{b+3}], v{vL16}, {sWS}, s{sT} offen sc1", tag=f"a{i}")
    def w_issue(i): w_issue1(i,0); w_issue1(i,1)
    def a_issue(i): a_issue1(i,0); a_issue1(i,1)
    spoll_issue(g,sFH,16)
    g.I(f"v_xor_b32 v{vWr[1]}, 64, v{vWr[0]}")
    for i in range(PF): w_issue(i)
    spoll(g,sFH,16,0x201,13,issued=True)
    g.ts(4)
    for i in range(PF): a_issue(i)
    g.I("v_and_b32 v5, 31, v0"); g.I("v_lshlrev_b32 v5, 2, v5"); g.I(f"s_lshl_b32 s81, s{sA3}, 7"); g.I(f"s_add_u32 s81, s81, {STR}")
    g.vmem(f"buffer_load_dword v{RR}, v5, {sWS}, s81 offen sc1", tag="rr")
    g.vmem(f"buffer_load_dword v{RR+1}, v5, {sWS}, s81 offen offset:128 sc1", tag="rr")
    g.I(f"s_lshl_b32 s{sXo}, s{sA3}, 15"); g.I(f"s_lshl_b32 s81, s{sCT}, 7"); g.I(f"s_add_u32 s{sXo}, s{sXo}, s81"); g.I(f"s_add_u32 s{sXo+1}, s{sXo}, 32768")
    g.vmem(f"buffer_load_dwordx4 v[{XR}:{XR+3}], v11, {sX}, s{sXo} offen", tag="xr")
    g.vmem(f"buffer_load_dwordx4 v[{XR+4}:{XR+7}], v11, {sX}, s{sXo+1} offen", tag="xr")
    def fh2_publish():
        g.wait_vm("hst2")
        g.I(f"v_mov_b32 v3, {CNT}"); g.I("v_mov_b32 v4, 1")
        g.I("s_mov_b64 exec, 1")
        g.I("ds_add_rtn_u32 v5, v3, v4"); g.I("s_waitcnt lgkmcnt(0)"); g.lg=[]
        g.I("v_readfirstlane_b32 s81, v5"); g.I("s_mov_b64 exec, -1")
        Lno=g.newlab("NOFH")
        g.I("s_cmp_eq_u32 s81, 3"); g.I(f"s_cbranch_scc0 {Lno}")
        flag_store16(g,FH+0x10000,3,4,st=96)
        g.lab(Lno)
    def w_read(i):
        slot=i%NS; ws_=WSR[i%2]
        for tn in range(2):
            g.ds(f"ds_read_b64_tr_b16 v[{ws_+4*tn}:{ws_+4*tn+1}], v{vWr[tn]} offset:{slot*2048}",tag=f"r{i}")
            g.ds(f"ds_read_b64_tr_b16 v[{ws_+4*tn+2}:{ws_+4*tn+3}], v{vWr[tn]} offset:{slot*2048+1024}",tag=f"r{i}")
    def p3m(i,tn,ti):
        ws_=WSR[i%2]; b=AHR+(i%8)*8; a=PA+(tn*2+ti)*16
        g.I(f"v_mfma_f32_32x32x16_bf16 v[{a}:{a+15}], v[{ws_+4*tn}:{ws_+4*tn+3}], v[{b+4*ti}:{b+4*ti+3}], {'0' if i==0 else f'v[{a}:{a+15}]'}")
    GAP=6
    for f in hep(2):
        if f is not None: f()
        else: g.I("s_nop 0")
    f3=[]
    fin=[I("v_and_b32 v2, 31, v0"), I("v_lshlrev_b32 v3, 8, v2"), I(f"v_add_u32 v3, s{sRG}, v3"), I("v_and_b32 v4, 7, v0"), I("v_lshrrev_b32 v5, 5, v0")]
    for q in range(4): fin+=[I(f"v_add_u32 v6, {2*q}, v5"), I("v_xor_b32 v6, v6, v4"), I(f"v_lshl_add_u32 v{32+q}, v6, 4, v3")]
    fin+=[I(f"s_lshl_b32 s81, s{sW}, 3"), I("v_lshrrev_b32 v3, 3, v0"), I("v_add_u32 v3, s81, v3"), I("v_and_b32 v4, 7, v3"), I("v_and_b32 v5, 7, v0"), I("v_lshlrev_b32 v5, 1, v5"),
          I("v_xor_b32 v6, v5, v4"), I("v_or_b32 v5, 1, v5"), I("v_xor_b32 v5, v5, v4"), I("v_lshlrev_b32 v3, 8, v3"), I(f"v_add_u32 v3, {RING}, v3"),
          I("v_lshl_add_u32 v36, v6, 4, v3"), I("v_lshl_add_u32 v37, v5, 4, v3")]
    LPP=[0,2,4,6,70,98,100,72,74,76,8,8]
    g.wait_vm("a0","w0"); w_read(0)
    clsaddr={1:(sFH,0x8000),2:(sFH,0x10000),3:(sFO,0)}
    ia=PF; iw=PF
    for i in range(NT):
        if i==NH:
            g.ts(5)
            g.wait_vm("rr")
            g.nop(10)
            for tn in range(2):
                for ti in range(2):
                    a=PA+(tn*2+ti)*16
                    for r in range(16): g.I(f"v_mul_f32 v{a+r}, v{a+r}, v{RR+ti}")
            g.I("s_nop 1")
        if OPT["ts"]==9 and OPT.get("i0",0)<=i<OPT.get("i0",0)+12:
            g.I(f"s_memtime s[{LPP[i-OPT.get('i0',0)]}:{LPP[i-OPT.get('i0',0)]+1}]")
        k=i+PF
        if k<NT and stepinfo(k)[2]!=stepinfo(k-1)[2]:
            c_=stepinfo(k)[2]
            Lok=g.newlab("CLOK")
            g.I("s_waitcnt lgkmcnt(0)"); g.lg=[]
            spoll_test(g,16); g.I(f"s_cbranch_scc0 {Lok}")
            spoll(g,97,16,0x210+c_,13)
            g.lab(Lok); g.lg=[]
            if c_==3: g.ts(6)
        nxt=i+1
        if nxt<NT:
            if not (OPT.get("fasth") and 6<=nxt<NH): g.wait_vm(f"a{nxt}",f"w{nxt}")
            w_read(nxt)
        g.wait_lg(f"r{i}")
        todo=[]
        lima = i+PF if i<NH-PF else min(i+7,NT-1)
        while ia<=min(lima,NT-1):
            if not (OPT.get("fasth") and 6<=ia<NH): todo+= [(lambda x=ia: a_issue1(x,0)), (lambda x=ia: a_issue1(x,1))]
            ia+=1
        limw = i+PF if i<NH-PF-3 else min(i+7,NT-1)
        while iw<=min(limw,NT-1):
            if not (OPT.get("fasth") and 6<=iw<NH): todo+= [(lambda x=iw: w_issue1(x,0)), (lambda x=iw: w_issue1(x,1))]
            iw+=1
        nf=OPT.get("nf3",10)
        def fillers(n):
            while n>0 and f3:
                f=f3.pop(0)
                if f is not None: f()
                n-=1
        if i==NH-1:
            Ls=g.newlab("SKIPM")
            g.I(f"s_cmp_ge_u32 s{sW}, 2"); g.I(f"s_cbranch_scc1 {Ls}")
            for tn in range(2):
                for ti in range(2): p3m(i,tn,ti)
            g.lab(Ls)
            for f in todo: f()
        else:
            q=0
            per=(len(todo)+3)//4
            for tn in range(2):
                for ti in range(2):
                    p3m(i,tn,ti)
                    for _ in range(per):
                        if todo: todo.pop(0)()
                    fillers((nf+3-q)//4)
                    q+=1
        if i==OPT.get("fh2i",3): fh2_publish()
        if i==OPT.get("fh2i",3)+1: f3+=fin
        k2=k+1
        if k2<NT and stepinfo(k2)[2]!=stepinfo(k2-1)[2]:
            r_,o_=clsaddr[stepinfo(k2)[2]]
            g.I(f"s_add_u32 s97, s{r_}, {o_}")
            spoll_issue(g,97,16)
    assert not f3
    g.ts(7)
    if OPT["ts"]==9:
        g.lg0()
        for i_ in range(12):
            g.I(f"v_mov_b32 v5, s{LPP[i_]}"); g.vmem(f"buffer_store_dword v5, off, {sWS}, s92 offset:{i_*4}"); g.I("s_nop 1")
    g.nop(10)
    for tn in range(2):
        for ti in range(2):
            a=PA+(tn*2+ti)*16
            for q in range(4): g.ds(f"ds_write_b128 v{32+q}, v[{a+4*q}:{a+4*q+3}] offset:{ti*8192+tn*128}")
    g.lg0()
    g.I("s_barrier")
    R=128
    for p in range(2):
        for k in range(4):
            for e in range(2):
                b=R+(p*8+k*2+e)*4
                g.ds(f"ds_read_b128 v[{b}:{b+3}], v{36+e} offset:{p*8192+k*16384}",tag=f"f{p}")
    g.wait_vm("xr")
    for p in range(2):
        g.wait_lg(f"f{p}")
        for k in range(1,4):
            for e in range(2):
                for c in range(4):
                    b0=R+(p*8+0+e)*4+c
                    g.I(f"v_add_f32 v{b0}, v{b0}, v{R+(p*8+k*2+e)*4+c}")
        for e4 in range(4):
            xr=XR+4*p+e4
            g.I(f"v_lshlrev_b32 v{20+2*e4}, 16, v{xr}"); g.I(f"v_and_b32 v{21+2*e4}, 0xffff0000, v{xr}")
        for e4 in range(4):
            o0=R+(p*8+(e4>>1))*4+2*(e4&1)
            g.I(f"v_add_f32 v{o0}, v{o0}, v{20+2*e4}"); g.I(f"v_add_f32 v{o0+1}, v{o0+1}, v{21+2*e4}")
        for e4 in range(4):
            o0=R+(p*8+(e4>>1))*4+2*(e4&1)
            g.I(f"v_cvt_pk_bf16_f32 v{40+4*p+e4}, v{o0}, v{o0+1}")
        g.vmem(f"buffer_store_dwordx4 v[{40+4*p}:{43+4*p}], v11, {sOUT}, s{sXo+p} offen")
    g.ts(8)

def build():
    g=G()
    prologue(g)
    vm0=list(g.vm)
    hwave(g)
    g.vm=vm0; g.lg=[]
    gwave(g)
    g.lab("L_END")
    g.I("s_endpgm")
    return g.L

HEAD=f"""; fused persistent kernel: LN + QKV/W1 GEMM + sliding-window attention + W2/WO GEMM
; @launch grid=(256,1,1) block=(512,1,1) lds={LDS_TOTAL}
.amdgcn_target "amdgcn-amd-amdhsa--gfx950"
.text
.globl {KNAME}
.p2align 8
.type {KNAME},@function
{KNAME}:
"""
TAIL=f""".section .rodata,"a"
.p2align 6
.amdhsa_kernel {KNAME}
  .amdhsa_next_free_vgpr 256
  .amdhsa_next_free_sgpr 102
  .amdhsa_accum_offset 256
  .amdhsa_group_segment_fixed_size 0
  .amdhsa_kernarg_size 72
  .amdhsa_user_sgpr_count 2
  .amdhsa_user_sgpr_kernarg_segment_ptr 1
  .amdhsa_system_sgpr_workgroup_id_x 1
  .amdhsa_float_denorm_mode_32 3
.end_amdhsa_kernel
"""
if __name__=="__main__":
    out=sys.argv[1] if len(sys.argv)>1 else "k.s"
    for a in sys.argv[2:]:
        k,_,val=a.partition("="); OPT[k]=int(val,0) if val else True
    L=build()
    errs=lint(L)
    for e in errs[:60]: print("LINT:",e)
    print(len(errs),"lint errors;",len(L),"lines")
    open(out,"w").write(HEAD+"\n".join(L)+"\n"+TAIL)
```

```python
import sys
from lint import lint

KNAME = "parallel_sum__sliding_block__dense_activation_relu__prompt_kernel"
OPT = dict(ts=0, spin=1<<20, cyc=0, prio=1, l2pf=1, kvq=5, rot=1, pf0=1, pf1=1, rp0=5, l2n=1, fkvn=5, nfill=3, nfill0=4, nfill1=4, kn=2, vn=4, h0n=6, fd=2, gap=12, pf3=3)

KVST = 24576
def R1(s): return s*KVST
R2 = 73728
def R2S(s): return R2 + s*16384
def KVB(it): return [0,KVST,2*KVST,R2,R2+32768,0,KVST,2*KVST][it]
KVL = 0; SLOT = 4096; SLOTG = 4096
QL = 139264
RING = R2
HST=[49152,57344]
NM = 159744; RL = 160256; SL = 160768; CNT = 147456; SY = 147456+128; CWL = 155904
LDS_TOTAL = 163840
WS_NONCE=0; FKV=0x8000; FVV=0x30000; FH=0x10000; FO=0x28000
STR=0x40000; KV=0x100000; AH=0x800000; TS=0xF80000; WS_SIZE=0x1000000
NSTEP=118
TAGC=0x9E3779B9
sX="s[40:43]"; sWQ="s[44:47]"; sW1="s[48:51]"; sW2="s[52:55]"; sWO="s[56:59]"; sOUT="s[60:63]"; sWS="s[64:67]"
sW=26; sRB=27; sCS=28; sJ=29; sIDX=30; sTAG=31; sU32=33; sNT=34; sA3=35; sCT=36; sRB3=37; sHW=38; sSPIN=39

class G:
    def __init__(s):
        s.L=[]; s.vm=[]; s.lg=[]; s.nlab=0; s.seen=set(); s.tsreg=1
    def I(s,t): s.L.append(" "+t)
    def C(s,t): s.L.append(" ; "+t)
    def lab(s,n): s.L.append(n+":")
    def newlab(s,p="L"):
        s.nlab+=1; return f"{p}_{s.nlab}"
    def vmem(s,t,tag=None,cond=False):
        s.L.append(" "+t+(f" ;@tag {tag}" if tag else ""))
        if not cond: s.vm.append(tag)
        elif tag: s.vm.append(("cond",tag))
    def ds(s,t,tag=None,cond=False):
        s.L.append(" "+t+(f" ;@tag {tag}" if tag else ""))
        s.seen.add(tag)
        if not cond: s.lg.append(tag)
        elif tag: s.lg.append(("cond",tag))
    @staticmethod
    def _ny(q,tag):
        n=0
        for x in reversed(q):
            if x==tag or x==("cond",tag): return n
            if not isinstance(x,tuple): n+=1
        return None
    def wait_vm(s,*tags,extra=""):
        ns=[s._ny(s.vm,t) for t in tags]; ns=[n for n in ns if n is not None]
        n=min(min(ns) if ns else 63,63)
        s.I(f"s_waitcnt vmcnt({n}){extra}")
        s.L.append(" ;@need "+",".join(tags))
        if "lgkmcnt(0)" in extra: s.lg=[]
    def wait_lg_must(s,tag):
        assert tag in s.seen, f"tag {tag} not emitted yet"
        s.wait_lg(tag)
    def wait_lg(s,*tags):
        ns=[s._ny(s.lg,t) for t in tags]; ns=[n for n in ns if n is not None]
        if not ns: return
        n=min(min(ns),15)
        s.I(f"s_waitcnt lgkmcnt({n})")
        s.L.append(" ;@need "+",".join(tags))
        if n==0: s.lg=[]
    def lg0(s):
        s.I("s_waitcnt lgkmcnt(0)"); s.lg=[]
    def vm0(s,extra=""):
        s.I("s_waitcnt vmcnt(0)"+extra); s.vm=[]
        if "lgkmcnt(0)" in extra: s.lg=[]
    def nop(s,n):
        while n>0:
            k=min(n,16); s.I(f"s_nop {k-1}"); n-=k
    LP=[8,10,12,14,16,18,20,22,78,80,82,84,86,88,96,98]
    def lts(s,i):
        if OPT["ts"]==5: s.I(f"s_memtime s[{s.LP[i]}:{s.LP[i]+1}]")
    LH=[10,12,14,16,18,20,22,4]
    def lts2(s,i):
        if OPT["ts"]==5: s.I(f"s_memtime s[{s.LH[i]}:{s.LH[i]+1}]")
    def lts2_dump(s):
        if OPT["ts"]!=5: return
        s.I("s_waitcnt lgkmcnt(0)"); s.lg=[]
        for i in range(8):
            s.I(f"v_mov_b32 v1, s{s.LH[i]}")
            s.vmem(f"buffer_store_dword v1, off, {sWS}, s92 offset:{i*4}", tag=None)
            s.I("s_nop 1")
    LA=[10,12,14,16,18,20,22,70,72,74,76,78,96,4,6,2]
    def lx(s,i):
        if OPT["ts"]==10: s.I(f"s_memtime s[{s.LA[i]}:{s.LA[i]+1}]")
    def lta(s,i):
        if OPT["ts"]==7 and i<15: s.I(f"s_memtime s[{s.LA[i]}:{s.LA[i]+1}]")
    def lta_dump(s,final=False):
        if OPT["ts"] not in (7,10) or (OPT["ts"]==10 and not final): return
        if OPT["ts"]==7 and final: return
        s.I("s_waitcnt lgkmcnt(0)"); s.lg=[]
        for i in range(15):
            s.I(f"v_mov_b32 v1, s{s.LA[i]}")
            s.vmem(f"buffer_store_dword v1, off, {sWS}, s92 offset:{i*4}", tag=None)
            s.I("s_nop 1")
    def lts_dump(s):
        if OPT["ts"] not in (5,6): return
        s.I("s_waitcnt lgkmcnt(0)"); s.lg=[]
        for i in range(16):
            s.I(f"v_mov_b32 v5, s{s.LP[i]}")
            s.vmem(f"buffer_store_dword v5, off, {sWS}, s92 offset:{i*4}", tag=None)
            s.I("s_nop 1")
    def ts(s,i,mode=1):
        if OPT["ts"]!=mode: return
        s.I("s_memrealtime s[90:91]" if not OPT.get("cyc") else "s_memtime s[90:91]")
        s.I("s_waitcnt lgkmcnt(0)"); s.lg=[]
        s.I(f"v_mov_b32 v{s.tsreg}, s90")
        s.vmem(f"buffer_store_dword v{s.tsreg}, off, {sWS}, s92 offset:{i*4}", tag=None)

def errmark(g,vtmp,errcode):
    g.I(f"v_mov_b32 v{vtmp}, {errcode}")
    g.I(f"v_mov_b32 v{vtmp+1}, 0")
    g.vmem(f"global_store_dword v{vtmp+1}, v{vtmp}, s[68:69]")
    g.I("s_waitcnt vmcnt(0)")
def spoll_issue(g, soff, n):
    if n==1: g.I(f"s_load_dword s8, s[64:65], s{soff} glc")
    else: g.I(f"s_load_dwordx16 s[8:23], s[64:65], s{soff} glc")
def spoll_test(g, n):
    if n==1:
        g.I(f"s_cmp_lg_u32 s8, s{sTAG}")
    else:
        for k in range(8): g.I(f"s_xor_b64 s[{8+2*k}:{9+2*k}], s[{8+2*k}:{9+2*k}], s[24:25]")
        for k in (1,2,3,4,5,6,7): g.I(f"s_or_b64 s[8:9], s[8:9], s[{8+2*k}:{9+2*k}]")
        g.I("s_or_b32 s8, s8, s9")
def spoll(g, soff, n, errcode, vtmp, issued=False):
    L=g.newlab("SPL"); D=g.newlab("SPD"); F=g.newlab("SPF")
    g.I(f"s_mov_b32 s{sSPIN}, {OPT['spin']}")
    if issued: g.I(f"s_branch {F}")
    g.lab(L)
    spoll_issue(g,soff,n)
    g.lab(F)
    g.I("s_waitcnt lgkmcnt(0)"); g.lg=[]
    spoll_test(g,n)
    g.I(f"s_cbranch_scc0 {D}")
    if OPT.get("psl"): g.I(f"s_sleep {OPT['psl']}")
    g.I(f"s_sub_u32 s{sSPIN}, s{sSPIN}, 1")
    g.I(f"s_cbranch_scc0 {L}")
    save=list(g.vm); errmark(g,vtmp,errcode); g.vm=save
    g.lab(D)
def lspin(g, vaddr, off, N, vtmp, first_done=False, sleep=False):
    L=g.newlab("LS"); D=g.newlab("LD")
    if first_done:
        g.I(f"v_cmp_gt_u32 vcc, {N}, v{vtmp}"); g.I("s_nop 0"); g.I(f"s_cbranch_vccz {D}")
    g.I(f"s_mov_b32 s{sSPIN}, {OPT['spin']}")
    g.lab(L)
    if sleep or OPT.get("allsleep"): g.I(f"s_sleep {OPT.get('slp',1)}")
    g.I(f"ds_read_b32 v{vtmp}, v{vaddr} offset:{off}"); g.I("s_waitcnt lgkmcnt(0)")
    g.I(f"v_cmp_gt_u32 vcc, {N}, v{vtmp}"); g.I("s_nop 0"); g.I(f"s_cbranch_vccz {D}")
    g.I(f"s_sub_u32 s{sSPIN}, s{sSPIN}, 1"); g.I(f"s_cbranch_scc0 {L}")
    g.lab(D)
    if not first_done: g.lg=[]
def flag_store1(g, base, va, vb, st=81):
    g.I(f"s_lshl_b32 s{st}, s{sRB}, 4"); g.I(f"s_add_u32 s{st}, s{st}, s{sCS}"); g.I(f"s_lshl_b32 s{st}, s{st}, 7"); g.I(f"s_add_u32 s{st}, s{st}, {base}")
    g.I(f"v_mov_b32 v{va}, s{st}"); g.I(f"v_mov_b32 v{vb}, s{sTAG}")
    g.I("s_mov_b64 exec, 1")
    g.vmem(f"buffer_store_dword v{vb}, v{va}, {sWS}, 0 offen sc1", cond=True)
    g.I("s_mov_b64 exec, -1")
def flag_store16(g, base, va, vb, st=81):
    g.I(f"s_lshl_b32 s{st}, s{sRB}, 11"); g.I(f"s_lshl_b32 s{st+1}, s{sCS}, 2"); g.I(f"s_add_u32 s{st}, s{st}, s{st+1}"); g.I(f"s_add_u32 s{st}, s{st}, {base}")
    g.I(f"v_lshlrev_b32 v{va}, 7, v0"); g.I(f"v_add_u32 v{va}, s{st}, v{va}"); g.I(f"v_mov_b32 v{vb}, s{sTAG}")
    g.I("s_mov_b64 exec, 0xffff")
    g.vmem(f"buffer_store_dword v{vb}, v{va}, {sWS}, 0 offen sc1", cond=True)
    g.I("s_mov_b64 exec, -1")

def prologue(g):
    g.I("s_cmp_ge_u32 s2, 256")
    g.I("s_cbranch_scc1 L_END")
    g.I("s_getpc_b64 s[4:5]")
    g.lab("L_PCREF")
    g.I("v_lshlrev_b32 v1, 7, v0")
    g.I("v_min_u32 v1, L_END-L_PCREF, v1")
    g.I("s_load_dwordx2 s[40:41], s[0:1], 0")
    g.I("s_load_dwordx2 s[44:45], s[0:1], 8")
    g.I("s_load_dwordx2 s[48:49], s[0:1], 32")
    g.I("s_load_dwordx2 s[64:65], s[0:1], 64")
    g.vmem("global_load_dword v250, v1, s[4:5]", tag="cpf")
    g.I("v_lshrrev_b32 v1, 6, v0")
    g.I("v_and_b32 v0, 63, v0")
    g.I(f"v_readfirstlane_b32 s{sW}, v1")
    g.I(f"s_and_b32 s{sJ}, s2, 7")
    g.I(f"s_lshr_b32 s{sIDX}, s2, 3")
    g.I(f"s_and_b32 s3, s{sJ}, 1")
    g.I(f"s_lshl_b32 s3, s3, 3")
    g.I(f"s_and_b32 s{sRB}, s{sIDX}, 7")
    g.I(f"s_or_b32 s{sRB}, s{sRB}, s3")
    g.I(f"s_lshr_b32 s3, s{sJ}, 1")
    g.I(f"s_lshl_b32 s3, s3, 2")
    g.I(f"s_lshr_b32 s{sCS}, s{sIDX}, 3")
    g.I(f"s_or_b32 s{sCS}, s{sCS}, s3")
    for base,size in ((40,2097152),(44,1572864),(48,1409024),(64,WS_SIZE)):
        g.I(f"s_mov_b32 s{base+2}, {size}")
        g.I(f"s_mov_b32 s{base+3}, 0x20000")
    g.I(f"s_mul_i32 s{sU32}, s{sCS}, 3")
    g.I(f"s_lshl_b32 s3, s{sCS}, 1"); g.I("s_add_u32 s3, s3, 11")
    g.I(f"s_min_u32 s{sU32}, s{sU32}, s3")
    g.I(f"s_cmp_lt_u32 s{sCS}, 11"); g.I(f"s_cselect_b32 s{sNT}, 3, 2")
    if OPT["ts"]:
        g.I(f"s_lshl_b32 s92, s2, 3"); g.I(f"s_add_u32 s92, s92, s{sW}"); g.I(f"s_lshl_b32 s92, s92, 6"); g.I(f"s_add_u32 s92, s92, {TS}")
    g.I(f"s_cmp_lt_u32 s{sW}, 4")
    g.I("s_cbranch_scc1 L_GWAVE")


def attention(g, general, QF, BD, BO, sTM, vsync, fh1):
    KB=[24,28,32]; SB=[160,176,224]; CZ=192; MC=208; PB=[36,44]; VBH=[[52,60],[80,88]]; OA=[96,112]
    M=[[68,69,70,71],[72,73,74,75]]; NEG=76
    seq=[(t,h) for h in range(2) for t in range(9)]
    def kread(n):
        t,h=seq[n]; b=KB[n%3]; g.ds(f"ds_read_b128 v[{b}:{b+3}], v11 offset:{t*SLOT+h*1024}", tag=f"k{n}")
    def setC(val):
        for r in range(16): g.I(f"v_mov_b32 v{CZ+r}, {val}")
    def cz_init(val):
        if not general:
            if val!="0": setC(val)
            return
        La=g.newlab("CZA"); Lb2=g.newlab("CZB")
        g.I(f"s_cmp_gt_u32 s{sTM}, 1"); g.I(f"s_cbranch_scc1 {La}")
        setC(val); g.I(f"s_branch {Lb2}"); g.lab(La); setC("v5"); g.lab(Lb2)
    def cz_switch(t,val):
        if not general: return
        Ls=g.newlab("CZS")
        g.I(f"s_cmp_eq_u32 s{sTM}, {t}"); g.I(f"s_cbranch_scc0 {Ls}")
        g.nop(8); setC(val); g.I("s_nop 1"); g.lab(Ls)
    NS1=3
    def smfma1(n,Cr):
        t,h=seq[n]; b=KB[n%3]; S=SB[n%NS1]
        g.I(f"v_mfma_f32_32x32x16_bf16 v[{S}:{S+15}], v[{b}:{b+3}], v[{QF+4*h}:{QF+4*h+3}], {Cr}")
    for h in range(2):
        for m in M[h]: g.I(f"v_mov_b32 v{m}, v5")
    kread(0); kread(1)
    cz_init("0")
    g.wait_lg("q")
    for n in range(20):
        pass
        if n<18:
            t,h=seq[n]
            if n==9: cz_init("0")
            elif 2<=t<=7: cz_switch(t,"0")
            g.wait_lg(f"k{n}")
            mid = f"v[{CZ}:{CZ+15}]" if general else "0"
            Cr = f"v[{BO}:{BO+15}]" if t==0 else (f"v[{BD}:{BD+15}]" if t==8 else mid)
            if n==9 and general: g.I("s_nop 0")
            smfma1(n,Cr)
            if n+2<18: kread(n+2)
        if n==2: g.nop(6)
        if n==19: g.nop(4)
        if n>=2:
            tp,hp=seq[n-2]; Sp=SB[(n-2)%NS1]
            for e in range(8): g.I(f"v_max3_f32 v{M[hp][e%4]}, v{Sp+2*e}, v{Sp+2*e+1}, v{M[hp][e%4]}")
    for h in range(2):
        g.I(f"v_max3_f32 v{M[h][0]}, v{M[h][0]}, v{M[h][1]}, v{M[h][2]}")
    for h in range(2):
        g.I(f"v_max_f32 v{M[h][0]}, v{M[h][0]}, v{M[h][3]}")
    for h in range(2): g.I(f"v_mov_b32 v{NEG+h}, v{M[h][0]}")
    g.I("s_nop 1")
    for h in range(2): g.I(f"v_permlane32_swap_b32 v{M[h][0]}, v{NEG+h}")
    g.I("s_nop 0")
    for h in range(2): g.I(f"v_max_f32 v{M[h][0]}, v{M[h][0]}, v{NEG+h}")
    for h in range(2): g.I(f"v_sub_f32 v{NEG+h}, 0, v{M[h][0]}")
    g.ts(4)
    g.lx(2)
    for r in list(range(52,68))+list(range(80,96)): g.I(f"v_mov_b32 v{r}, 0x3f803f80")
    g.ts(12,8)
    g.lx(3)
    vsync()
    g.lx(4)
    g.ts(13,8)
    def smfma(n,Cr):
        t,h=seq[n]; b=KB[n%3]; S=SB[n%2]
        g.I(f"v_mfma_f32_32x32x16_bf16 v[{S}:{S+15}], v[{b}:{b+3}], v[{QF+4*h}:{QF+4*h+3}], {Cr}")
    def vread(n):
        t,h=seq[n]; b=VBH[h][n%2]
        m="0x0000ffff" if h==0 else "0xffff0000"
        g.I(f"s_mov_b32 exec_lo, {m}"); g.I(f"s_mov_b32 exec_hi, {m}")
        g.ds(f"ds_read_b128 v[{b}:{b+3}], v11 offset:{t*SLOT+2048}", tag=f"v{n}")
        g.ds(f"ds_read_b128 v[{b+4}:{b+7}], v11 offset:{t*SLOT+2048+1024}", tag=f"v{n}")
        g.I("s_mov_b64 exec, -1")
    def prepC(n):
        t,h=seq[n]
        if t==0:
            for r in range(16): g.I(f"v_add_f32 v{MC+r}, v{BO+r}, v{NEG+h}")
            cz_init(f"v{NEG+h}")
            if not general: g.I("s_nop 0")
            return f"v[{MC}:{MC+15}]"
        if t==8:
            for r in range(16): g.I(f"v_add_f32 v{MC+r}, v{BD+r}, v{NEG+h}")
            g.I("s_nop 0")
            return f"v[{MC}:{MC+15}]"
        if t>=2: cz_switch(t,f"v{NEG+h}")
        return f"v[{CZ}:{CZ+15}]"
    def pv(n,k):
        t,h=seq[n]; Vb=VBH[h][n%2]; P=PB[n%2]; O=OA[h]
        Cin='0' if (t==0 and k==0) else f'v[{O}:{O+15}]'
        g.I(f"v_mfma_f32_32x32x16_bf16 v[{O}:{O+15}], v[{Vb+4*k}:{Vb+4*k+3}], v[{P+4*k}:{P+4*k+3}], {Cin}")
    kread(0); kread(1)
    Cr=prepC(0)
    g.wait_lg("k0"); g.I("s_nop 0")
    smfma(0,Cr)
    vread(0)
    for n in range(19):
        g.lta(n)
        if n==OPT.get("fh1n",-1): fh1()
        if n<18:
            if n+2<18: kread(n+2)
            if n+1<18:
                Cr=prepC(n+1); g.wait_lg(f"k{n+1}"); smfma(n+1,Cr)
            if n==0: g.nop(10)
            Sn=SB[n%2]; P=PB[n%2]
            ops=[]
            for e in range(8):
                ops.append(f"v_exp_f32 v{Sn+2*e}, v{Sn+2*e}"); ops.append(f"v_exp_f32 v{Sn+2*e+1}, v{Sn+2*e+1}")
                if e>=2: ops.append(f"v_cvt_pk_bf16_f32 v{P+e-2}, v{Sn+2*e-4}, v{Sn+2*e-3}")
            ops.append(f"v_cvt_pk_bf16_f32 v{P+6}, v{Sn+12}, v{Sn+13}"); ops.append(f"v_cvt_pk_bf16_f32 v{P+7}, v{Sn+14}, v{Sn+15}")
            for i,o in enumerate(ops):
                if not (OPT.get("noexp") and "v_exp" in o): g.I(o)
                if n>=1 and i==4: g.wait_lg(f"v{n-1}"); pv(n-1,0)
                if n>=1 and i==10:
                    pv(n-1,1)
                    if n+1<18: vread(n+1) if False else None
                if i==13 and n>=0:
                    if n>=1: vread(n)
        else:
            g.wait_lg("v17"); g.I("s_nop 1"); pv(17,0); pv(17,1)
    return OA

def hwave(g):
    vXe=8; vXo=9; vWq=10; vW1=11; vTK=12; vTK2=13; vTT=14
    sXb=70; sMx=73; sMw=74; sT=78; sCK=75; sCV=76; sCQ=77; sC1=79; sKB0=95; sKB=96; sU=97
    BD=128; BO=144; sTM=84; need=85; sSL=86; sDONE=87; sSRC=88; sFK=89; sDV=94; sFV=99; sKVo=100; sAHo=101; sH1=71; sH4=72
    SEL=60; CA=[56,64]; SX=[68,72]; XH=76; vXh=92; FB=32; PB_=96
    g.I(f"s_sub_u32 s{sHW}, s{sW}, 4")
    g.I(f"s_cmp_ge_u32 s{sHW}, 2"); g.I("s_cbranch_scc1 L_HPUB")
    def kbof(tb):
        g.I(f"s_add_u32 s{sKB}, s{sKB0}, {tb}"); g.I(f"s_and_b32 s{sKB}, s{sKB}, 7")
    def kv_issue(it):
        st=KVB(it)
        kbof(it)
        g.I(f"s_lshl_b32 s{sU}, s{sKB}, 7"); g.I(f"s_add_u32 s{sU}, s{sU}, s{sXb}")
        for i in range(8):
            g.I(f"s_add_u32 m0, s{sMx}, {st+i*1024}")
            g.I(f"s_add_u32 s{sT}, s{sU}, {i*8192}")
            g.vmem(f"buffer_load_dwordx4 v{vXe if i%2==0 else vXo}, {sX}, s{sT} offen lds", tag=f"kv{it}")
        g.I(f"s_mul_i32 s{sU}, s{sKB}, 196608")
        for u,sc in ((0,sCK),(1,sCV)):
            g.I(f"s_add_u32 s3, s{sc}, s{sU}")
            for sub in range(2):
                g.I(f"s_add_u32 m0, s{sMw}, {st+16384+u*4096+sub*1024}")
                g.I(f"s_add_u32 s{sT}, s3, {sub*49152}")
                g.vmem(f"buffer_load_dwordx4 v{vWq}, {sWQ}, s{sT} offen lds", tag=f"kv{it}")
    def ht_issue(n):
        for u in range(4):
            if n<4: tb=2*n+(u>>1); T=u&1
            else: tb=4*(n&1)+u; T=3 if n<6 else 2
            if n>=4 or (u&1)==0: kbof(tb)
            if T<3: g.I(f"s_mul_i32 s{sU}, s{sKB}, 176128"); g.I(f"s_add_u32 s3, s{sC1}, s{sU}")
            else: g.I(f"s_mul_i32 s{sU}, s{sKB}, 196608"); g.I(f"s_add_u32 s3, s{sCQ}, s{sU}")
            for sub in range(2):
                g.I(f"s_add_u32 m0, s{sMw}, {R2S(n%4)+u*4096+sub*1024}")
                if T<3:
                    g.I(f"s_add_u32 s{sT}, s3, {T*64+sub*44032}")
                    g.vmem(f"buffer_load_dwordx4 v{vW1}, {sW1}, s{sT} offen lds", tag=f"ht{n}")
                else:
                    g.I(f"s_add_u32 s{sT}, s3, {sub*49152}")
                    g.vmem(f"buffer_load_dwordx4 v{vWq}, {sWQ}, s{sT} offen lds", tag=f"ht{n}")
    def setup_common():
        g.I("s_load_dwordx2 s[68:69], s[0:1], 56")
        g.I(f"s_lshl_b32 s{sH1}, s{sHW}, 10"); g.I(f"s_lshl_b32 s{sH4}, s{sHW}, 12")
        g.I("v_lshlrev_b32 v15, 7, v0"); g.I("v_lshlrev_b32 v7, 4, v0")
        g.I("v_lshrrev_b32 v3, 5, v0"); g.I("v_lshlrev_b32 v3, 3, v3"); g.I("v_bfe_u32 v4, v0, 2, 2"); g.I("v_add_u32 v3, v3, v4")
        g.I("v_lshlrev_b32 v3, 6, v3"); g.I("v_bfe_u32 v4, v0, 4, 1"); g.I("v_lshl_add_u32 v3, v4, 5, v3")
        g.I("v_and_b32 v4, 3, v0"); g.I("v_lshl_add_u32 v3, v4, 3, v3")
        g.I(f"s_add_u32 s81, s{sH1}, 16384"); g.I(f"v_add_u32 v{vTK}, s81, v3"); g.I(f"v_add_u32 v{vTK2}, {R2}, v{vTK}")
        g.I(f"s_add_u32 s81, s{sH1}, {R2}"); g.I(f"v_add_u32 v{vTT}, s81, v3")
        g.I("v_and_b32 v3, 31, v0"); g.I("v_lshrrev_b32 v4, 5, v0"); g.I("v_lshlrev_b32 v4, 2, v4")
        g.I("v_sub_u32 v3, v3, v4"); g.I("v_mov_b32 v5, 0xf149f2ca")
        g.I(f"s_lshl_b32 s81, s{sRB}, 2"); g.I(f"s_add_u32 s81, s81, s{sHW}")
        g.I(f"s_sub_i32 s{sTM}, 8, s81"); g.I(f"s_max_i32 s{sTM}, s{sTM}, 0")
        for r in range(16):
            kk=(r&3)+8*(r>>2)
            g.I(f"v_subrev_u32 v6, {kk}, v3"); g.I(f"v_ashrrev_i32 v6, 31, v6")
            g.I(f"v_and_b32 v{BD+r}, v6, v5"); g.I(f"v_bfi_b32 v{BO+r}, v6, 0, v5")
        Lb=g.newlab("BOK")
        g.I(f"s_cmp_eq_u32 s{sTM}, 0"); g.I(f"s_cbranch_scc1 {Lb}")
        for r in range(16): g.I(f"v_mov_b32 v{BO+r}, v5")
        g.lab(Lb)
        g.I("v_and_b32 v3, 15, v0"); g.I("v_bfe_u32 v4, v0, 4, 1"); g.I("v_cmp_eq_u32 vcc, v3, v4"); g.I("v_mov_b32 v6, 0x3f803f80")
        g.I("s_nop 0"); g.I(f"v_cndmask_b32 v{SEL}, 0, v6, vcc")
        for k in range(1,4): g.I(f"v_mov_b32 v{SEL+k}, v{SEL}")
        g.I("v_and_b32 v2, 31, v0")
        g.I("v_lshrrev_b32 v3, 3, v2"); g.I("v_lshlrev_b32 v3, 10, v3"); g.I("v_and_b32 v4, 7, v2"); g.I("v_lshl_add_u32 v3, v4, 7, v3")
        g.I("v_bfe_u32 v4, v0, 1, 3"); g.I("v_lshrrev_b32 v6, 5, v0"); g.I("v_xor_b32 v4, v4, v6"); g.I("v_lshl_add_u32 v3, v4, 4, v3")
        g.I(f"v_add_u32 v{vXh}, s{sH4}, v3")
        for t in range(1,4): g.I(f"v_xor_b32 v{vXh+t}, {t<<5}, v{vXh}")
        g.I("v_lshlrev_b32 v3, 4, v0"); g.I(f"s_lshl_b32 s81, s{sHW}, 2"); g.I(f"s_add_u32 s81, s81, {SL}"); g.I(f"v_add_u32 v18, s81, v3")
    def get_tag():
        g.wait_vm("nonce")
        g.I(f"v_readfirstlane_b32 s{sTAG}, v28"); g.I("s_nop 1")
        g.I(f"s_add_u32 s{sTAG}, s{sTAG}, {TAGC}"); g.I(f"s_mov_b32 s24, s{sTAG}"); g.I(f"s_mov_b32 s25, s{sTAG}")
    def cs_mfma(b,a,first):
        g.I(f"v_mfma_f32_16x16x32_bf16 v[{a}:{a+3}], v[{SEL}:{SEL+3}], v[{b}:{b+3}], {'0' if first else f'v[{a}:{a+3}]'}")
    def cs_final(a,tile):
        g.I("s_mov_b64 exec, 0xffff")
        g.ds(f"ds_write_b32 v18, v{a} offset:{tile*512}")
        g.ds(f"ds_write_b32 v18, v{a+1} offset:{tile*512+256}")
        g.I("s_mov_b64 exec, -1")
    def cw_final(tiles):
        g.I("v_lshlrev_b32 v2, 4, v0"); g.I(f"v_add_u32 v2, {SL}, v2"); g.I("v_lshlrev_b32 v3, 3, v0"); g.I(f"v_add_u32 v3, {CWL}, v3")
        g.I("s_mov_b32 exec_hi, 0")
        for q,tile in enumerate(tiles): g.ds(f"ds_read_b128 v[{112+4*q}:{115+4*q}], v2 offset:{tile*512}",tag="cwr")
        g.wait_lg("cwr")
        for q,tile in enumerate(tiles):
            s_=112+4*q
            g.I(f"v_add_f32 v{s_}, v{s_}, v{s_+1}"); g.I(f"v_add_f32 v{s_+2}, v{s_+2}, v{s_+3}"); g.I(f"v_add_f32 v{s_}, v{s_}, v{s_+2}")
            g.I(f"v_cvt_pk_bf16_f32 v{s_+1}, v{s_}, v{s_}"); g.I(f"v_and_b32 v{s_+1}, 0xffff0000, v{s_+1}")
            g.I(f"v_sub_f32 v{s_}, v{s_}, v{s_+1}")
            g.I(f"v_cvt_pk_bf16_f32 v{s_+2}, v{s_}, v{s_}"); g.I(f"v_and_b32 v{s_+2}, 0xffff0000, v{s_+2}")
            g.I(f"v_sub_f32 v{s_}, v{s_}, v{s_+2}")
            g.I(f"v_cvt_pk_bf16_f32 v{s_+3}, v{s_}, 0")
            g.I(f"v_cvt_pk_bf16_f32 v{s_+2}, v{s_+1}, v{s_+2}")
            g.ds(f"ds_write_b64 v3, v[{s_+2}:{s_+3}] offset:{tile*512}")
        g.I("s_mov_b64 exec, -1")
    def bar(tags,idx):
        if tags: g.wait_vm(*tags,extra=" lgkmcnt(0)")
        else: g.lg0()
        g.ts(idx,2)
        if idx>=8: g.lts2(idx-8)
        g.I("s_barrier")
    def kv_stats(it):
        st=KVB(it); base=vTK if st<R2 else vTK2; off=st if st<R2 else st-R2
        if it==3:
            for k in range(4): g.I(f"v_add_u32 v{vXh+k}, {R2}, v{vXh+k}")
        if it==5:
            for k in range(4): g.I(f"v_subrev_u32 v{vXh+k}, {R2}, v{vXh+k}")
        for t in range(4):
            g.ds(f"ds_read_b128 v[{XH+4*t}:{XH+4*t+3}], v{vXh+t} offset:{off}",tag=f"xh{t}")
        for u in range(2):
            g.ds(f"ds_read_b64_tr_b16 v[{FB+4*u}:{FB+4*u+1}], v{base} offset:{off+u*4096}",tag="cf")
            g.ds(f"ds_read_b64_tr_b16 v[{FB+4*u+2}:{FB+4*u+3}], v{base} offset:{off+u*4096+256}",tag="cf")
    def kv_stats2(it):
        for t in range(4):
            g.wait_lg(f"xh{t}")
            cs_mfma(XH+4*t,SX[t%2],it==0 and t<2)
        g.wait_lg("cf")
        cs_mfma(FB,CA[0],it==0); cs_mfma(FB+4,CA[1],it==0)
        if it==7:
            g.I("v_lshlrev_b32 v3, 2, v0"); g.I(f"s_lshl_b32 s81, s{sHW}, 7"); g.I(f"s_add_u32 s81, s81, {NM}"); g.I("v_add_u32 v3, s81, v3")
            g.nop(10)
            for k in range(2): g.I(f"v_add_f32 v{SX[0]+k}, v{SX[0]+k}, v{SX[1]+k}")
            g.I("s_mov_b64 exec, 0xffff")
            g.ds(f"ds_write_b32 v3, v{SX[0]}"); g.ds(f"ds_write_b32 v3, v{SX[0]+1} offset:64")
            g.I("s_mov_b64 exec, -1")
            cs_final(CA[0],0); cs_final(CA[1],1)
    def ht_reads(n):
        for t in range(4):
            g.ds(f"ds_read_b64_tr_b16 v[{FB+4*t}:{FB+4*t+1}], v{vTT} offset:{(n%4)*16384+t*4096}",tag="cf")
            g.ds(f"ds_read_b64_tr_b16 v[{FB+4*t+2}:{FB+4*t+3}], v{vTT} offset:{(n%4)*16384+t*4096+256}",tag="cf")
    def ht_cs(n):
        g.lg0()
        for t in range(4): cs_mfma(FB+4*t,CA[t%2],(n%4)==0 and t<2)
        if n%4==3:
            g.nop(12)
            cs_final(CA[0],2 if n<4 else 4); cs_final(CA[1],3 if n<4 else 5)
    g.I("v_lshrrev_b32 v3, 3, v0"); g.I("v_lshlrev_b32 v3, 10, v3"); g.I("v_and_b32 v4, 7, v0"); g.I("v_lshrrev_b32 v5, 4, v0")
    g.I("v_xor_b32 v4, v4, v5"); g.I(f"v_lshl_or_b32 v{vXe}, v4, 4, v3"); g.I(f"v_xor_b32 v{vXo}, 64, v{vXe}")
    g.I("v_lshrrev_b32 v3, 2, v0"); g.I("v_and_b32 v4, 3, v0"); g.I("v_lshlrev_b32 v4, 4, v4")
    g.I(f"v_mov_b32 v5, 3072"); g.I(f"v_mad_u32_u24 v{vWq}, v3, v5, v4")
    g.I(f"v_mov_b32 v5, 2752"); g.I(f"v_mad_u32_u24 v{vW1}, v3, v5, v4")
    g.I(f"s_lshl_b32 s{sXb}, s{sRB}, 17"); g.I(f"s_lshl_b32 s{sT}, s{sHW}, 16"); g.I(f"s_add_u32 s{sXb}, s{sXb}, s{sT}")
    g.I(f"s_lshl_b32 s{sMx}, s{sHW}, 13"); g.I(f"s_lshl_b32 s{sMw}, s{sHW}, 11")
    g.I(f"s_mul_i32 s{sCQ}, s{sHW}, {2*49152}"); g.I(f"s_lshl_b32 s{sT}, s{sCS}, 6"); g.I(f"s_add_u32 s{sCQ}, s{sCQ}, s{sT}")
    g.I(f"s_add_u32 s{sCK}, s{sCQ}, 1024"); g.I(f"s_add_u32 s{sCV}, s{sCQ}, 2048")
    g.I(f"s_mul_i32 s{sC1}, s{sHW}, {2*44032}"); g.I(f"s_lshl_b32 s{sT}, s{sU32}, 6"); g.I(f"s_add_u32 s{sC1}, s{sC1}, s{sT}")
    if OPT["rot"]==2:
        g.I(f"s_add_u32 s{sKB0}, s{sCS}, s{sRB}"); g.I(f"s_and_b32 s{sKB0}, s{sKB0}, 3"); g.I(f"s_lshl_b32 s{sKB0}, s{sKB0}, 1")
    elif OPT["rot"]==3:
        g.I(f"s_add_u32 s{sKB0}, s{sCS}, s{sRB}"); g.I(f"s_and_b32 s{sKB0}, s{sKB0}, 1"); g.I(f"s_lshl_b32 s{sKB0}, s{sKB0}, 2")
    elif OPT["rot"]==4:
        g.I(f"s_add_u32 s{sKB0}, s{sCS}, s{sRB}")
    elif OPT["rot"]:
        g.I(f"s_and_b32 s{sKB0}, s{sCS}, 3"); g.I(f"s_lshl_b32 s{sKB0}, s{sKB0}, 1"); g.I(f"s_bfe_u32 s{sKB}, s{sCS}, 0x10002")
        g.I(f"s_add_u32 s{sKB0}, s{sKB0}, s{sKB}"); g.I(f"s_add_u32 s{sKB0}, s{sKB0}, s{sRB}")
    else: g.I(f"s_mov_b32 s{sKB0}, 0")
    g.I("s_waitcnt lgkmcnt(0)")
    g.ts(0)
    if OPT["prio"]: g.I("s_setprio 2")
    g.I("v_mov_b32 v3, 0")
    g.vmem(f"buffer_load_dword v28, v3, {sWS}, 0 offen sc1", tag="nonce")
    kv_issue(0); kv_issue(1)
    setup_common()
    g.lg0()
    for it in range(2,5): kv_issue(it)
    get_tag()
    for it in range(8):
        bar([f"kv{it}"],it)
        if it==0: g.ts(1)
        kv_stats(it)
        if 2<=it<=4: kv_issue(it+3)
        if it>=5: ht_issue(it-5)
        kv_stats2(it)
    bar(["ht0"],8)
    g.ts(2)
    g.I("v_and_b32 v3, 3, v0"); g.I("v_lshlrev_b32 v3, 3, v3"); g.I(f"v_add_u32 v24, {SY+64}, v3")
    g.I(f"s_lshl_b32 s81, s{sHW}, 2"); g.I(f"s_add_u32 s81, s81, {SY}"); g.I("v_add_u32 v22, s81, v3")
    g.I(f"s_xor_b32 s81, s{sHW}, 1"); g.I("s_lshl_b32 s81, s81, 2"); g.I(f"s_add_u32 s81, s81, {SY}"); g.I("v_mov_b32 v23, s81")
    g.I(f"s_lshl_b32 s81, s{sHW}, 11"); g.I(f"s_add_u32 s81, s81, {R2}"); g.I(f"v_subrev_u32 v25, s{sH1}, v{vTT}"); g.I(f"v_subrev_u32 v25, {R2}, v25"); g.I("v_add_u32 v25, s81, v25")
    def lwrite(off,val):
        g.I(f"v_mov_b32 v26, {val}"); g.I("s_mov_b64 exec, 0xf"); g.ds(f"ds_write_b32 v22, v26 offset:{off}"); g.I("s_mov_b64 exec, -1")
    FL=32
    FR=[32,36,40,44,76,80,84,88]
    ht_issue(3)
    g.wait_vm("ht1"); lwrite(0,2)
    for n in range(8):
        k=0
        for u in range(4):
            for tt in range(2):
                b_=FR[k]; k+=1
                g.ds(f"ds_read_b64_tr_b16 v[{b_}:{b_+1}], v25 offset:{(n%4)*16384+u*4096+tt*1024}",tag="cf")
                g.ds(f"ds_read_b64_tr_b16 v[{b_+2}:{b_+3}], v25 offset:{(n%4)*16384+u*4096+tt*1024+256}",tag="cf")
        g.lg0()
        k=0
        for u in range(4):
            for tt in range(2):
                first = (n in (0,4,6)) and u<2 and tt==0
                cs_mfma(FR[k],CA[u%2],first); k+=1
        if n in (3,5,7):
            g.nop(12)
            if n==3: cs_final(CA[0],2); cs_final(CA[1],3)
            else:
                for q in range(2): g.I(f"v_add_f32 v{CA[0]+q}, v{CA[0]+q}, v{CA[1]+q}")
                cs_final(CA[0],5 if n==5 else 4)
            val={3:1,5:2,7:3}[n]
            g.I(f"s_lshl_b32 s81, s{sHW}, 2"); g.I(f"s_add_u32 s81, s81, {CNT+32}"); g.I("v_mov_b32 v28, s81"); g.I(f"v_mov_b32 v26, {val}"); g.ds("ds_write_b32 v28, v26")
            Lq=g.newlab("L0"); g.I(f"s_cmp_eq_u32 s{sHW}, 0"); g.I(f"s_cbranch_scc0 {Lq}")
            lgs=list(g.lg)
            g.I(f"v_mov_b32 v28, {CNT+36}"); lspin(g,28,0,val,27)
            cw_final({3:[2,3],5:[5],7:[4]}[n])
            lwrite(32,val); g.I(f"v_mov_b32 v26, {val}"); g.I("s_mov_b64 exec, 0xf"); g.ds("ds_write_b32 v22, v26 offset:36"); g.I("s_mov_b64 exec, -1")
            g.lab(Lq); g.lg=lgs
        if 1<=n<=4:
            lspin(g,24,0,n,27)
            ht_issue(n+3)
        if n+2<=7:
            g.wait_vm(f"ht{n+2}"); lwrite(0,n+3)
        if n==6:
            g.I("v_and_b32 v3, 1, v0"); g.I("v_lshlrev_b32 v3, 3, v3"); g.I(f"s_lshl_b32 s81, s{sHW}, 4"); g.I(f"s_add_u32 s81, s81, {SY+96}"); g.I("v_add_u32 v28, s81, v3")
            lspin(g,28,0,4,27,sleep=True)
            g.I(f"s_lshl_b32 s81, s{sHW}, 12"); g.I(f"s_add_u32 s81, s81, {HST[1]}"); g.I("v_add_u32 v28, s81, v7")
            for tt in range(2):
                for i in range(2): g.ds(f"ds_read_b128 v[{96+8*tt+4*i}:{96+8*tt+4*i+3}], v28 offset:{tt*2048+i*1024}",tag="pb")
            g.I(f"s_lshl_b32 s81, s{sRB}, 2"); g.I(f"s_lshl_b32 s82, s{sHW}, 1"); g.I("s_add_u32 s81, s81, s82")
            g.I(f"s_mul_i32 s81, s81, {NSTEP}"); g.I(f"s_lshl_b32 s82, s{sU32}, 1"); g.I("s_add_u32 s81, s81, s82"); g.I("s_add_u32 s81, s81, 2")
            g.I("s_lshl_b32 s81, s81, 10"); g.I(f"s_add_u32 s81, s81, {AH}")
            g.wait_lg("pb")
            for tt in range(2):
                g.I(f"s_add_u32 s82, s81, {tt*NSTEP*1024}")
                for i in range(2): g.vmem(f"buffer_store_dwordx4 v[{96+8*tt+4*i}:{96+8*tt+4*i+3}], v7, {sWS}, s82 offen offset:{i*1024} sc1",tag="h1st")
    g.ts(9)
    g.vm0(" lgkmcnt(0)")
    g.I(f"s_lshl_b32 s81, s{sHW}, 2"); g.I(f"s_add_u32 s81, s81, {CNT+24}"); g.I("v_mov_b32 v28, s81"); g.I("v_mov_b32 v26, 1"); g.ds("ds_write_b32 v28, v26")
    Lq=g.newlab("L0"); g.I(f"s_cmp_eq_u32 s{sHW}, 0"); g.I(f"s_cbranch_scc0 {Lq}")
    g.I(f"v_mov_b32 v28, {CNT+28}"); lspin(g,28,0,1,27); flag_store16(g,FH+0x8000,16,17); g.lab(Lq); g.lg=[]
    g.ts(10)
    g.I("s_branch L_ATT")
    g.lab("L_HPUB"); g.vm=[("cond","cpf")]; g.lg=[]
    sPI=73
    g.I(f"s_sub_u32 s{sPI}, s{sHW}, 2")
    g.I("s_waitcnt lgkmcnt(0)")
    g.ts(0)
    if OPT["prio"]: g.I("s_setprio 2")
    g.I("v_mov_b32 v3, 0")
    g.vmem(f"buffer_load_dword v28, v3, {sWS}, 0 offen sc1", tag="nonce")
    g.I("s_load_dwordx2 s[52:53], s[0:1], 40"); g.I("s_load_dwordx2 s[56:57], s[0:1], 16")
    g.I("s_mov_b32 s54, 1409024"); g.I("s_mov_b32 s55, 0x20000"); g.I("s_mov_b32 s58, 524288"); g.I("s_mov_b32 s59, 0x20000")
    setup_common()
    g.I(f"v_lshlrev_b32 v3, 4, v0"); g.I(f"v_add_u32 v3, {CNT}, v3")
    for r_ in range(20,24): g.I(f"v_mov_b32 v{r_}, 0")
    g.I("s_mov_b64 exec, 0xffff"); g.ds("ds_write_b128 v3, v[20:23]"); g.I("s_mov_b64 exec, -1")
    for tile in range(2,6): cs_final(20,tile)
    g.I("v_lshlrev_b32 v3, 3, v0"); g.I(f"v_add_u32 v3, {CWL}, v3"); g.I("s_mov_b32 exec_lo, 0")
    for tile in range(6): g.ds(f"ds_write_b64 v3, v[20:21] offset:{tile*512}")
    g.I("s_mov_b64 exec, -1")
    g.I(f"s_sub_u32 s82, 2, s{sPI}"); g.I(f"s_sub_i32 s83, s{sRB}, s82")
    g.I(f"s_cmp_ge_i32 s83, 0"); g.I(f"s_cselect_b32 s{need}, 1, 0")
    g.I(f"s_xor_b32 s{sDONE}, s{need}, 1"); g.I(f"s_mov_b32 s{sDV}, s{sDONE}")
    g.I(f"s_mul_i32 s{sSL}, s{sPI}, {4*SLOT}")
    g.I(f"s_max_i32 s83, s83, 0")
    g.I(f"s_lshl_b32 s81, s83, 4"); g.I(f"s_add_u32 s81, s81, s{sCS}"); g.I("s_lshl_b32 s81, s81, 7"); g.I(f"s_add_u32 s{sFK}, s81, {FKV}"); g.I(f"s_add_u32 s{sFV}, s81, {FVV}")
    g.I(f"s_lshl_b32 s81, s{sRB}, 2"); g.I(f"s_lshl_b32 s82, s{sPI}, 2"); g.I("s_add_u32 s81, s81, s82"); g.I("s_sub_u32 s81, s81, 8")
    g.I("s_lshl_b32 s81, s81, 4"); g.I(f"s_add_u32 s81, s81, s{sCS}"); g.I(f"s_mul_i32 s81, s81, {SLOTG}"); g.I(f"s_add_u32 s{sSRC}, s81, {KV}")
    g.I(f"s_lshl_b32 s81, s{sRB}, 2"); g.I(f"s_lshl_b32 s82, s{sPI}, 1"); g.I("s_add_u32 s81, s81, s82")
    g.I(f"s_lshl_b32 s{sKVo}, s81, 4"); g.I(f"s_add_u32 s{sKVo}, s{sKVo}, s{sCS}"); g.I(f"s_mul_i32 s{sKVo}, s{sKVo}, {SLOTG}"); g.I(f"s_add_u32 s{sKVo}, s{sKVo}, {KV}")
    g.I(f"s_mul_i32 s{sAHo}, s81, {NSTEP}"); g.I(f"s_lshl_b32 s82, s{sU32}, 1"); g.I(f"s_add_u32 s{sAHo}, s{sAHo}, s82"); g.I(f"s_lshl_b32 s{sAHo}, s{sAHo}, 10"); g.I(f"s_add_u32 s{sAHo}, s{sAHo}, {AH}")
    g.I(f"s_lshl_b32 s81, s{sPI}, 1"); g.I(f"s_add_u32 s81, s81, 8"); g.I(f"s_mul_i32 s81, s81, {SLOT}"); g.I("v_add_u32 v19, s81, v7")
    g.I(f"s_lshl_b32 s81, s{sPI}, 12"); g.I("v_add_u32 v20, s81, v7")
    g.lg0()
    get_tag()
    def exA(): g.I("s_mov_b32 exec_lo, 0x0000ffff"); g.I("s_mov_b32 exec_hi, 0x0000ffff")
    def exB(): g.I("s_mov_b32 exec_lo, 0xffff0000"); g.I("s_mov_b32 exec_hi, 0xffff0000")
    def remote_dma(kind):
        o=0 if kind=="K" else 2048
        for tt in range(4):
            for i in range(2):
                g.I(f"s_add_u32 m0, s{sSL}, {tt*SLOT+o+i*1024}")
                g.I(f"s_add_u32 s82, s{sSRC}, {tt*16*SLOTG+o+i*1024}")
                g.vmem(f"buffer_load_dwordx4 v7, {sWS}, s82 offen sc1 lds", cond=True)
        g.I(f"s_mov_b32 s{sDONE if kind=='K' else sDV}, 1")
    def remote_poll(kind):
        g.I(f"s_load_dword s{8 if kind=='K' else 9}, s[64:65], s{sFK if kind=='K' else sFV} glc")
    def remote_check(kind):
        Lskip=g.newlab("RSK")
        g.I(f"s_cmp_eq_u32 s{sDONE if kind=='K' else sDV}, 1"); g.I(f"s_cbranch_scc1 {Lskip}")
        g.I(f"s_cmp_lg_u32 s{8 if kind=='K' else 9}, s{sTAG}"); g.I(f"s_cbranch_scc1 {Lskip}")
        remote_dma(kind)
        g.lab(Lskip)
    def remote_block(kind,err):
        Lskip=g.newlab("RSK")
        g.I(f"s_cmp_eq_u32 s{sDONE if kind=='K' else sDV}, 1"); g.I(f"s_cbranch_scc1 {Lskip}")
        spoll(g,sFK if kind=="K" else sFV,1,err,29)
        remote_dma(kind)
        g.lab(Lskip)
    def publish(kind):
        for tt in range(2):
            if kind=="K":
                b=PB_+8*tt
                for i in range(2): g.ds(f"ds_read_b128 v[{b+4*i}:{b+4*i+3}], v19 offset:{tt*SLOT+i*1024}",tag=f"pb{tt}")
            elif kind=="V":
                b=PB_+8*tt
                for i in range(2): g.ds(f"ds_read_b128 v[{b+4*i}:{b+4*i+3}], v19 offset:{tt*SLOT+2048+i*1024}",tag=f"pb{tt}")
            else:
                b=PB_+8*tt
                for i in range(2): g.ds(f"ds_read_b128 v[{b+4*i}:{b+4*i+3}], v21 offset:{tt*2048+i*1024}",tag=f"pb{tt}")
        for tt in range(2):
            g.wait_lg(f"pb{tt}")
            if kind=="K":
                g.I(f"s_add_u32 s82, s{sKVo}, {tt*16*SLOTG}")
                for i in range(2): g.vmem(f"buffer_store_dwordx4 v[{PB_+8*tt+4*i}:{PB_+8*tt+4*i+3}], v7, {sWS}, s82 offen offset:{i*1024} sc1",tag="kst")
            elif kind=="V":
                g.I(f"s_add_u32 s82, s{sKVo}, {tt*16*SLOTG+2048}")
                for i in range(2): g.vmem(f"buffer_store_dwordx4 v[{PB_+8*tt+4*i}:{PB_+8*tt+4*i+3}], v7, {sWS}, s82 offen offset:{i*1024} sc1",tag="vst")
            else:
                g.I(f"s_add_u32 s82, s{sAHo}, {tt*NSTEP*1024+2*kind*1024}")
                for i in range(2): g.vmem(f"buffer_store_dwordx4 v[{PB_+8*tt+4*i}:{PB_+8*tt+4*i+3}], v7, {sWS}, s82 offen offset:{i*1024} sc1",tag="hst")
    def touch(srd,nl,reg,vaddr=15,mul=None):
        g.I(f"s_mul_i32 s81, s2, {mul if mul else nl*128}")
        if nl>32: g.I(f"s_mov_b32 exec_hi, {hex((1<<(nl-32))-1)}")
        else: g.I(f"s_mov_b32 exec_hi, 0"); g.I(f"s_mov_b32 exec_lo, {hex((1<<nl)-1)}")
        g.vmem(f"buffer_load_dword v{reg}, v{vaddr}, {srd}, s81 offen ;pf")
        g.I("s_mov_b64 exec, -1")
    def by_pi(k,fn):
        Lq=g.newlab("PI"); g.I(f"s_cmp_eq_u32 s{sPI}, {k}"); g.I(f"s_cbranch_scc0 {Lq}")
        save=list(g.vm); fn(); g.vm=save; g.lab(Lq)
    def l2touch(k):
        if not OPT.get("l2x"): return
        if k<3:
            g.I(f"s_mul_i32 s81, s{sIDX}, 45056"); g.I(f"s_lshl_b32 s82, s{sPI}, 13"); g.I("s_add_u32 s81, s81, s82"); g.I(f"s_add_u32 s81, s81, {k*16384}")
            g.vmem(f"buffer_load_dword v{232+k}, v15, {sW2}, s81 offen ;pf")
        else:
            g.I(f"s_lshl_b32 s81, s{sIDX}, 14"); g.I(f"s_lshl_b32 s82, s{sPI}, 13"); g.I("s_add_u32 s81, s81, s82")
            g.vmem(f"buffer_load_dword v{232+k}, v15, {sWO}, s81 offen ;pf")
    for it in range(8):
        bar([],it)
        if it==0: g.ts(1)
        kv_stats(it)
        if it==OPT.get('pf0it',4) and OPT["pf0"]:
            by_pi(0,lambda: touch(sW1,43,244))
            def wq():
                g.I("v_lshrrev_b32 v22, 3, v0"); g.I("v_mul_u32_u24 v22, 3072, v22"); g.I("v_and_b32 v23, 7, v0"); g.I("v_lshl_add_u32 v22, v23, 7, v22")
                touch(sWQ,16,245,vaddr=22,mul=2*3072)
            by_pi(1,wq)
        if it==OPT.get('pfxit',0) and OPT.get("pfx"):
            g.I("v_mul_u32_u24 v22, 0x2493, v0"); g.I("v_lshrrev_b32 v22, 16, v22")
            g.I("v_mul_u32_u24 v23, 7, v22"); g.I("v_sub_u32 v23, v0, v23")
            g.I("v_mul_u32_u24 v22, 2752, v22"); g.I("v_lshl_add_u32 v22, v23, 7, v22")
            g.I(f"s_lshr_b32 s81, s{sJ}, 1"); g.I("s_lshl_b32 s81, s81, 2")
            g.I("s_mul_i32 s82, s81, 3"); g.I("s_lshl_b32 s83, s81, 1"); g.I("s_add_u32 s83, s83, 11"); g.I("s_min_u32 s82, s82, s83")
            g.I("s_lshl_b32 s82, s82, 6"); g.I("s_and_b32 s82, s82, 0xffffff80")
            g.I(f"s_lshl_b32 s83, s{sIDX}, 4"); g.I(f"s_lshl_b32 s81, s{sPI}, 3"); g.I("s_add_u32 s83, s83, s81"); g.I("s_mul_i32 s83, s83, 2752"); g.I("s_add_u32 s82, s82, s83")
            g.I(f"s_mov_b32 exec_hi, {hex((1<<24)-1)}")
            g.vmem(f"buffer_load_dword v248, v22, {sW1}, s82 offen ;pf")
            g.I("s_mov_b64 exec, -1")
            def wqx():
                g.I("v_lshrrev_b32 v22, 1, v0"); g.I("v_mul_u32_u24 v22, 3072, v22"); g.I("v_and_b32 v23, 1, v0"); g.I("v_lshl_add_u32 v22, v23, 7, v22")
                g.I(f"s_lshr_b32 s81, s{sJ}, 1"); g.I("s_lshl_b32 s81, s81, 8"); g.I(f"s_mul_i32 s82, s{sIDX}, {16*3072}"); g.I("s_add_u32 s82, s82, s81")
                g.I("s_mov_b32 exec_hi, 0")
                g.vmem(f"buffer_load_dword v249, v22, {sWQ}, s82 offen ;pf")
                g.I("s_mov_b64 exec, -1")
            by_pi(1,wqx)
        if OPT.get("l2x")==3 and 3<=it<=6: l2touch(it-3)
        if it==OPT.get('pf1it',6) and OPT["pf1"]:
            by_pi(0,lambda: touch(sW2,43,246)); by_pi(1,lambda: touch(sWO,16,247))
        kv_stats2(it)
    bar([],8)
    g.ts(2)
    g.ts(0,8)
    g.I("v_and_b32 v3, 1, v0"); g.I("v_lshlrev_b32 v3, 3, v3"); g.I(f"s_lshl_b32 s81, s{sPI}, 4"); g.I(f"s_add_u32 s81, s81, {SY+96}"); g.I("v_add_u32 v22, s81, v3")
    g.I(f"s_lshl_b32 s81, s{sPI}, 2"); g.I(f"s_add_u32 s81, s81, {CNT+16}"); g.I("v_mov_b32 v23, s81")
    g.I(f"v_mov_b32 v3, {CNT+20}")
    g.I("v_mov_b32 v30, v3")
    def pmark(val,flagfn):
        g.I(f"v_mov_b32 v26, {val}"); g.ds("ds_write_b32 v23, v26")
        Lq=g.newlab("PI"); g.I(f"s_cmp_eq_u32 s{sPI}, 0"); g.I(f"s_cbranch_scc0 {Lq}")
        save=list(g.vm); lspin(g,30,0,val,31); flagfn(); g.vm=save; g.lab(Lq); g.lg=[]
    def kvcw():
        cw_final([0,1])
        g.I(f"v_mov_b32 v28, {CNT+40}"); g.I("v_mov_b32 v26, 1"); g.ds("ds_write_b32 v28, v26")
    by_pi(0,kvcw); g.lg=[]
    Lnz=g.newlab("NOZF")
    g.I(f"s_cmp_eq_u32 s{need}, 1"); g.I(f"s_cbranch_scc1 {Lnz}")
    g.I(f"v_add_u32 v8, s{sSL}, v7")
    for r_ in range(24,28): g.I(f"v_mov_b32 v{r_}, 0")
    for i in range(16): g.ds(f"ds_write_b128 v8, v[24:27] offset:{i*1024}",cond=True)
    g.lab(Lnz)
    g.lg0()
    TP=OPT.get("l2x",0)
    if TP==1: l2touch(0)
    lspin(g,22,0,1,31,sleep=True); publish("K")
    if TP==1: l2touch(1)
    g.ts(1,8)
    def pub_r():
        Lr=g.newlab("NOR")
        g.I(f"s_cmp_eq_u32 s{sCS}, 0"); g.I(f"s_cbranch_scc0 {Lr}")
        g.I("v_lshlrev_b32 v28, 3, v0"); g.I(f"v_add_u32 v29, {RL}, v28")
        g.I("ds_read_b64 v[40:41], v29"); g.I("s_waitcnt lgkmcnt(0)")
        g.I(f"s_lshl_b32 s82, s{sRB}, 9"); g.I(f"s_add_u32 s82, s82, {STR}")
        g.vmem(f"buffer_store_dwordx2 v[40:41], v28, {sWS}, s82 offen sc1")
        g.lab(Lr)
    def pub_r2():
        g.I(f"v_add_u32 v29, 16, v22"); lspin(g,29,0,1,31,sleep=True); pub_r()
    by_pi(0,pub_r2); g.lg=[]
    lspin(g,22,0,2,31,sleep=True); publish("V")
    if TP==1: l2touch(2)
    g.ts(2,8)
    g.wait_vm("kst"); pmark(1,lambda: flag_store1(g,FKV,16,17))
    g.ts(3,8)
    g.wait_vm("vst"); pmark(2,lambda: flag_store1(g,FVV,16,17))
    if TP==1: l2touch(3)
    if TP==2:
        for k_ in range(4): l2touch(k_)
    g.ts(4,8)
    def tries():
        remote_check("K"); remote_check("V")
    def polls():
        remote_poll("K"); remote_poll("V")
    polls()
    g.I("s_waitcnt lgkmcnt(0)"); tries(); polls()
    lspin(g,22,0,3,31,sleep=True)
    g.ts(5,8)
    tries()
    g.I(f"v_add_u32 v21, {HST[0]}, v20"); publish(0)
    remote_block("K",0x102)
    g.vm0(" lgkmcnt(0)")
    g.I(f"v_mov_b32 v8, {CNT+12}"); g.I("v_mov_b32 v9, 1")
    g.I("s_mov_b64 exec, 1"); g.I("ds_add_u32 v8, v9"); g.I("s_mov_b64 exec, -1")
    g.I(f"s_mov_b32 s98, s{sDV}")
    pmark(3,lambda: flag_store16(g,FH,16,17))
    g.ts(7,8)
    remote_poll("V"); g.I("s_waitcnt lgkmcnt(0)"); remote_check("V")
    g.ts(9); g.ts(10)
    g.lab("L_ATT"); g.vm=[]; g.lg=[]
    g.lx(0)
    pub_remote_block=remote_block; pub_pmark=pmark
    g.I(f"v_mov_b32 v8, {CNT+12}")
    Lk=g.newlab("KSP"); Dk=g.newlab("KSD")
    g.I(f"s_mov_b32 s{sSPIN}, {OPT['spin']}")
    g.lab(Lk)
    g.I("ds_read_b32 v9, v8"); g.I("s_waitcnt lgkmcnt(0)")
    g.I("v_cmp_ne_u32 vcc, 2, v9"); g.I("s_nop 0"); g.I(f"s_cbranch_vccz {Dk}")
    g.I(f"s_sub_u32 s{sSPIN}, s{sSPIN}, 1"); g.I(f"s_cbranch_scc0 {Lk}")
    g.lab(Dk)
    g.I(f"s_lshl_b32 s81, s{sHW}, 3"); g.I(f"s_add_u32 s81, s81, {SY+96}"); g.I("v_mov_b32 v8, s81")
    lspin(g,8,0,5,9,sleep=True)
    g.lx(1)
    g.ts(3)
    if OPT["prio"]: g.I("s_setprio 3")
    QF=16
    g.I(f"s_lshl_b32 s81, s{sHW}, 11"); g.I(f"s_add_u32 s81, s81, {QL}")
    g.I("v_add_u32 v10, s81, v7")
    g.ds(f"ds_read_b128 v[{QF}:{QF+3}], v10", tag="q"); g.ds(f"ds_read_b128 v[{QF+4}:{QF+7}], v10 offset:1024", tag="q")
    g.I(f"s_mul_i32 s81, s{sHW}, {SLOT}")
    g.I("v_add_u32 v11, s81, v7")
    Lgen=g.newlab("ATG"); Lfin=g.newlab("ATF")
    g.I(f"s_cmp_eq_u32 s{sTM}, 0"); g.I(f"s_cbranch_scc0 {Lgen}")
    def vsync():
        Lnp=g.newlab("NPUB")
        g.I(f"v_mov_b32 v8, {CNT+8}")
        g.I(f"s_cmp_ge_u32 s{sHW}, 2"); g.I(f"s_cbranch_scc0 {Lnp}")
        Lve=g.newlab("VE")
        g.I("s_cmp_eq_u32 s98, 1"); g.I(f"s_cbranch_scc1 {Lve}")
        pub_remote_block("V",0x105)
        g.I("s_waitcnt vmcnt(0)"); g.vm=[]
        g.lab(Lve)
        g.I("v_mov_b32 v9, 1")
        g.I("s_mov_b64 exec, 1"); g.I("ds_add_u32 v8, v9"); g.I("s_mov_b64 exec, -1")
        g.lab(Lnp)
        L=g.newlab("LSP"); D=g.newlab("LSD")
        g.I(f"s_mov_b32 s{sSPIN}, {OPT['spin']}")
        g.lab(L)
        g.I("ds_read_b32 v9, v8"); g.I("s_waitcnt lgkmcnt(0)"); g.lg=[]
        g.I("v_cmp_ne_u32 vcc, 2, v9"); g.I("s_nop 0"); g.I(f"s_cbranch_vccz {D}")
        g.I(f"s_sub_u32 s{sSPIN}, s{sSPIN}, 1"); g.I(f"s_cbranch_scc0 {L}")
        g.lab(D)
    def fh1():
        Lnp=g.newlab("NPB")
        g.I(f"s_cmp_ge_u32 s{sHW}, 2"); g.I(f"s_cbranch_scc0 {Lnp}")
        lgs=list(g.lg)
        g.I("s_waitcnt vmcnt(0)")
        g.I("s_lshl_b32 s81, s73, 2"); g.I(f"s_add_u32 s81, s81, {CNT+16}"); g.I("v_mov_b32 v12, s81"); g.I(f"v_mov_b32 v13, {CNT+20}")
        g.I("v_mov_b32 v14, 4"); g.I("ds_write_b32 v12, v14")
        Lq=g.newlab("PI"); g.I("s_cmp_eq_u32 s73, 0"); g.I(f"s_cbranch_scc0 {Lq}")
        lspin(g,13,0,4,14); flag_store16(g,FH+0x8000,14,15); g.lab(Lq)
        g.lab(Lnp); g.lg=lgs
    lg=list(g.lg); vm=list(g.vm)
    OA=attention(g,False,QF,BD,BO,sTM,vsync,fh1)
    g.I(f"s_branch {Lfin}")
    g.lab(Lgen); g.lg=lg; g.vm=vm
    attention(g,True,QF,BD,BO,sTM,vsync,fh1)
    g.lab(Lfin)
    g.nop(12)
    g.lta_dump()
    g.lx(5)
    g.ts(14,8)
    g.ts(5)
    g.I(f"v_rcp_f32 v72, v{OA[0]+8}"); g.I(f"v_rcp_f32 v73, v{OA[1]}"); g.I("s_nop 0")
    for e in range(8):
        g.I(f"v_mul_f32 v{OA[0]+e}, v{OA[0]+e}, v72"); g.I(f"v_mul_f32 v{OA[1]+8+e}, v{OA[1]+8+e}, v73")
    for e in range(4):
        g.I(f"v_cvt_pk_bf16_f32 v{76+e}, v{OA[0]+2*e}, v{OA[0]+2*e+1}")
        g.I(f"v_cvt_pk_bf16_f32 v{80+e}, v{OA[1]+8+2*e}, v{OA[1]+8+2*e+1}")
    g.I(f"s_lshl_b32 s81, s{sRB}, 2"); g.I(f"s_add_u32 s81, s81, s{sHW}"); g.I(f"s_mul_i32 s81, s81, {NSTEP}")
    g.I(f"s_lshl_b32 s82, s{sCS}, 1"); g.I("s_add_u32 s81, s81, s82"); g.I("s_add_u32 s81, s81, 86")
    g.I("s_lshl_b32 s81, s81, 10"); g.I(f"s_add_u32 s81, s81, {AH}")
    g.vmem(f"buffer_store_dwordx4 v[76:79], v7, {sWS}, s81 offen sc1")
    g.vmem(f"buffer_store_dwordx4 v[80:83], v7, {sWS}, s81 offen offset:1024 sc1")
    g.lx(6)
    g.vm0()
    g.lx(7)
    g.I(f"v_mov_b32 v8, {CNT+4}"); g.I("v_mov_b32 v9, 1")
    g.I("s_mov_b64 exec, 1")
    g.I("ds_add_rtn_u32 v10, v8, v9"); g.I("s_waitcnt lgkmcnt(0)")
    g.I("v_readfirstlane_b32 s81, v10"); g.I("s_mov_b64 exec, -1")
    Lno=g.newlab("NOFO")
    g.I("s_cmp_eq_u32 s81, 3"); g.I(f"s_cbranch_scc0 {Lno}")
    flag_store16(g,FO,3,4)
    g.lab(Lno)
    g.lx(8)
    g.lta_dump(final=True)
    g.ts(6)
    g.ts(15,8)
    g.I(f"s_or_b32 s81, s2, s{sHW}")
    g.I("s_cmp_eq_u32 s81, 0"); g.I("s_cbranch_scc0 L_END")
    g.I("v_lshrrev_b32 v3, 2, v0"); g.I("v_lshlrev_b32 v3, 11, v3"); g.I("v_and_b32 v4, 3, v0"); g.I("v_lshl_add_u32 v3, v4, 4, v3")
    g.I(f"v_add_u32 v3, {FH}, v3")
    Ln=g.newlab("NB"); Dn=g.newlab("NBD")
    g.I(f"s_mov_b32 s{sSPIN}, {OPT['spin']}")
    g.lab(Ln)
    g.vmem(f"buffer_load_dwordx4 v[12:15], v3, {sWS}, 0 offen sc1")
    g.I("s_waitcnt vmcnt(0)")
    for k in range(4): g.I(f"v_xor_b32 v{12+k}, s{sTAG}, v{12+k}")
    g.I("v_or_b32 v12, v12, v13"); g.I("v_or_b32 v14, v14, v15"); g.I("v_or_b32 v12, v12, v14")
    g.I("v_cmp_ne_u32 vcc, 0, v12"); g.I("s_nop 0"); g.I(f"s_cbranch_vccz {Dn}")
    g.I(f"s_sub_u32 s{sSPIN}, s{sSPIN}, 1"); g.I(f"s_cbranch_scc0 {Ln}")
    g.lab(Dn)
    g.I("v_mov_b32 v3, 0"); g.I(f"v_mov_b32 v5, s{sTAG}")
    g.I("s_mov_b64 exec, 1")
    g.vmem(f"buffer_store_dword v5, v3, {sWS}, 0 offen sc1")
    g.I("s_waitcnt vmcnt(0)")
    g.I("s_branch L_END")

def gwave(g):
    g.lab("L_GWAVE"); g.tsreg=5
    XF=128
    ACC=[64,80,96,112]
    vXa=8; vWkv=12; vWt=13; vL16=7; vSL=51
    g.I("s_load_dwordx2 s[52:53], s[0:1], 40"); g.I("s_load_dwordx2 s[56:57], s[0:1], 16")
    g.I("s_load_dwordx2 s[60:61], s[0:1], 48"); g.I("s_load_dwordx2 s[68:69], s[0:1], 56")
    g.I("v_lshlrev_b32 v7, 4, v0")
    for base,size in ((52,1409024),(56,524288),(60,2097152)):
        g.I(f"s_mov_b32 s{base+2}, {size}"); g.I(f"s_mov_b32 s{base+3}, 0x20000")
    g.I("v_and_b32 v2, 31, v0")
    g.I("v_lshrrev_b32 v3, 3, v2"); g.I("v_lshlrev_b32 v3, 10, v3"); g.I("v_and_b32 v4, 7, v2"); g.I("v_lshl_add_u32 v3, v4, 7, v3")
    g.I("v_bfe_u32 v4, v0, 1, 3"); g.I("v_lshrrev_b32 v5, 5, v0"); g.I("v_xor_b32 v4, v4, v5"); g.I("v_lshl_add_u32 v3, v4, 4, v3")
    g.I(f"s_lshl_b32 s72, s{sW}, 12"); g.I(f"v_add_u32 v{vXa}, s72, v3")
    for t in range(1,4): g.I(f"v_xor_b32 v{vXa+t}, {t<<5}, v{vXa}")
    g.I("v_lshrrev_b32 v3, 5, v0"); g.I("v_lshlrev_b32 v3, 3, v3"); g.I("v_bfe_u32 v4, v0, 2, 2"); g.I("v_add_u32 v3, v3, v4")
    g.I("v_lshlrev_b32 v3, 6, v3"); g.I("v_bfe_u32 v4, v0, 4, 1"); g.I("v_lshl_add_u32 v3, v4, 5, v3")
    g.I("v_and_b32 v4, 3, v0"); g.I("v_lshl_add_u32 v3, v4, 3, v3")
    g.I(f"v_add_u32 v{vWkv}, 16384, v3"); g.I(f"v_add_u32 v{vWt}, {R2}, v3")
    g.I(f"v_lshlrev_b32 v{vSL}, 3, v0"); g.I(f"v_add_u32 v{vSL}, {CWL}, v{vSL}")
    g.I("v_lshrrev_b32 v6, 5, v0"); g.I("v_add_u32 v6, -1, v6")
    g.I(f"s_add_u32 s73, s{sW}, 8"); g.I(f"s_mul_i32 s73, s73, {SLOT}"); g.I("v_add_u32 v14, s73, v7")
    g.I(f"s_lshl_b32 s72, s{sW}, 7"); g.I("v_lshlrev_b32 v4, 2, v2"); g.I("v_add_u32 v4, s72, v4"); g.I(f"v_add_u32 v4, {NM}, v4")
    g.I("v_lshrrev_b32 v3, 5, v0"); g.I("v_lshlrev_b32 v3, 4, v3"); g.I(f"s_add_u32 s72, s72, {RL}"); g.I("v_add_u32 v3, s72, v3")
    g.I(f"s_lshl_b32 s76, s{sW}, 11"); g.I(f"s_add_u32 s76, s76, {HST[0]}"); g.I("v_add_u32 v15, s76, v7")
    g.I("v_and_b32 v1, 1, v0"); g.I("v_lshlrev_b32 v1, 2, v1"); g.I(f"s_lshl_b32 s76, s{sW}, 3"); g.I(f"s_add_u32 s76, s76, {SY}"); g.I("v_add_u32 v1, s76, v1")
    g.I(f"s_and_b32 s72, s{sIDX}, 3")
    g.I(f"s_lshl_b32 s{sA3}, s{sJ}, 3"); g.I("s_lshl_b32 s73, s72, 1"); g.I(f"s_add_u32 s{sA3}, s{sA3}, s73")
    g.I(f"s_lshr_b32 s{sCT}, s{sIDX}, 2"); g.I(f"s_lshr_b32 s{sRB3}, s{sA3}, 2")
    g.I("s_waitcnt lgkmcnt(0)")
    g.I("v_mov_b32 v5, 0")
    g.vmem(f"buffer_load_dword v28, v5, {sWS}, 0 offen sc1", tag="nonce")
    sRG=82; sA=[83,84,85]; sWb=[86,87,88]; sFH=89; sFO=94; sXo=78
    g.I(f"s_lshl_b32 s{sRG}, s{sW}, 14"); g.I(f"s_add_u32 s{sRG}, s{sRG}, {RING}")
    g.I(f"s_lshr_b32 s95, s{sW}, 1"); g.I(f"s_and_b32 s96, s{sW}, 1")
    g.I("s_mul_i32 s97, s95, 6"); g.I("s_add_u32 s97, s97, s96")
    g.I("s_lshl_b32 s98, s95, 2"); g.I("s_add_u32 s98, s98, s96")
    g.I(f"s_mul_i32 s99, s{sA3}, {NSTEP}")
    for k,src in ((0,97),(1,98)):
        g.I(f"s_add_u32 s{sA[k]}, s99, s{src}"); g.I(f"s_lshl_b32 s{sA[k]}, s{sA[k]}, 10"); g.I(f"s_add_u32 s{sA[k]}, s{sA[k]}, {AH}")
        g.I(f"s_lshl_b32 s{sWb[k]}, s{src}, 14")
    g.I(f"s_add_u32 s{sA[2]}, s99, s{sW}"); g.I(f"s_add_u32 s{sA[2]}, s{sA[2]}, 86"); g.I(f"s_lshl_b32 s{sA[2]}, s{sA[2]}, 10"); g.I(f"s_add_u32 s{sA[2]}, s{sA[2]}, {AH}")
    g.I(f"s_lshl_b32 s{sWb[2]}, s{sW}, 14")
    g.I(f"s_lshl_b32 s{sFH}, s{sRB3}, 4"); g.I(f"s_lshl_b32 s95, s{sCT}, 1"); g.I(f"s_add_u32 s{sFH}, s{sFH}, s95"); g.I(f"s_and_b32 s95, s{sIDX}, 1"); g.I(f"s_add_u32 s{sFH}, s{sFH}, s95")
    g.I(f"s_lshl_b32 s{sFH}, s{sFH}, 7"); g.I(f"s_add_u32 s{sFO}, s{sFH}, {FO}"); g.I(f"s_add_u32 s{sFH}, s{sFH}, {FH}")
    sKVo=74; sAHo=93
    g.I(f"s_lshl_b32 s72, s{sRB}, 2"); g.I(f"s_add_u32 s72, s72, s{sW}")
    g.I(f"s_lshl_b32 s{sKVo}, s72, 4"); g.I(f"s_add_u32 s{sKVo}, s{sKVo}, s{sCS}"); g.I(f"s_mul_i32 s{sKVo}, s{sKVo}, {SLOT}"); g.I(f"s_add_u32 s{sKVo}, s{sKVo}, {KV}")
    g.I(f"s_mul_i32 s{sAHo}, s72, {NSTEP}"); g.I(f"s_lshl_b32 s73, s{sU32}, 1"); g.I(f"s_add_u32 s{sAHo}, s{sAHo}, s73"); g.I(f"s_lshl_b32 s{sAHo}, s{sAHo}, 10"); g.I(f"s_add_u32 s{sAHo}, s{sAHo}, {AH}")
    g.wait_vm("cpf","nonce")
    g.I(f"v_readfirstlane_b32 s{sTAG}, v28"); g.I("s_nop 1")
    g.I(f"s_add_u32 s{sTAG}, s{sTAG}, {TAGC}"); g.I(f"s_mov_b32 s24, s{sTAG}"); g.I(f"s_mov_b32 s25, s{sTAG}")
    g.ts(0)
    steps=[]
    WKV=[16,24,32,40]
    for it in range(8):
        st=KVB(it); off0 = st if st<R2 else st-R2
        for t in range(4):
            n=it*4+t; wb=WKV[n%4]; xf=XF+4*n
            rd=[(f"ds_read_b128 v[{xf}:{xf+3}], v{vXa+t} offset:{off0}")]
            for u in range(2):
                off=off0+u*4096+t*1024
                rd.append(f"ds_read_b64_tr_b16 v[{wb+4*u}:{wb+4*u+1}], v{vWkv} offset:{off}")
                rd.append(f"ds_read_b64_tr_b16 v[{wb+4*u+2}:{wb+4*u+3}], v{vWkv} offset:{off+256}")
            X=f"v[{xf}:{xf+3}]"; a0=ACC[0]; a1=ACC[1]
            mf=[f"v_mfma_f32_32x32x16_bf16 v[{a0}:{a0+15}], v[{wb}:{wb+3}], {X}, {'0' if n==0 else f'v[{a0}:{a0+15}]'}",
                f"v_mfma_f32_32x32x16_bf16 v[{a1}:{a1+15}], {X}, v[{wb+4}:{wb+7}], {'0' if n==0 else f'v[{a1}:{a1+15}]'}"]
            GR=112
            post=[f"v_mfma_f32_32x32x16_bf16 v[{GR}:{GR+15}], {X}, {X}, {'0' if n==0 else f'v[{GR}:{GR+15}]'}"]
            if OPT.get("nogram") and n>0: post=[]
            pre_rd=[]
            if t==0 and it==3:
                pre_rd=[f"v_add_u32 v{vXa+k}, {R2}, v{vXa+k}" for k in range(4)]+[f"v_add_u32 v{vWkv}, {R2}, v{vWkv}"]
            if t==0 and it==5:
                pre_rd=[f"v_subrev_u32 v{vXa+k}, {R2}, v{vXa+k}" for k in range(4)]+[f"v_subrev_u32 v{vWkv}, {R2}, v{vWkv}"]
            steps.append(dict(rd=rd,mf=mf,post=post,pre_rd=pre_rd,bar=(t==0),lag=3,hold=0,idx=it))
    WT=[32,36,40,16,20,24,28]
    tacc=[ACC[2],ACC[3],ACC[2],ACC[0]]
    cnt=0
    def addstep(P,off,a,sx,first):
        nonlocal cnt
        wb=WT[cnt%7]; xf=XF+4*sx
        rd=[f"ds_read_b64_tr_b16 v[{wb}:{wb+1}], v{vWt} offset:{off}", f"ds_read_b64_tr_b16 v[{wb+2}:{wb+3}], v{vWt} offset:{off+256}"]
        mf=[f"v_mfma_f32_32x32x16_bf16 v[{a}:{a+15}], v[{wb}:{wb+3}], v[{xf}:{xf+3}], {'0' if first else f'v[{a}:{a+15}]'}"]
        steps.append(dict(rd=rd,mf=mf,post=[],pre_rd=[],bar=(cnt%16==0),lag=OPT.get('lag',6),hold=OPT.get('hold',0),idx=8+cnt//16,T=P,s=cnt%64))
        cnt+=1
    for n4 in range(4):
        for kk in range(2):
            for t in range(4):
                for y in range(2):
                    sx=(2*n4+kk)*4+t
                    addstep(0,n4*16384+(kk*2+y)*4096+t*1024,[ACC[2],ACC[3]][y],sx,sx==0)
    for n in range(4,8):
        for u in range(4):
            for t in range(4):
                sx=(4*(n&1)+u)*4+t
                pair=[ACC[0],ACC[1]] if n<6 else [ACC[2],ACC[3]]
                addstep(1,(n%4)*16384+u*4096+t*1024,pair[sx%2],sx,sx<2)
    CX=44; RI=48; SJ4=52; CW=56
    fill={}
    def I(t):
        if OPT.get("fastfill") and (t.startswith("v_mul_f32") or t.startswith("v_cvt_pk") or t.startswith("v_max_f32") or t.startswith("v_add_f32")): return None
        return lambda: g.I(t)
    def DS(t,tag=None): return lambda: g.ds(t,tag)
    def VM(t,tag=None,cond=False): return (lambda: g.vmem(t,tag,cond)) if not OPT.get("nogst") else None
    def WL(*tg): return lambda: g.wait_lg(*tg)
    SKIP=None
    GAP=OPT.get("gap",18)
    def sj_read(tile,reg): return [DS(f"ds_read_b64 v[{CW}:{CW+1}], v{vSL} offset:{tile*512}",f"sj{tile}")]
    def corr_prep(tile,reg=None): return [WL(f"sj{tile}")]
    def corr_mfma(a,normal):
        W=f"v[{CW}:{CW+3}]"; X=f"v[{CX}:{CX+3}]"
        return [I(f"v_mfma_f32_32x32x16_bf16 v[{a}:{a+15}], {X if normal else W}, {W if normal else X}, v[{a}:{a+15}]")]
    GR=112
    a1,a2=49,50
    diag=[]
    for lvl,bit in enumerate((0,1,3,4)): diag.append(f"v_bfe_i32 v{60+lvl}, v0, {bit}, 1")
    diag+=["v_bfe_u32 v52, v0, 2, 1","v_lshrrev_b32 v53, 5, v0","v_xor_b32 v52, v52, v53","v_add_u32 v52, -1, v52","s_nop 4"]
    n=16
    for lvl in range(4):
        n//=2
        for k in range(n): diag.append(f"v_bfi_b32 v{GR+k}, v{60+lvl}, v{GR+2*k+1}, v{GR+2*k}")
    diag+=[f"v_and_b32 v{a2}, v52, v{GR}", f"v_mov_b32 v61, v{a2}", f"v_mov_b32 v{CX+2}, 0", f"v_mov_b32 v{CX+3}, 0",
           f"v_permlane32_swap_b32 v{a2}, v61", f"v_mov_b32 v{CW+2}, 0", f"v_add_f32 v{a2}, v{a2}, v61", f"v_mov_b32 v{CW+3}, 0"]
    diag+=["v_lshrrev_b32 v8, 3, v0","v_lshlrev_b32 v8, 10, v8","v_and_b32 v9, 7, v0","v_bfe_u32 v10, v0, 4, 1","v_lshlrev_b32 v10, 2, v10","v_xor_b32 v10, v9, v10",
           "v_lshl_add_u32 v10, v10, 4, v8", f"s_lshl_b32 s72, s{sCT}, 7", "v_add_u32 v10, s72, v10",
           f"s_lshl_b32 s72, s{sW}, 13", "v_add_u32 v8, s72, v8", "v_lshl_add_u32 v11, v9, 4, v8",
           "v_lshrrev_b32 v8, 5, v0","v_lshlrev_b32 v8, 2, v8","v_bfe_u32 v9, v0, 2, 2","v_add_u32 v8, v8, v9","v_lshlrev_b32 v8, 7, v8",
           "v_bfe_u32 v9, v0, 3, 1","v_lshl_add_u32 v8, v9, 6, v8","v_bfe_u32 v9, v0, 4, 1","v_lshl_add_u32 v8, v9, 5, v8",
           "v_and_b32 v9, 3, v0","v_lshl_add_u32 v8, v9, 3, v8", f"v_add_u32 v12, s{sRG}, v8"]
    stf0=[DS(f"ds_read_b32 v{a1}, v4","st")]
    stf=[SKIP]*3
    aK=ACC[0]; aV=ACC[1]
    RVR=aK+8
    st2=[WL("st"),
          I(f"v_mul_f32 v{a1}, 0x3b000000, v{a1}"), I(f"v_mul_f32 v{a2}, 0x3b000000, v{a2}"),
          I(f"v_fma_f32 v{a2}, -v{a1}, v{a1}, v{a2}"), I(f"v_cvt_pk_bf16_f32 v{CX}, -v{a1}, -v{a1}"), I(f"v_max_f32 v{a2}, 0, v{a2}"),
          I(f"v_mov_b32 v{CX+1}, v{CX}"), I(f"v_cvt_pk_bf16_f32 v{a2}, v{a2}, v{a2}"),
          I(f"v_and_b32 v{a2}, 0xffff0000, v{a2}"),
          I(f"v_add_f32 v{a2}, 0x3727c5ac, v{a2}"), I(f"v_cvt_pk_bf16_f32 v{a2}, v{a2}, v{a2}"), I(f"v_and_b32 v{a2}, 0xffff0000, v{a2}"),
          I(f"v_sqrt_f32 v{a2}, v{a2}"), I("s_nop 0"), I(f"v_cvt_pk_bf16_f32 v{a2}, v{a2}, v{a2}"), I(f"v_and_b32 v{a2}, 0xffff0000, v{a2}"),
          I(f"v_rcp_f32 v{RI}, v{a2}"), I("s_nop 0"),
          DS(f"ds_write_b32 v4, v{RI} offset:{RL-NM}","rlw")]
    def rvload(q0,tag): return [DS(f"ds_read_b128 v[{RVR+4*q}:{RVR+4*q+3}], v3 offset:{(q0+q)*32}",tag) for q in range(2)]
    kmul=[I(f"v_mul_f32 v{aK+r}, v{aK+r}, v{RI}") for r in range(16)]
    kcvt=[I(f"v_cvt_pk_bf16_f32 v{aK+e}, v{aK+2*e}, v{aK+2*e+1}") for e in range(8)]
    kst=[]
    for hh in range(2):
        kst.append(DS(f"ds_write_b128 v14, v[{aK+4*hh}:{aK+4*hh+3}] offset:{hh*1024}","kw"))
    vmulA=[WL("rv0")]+[I(f"v_mul_f32 v{aV+r}, v{aV+r}, v{RVR+r}") for r in range(8)]
    vmulB=[WL("rv1")]+[I(f"v_mul_f32 v{aV+8+r}, v{aV+8+r}, v{RVR+r}") for r in range(8)]
    vcvtA=[I(f"v_cvt_pk_bf16_f32 v{aV+e}, v{aV+2*e}, v{aV+2*e+1}") for e in range(4)]
    vcvtB=[I(f"v_cvt_pk_bf16_f32 v{aV+e}, v{aV+2*e}, v{aV+2*e+1}") for e in range(4,8)]
    vst=[DS(f"ds_write_b128 v14, v[{aV+4*half}:{aV+4*half+3}] offset:{2048+half*1024}","vw") for half in range(2)]
    def atomic(L):
        def f():
            for x in L:
                if x is not None: x()
        return [f]
    def mark(val): return atomic([I(f"v_mov_b32 v5, {val}"), DS("ds_write_b32 v1, v5 offset:96")])
    def chk(vaddr,off,N): return [lambda: lspin(g,vaddr,off,N,8)]
    def chk_prefill():
        g.I(f"s_lshr_b32 s76, s{sW}, 1"); g.I("s_lshl_b32 s76, s76, 2"); g.I(f"s_add_u32 s76, s76, {CNT+24}"); g.I("v_mov_b32 v9, s76")
        lspin(g,9,0,1,8)
    def chk_kvcw():
        g.I(f"v_mov_b32 v9, {CNT+40}"); lspin(g,9,0,1,8)
    fill[0]=(stf+st2+[chk_kvcw]+sj_read(0,SJ4)+[SKIP]*12+corr_prep(0)+corr_mfma(aK,False)+[SKIP]*2+sj_read(1,SJ4)+[SKIP]*10+kmul+kcvt+rvload(0,"rv0")+kst+mark(1)
             +corr_prep(1)+corr_mfma(aV,True)+[SKIP]*14+vmulA+rvload(2,"rv1")+vcvtA+[SKIP]*10+vmulB+vcvtB+vst+mark(2))
    def hep(T):
        a=tacc[T]
        L=sj_read(2+T,SJ4)+[SKIP]*GAP
        if T==2: L+=[I(f"v_add_f32 v{a+r}, v{a+r}, v{ACC[3]+r}") for r in range(16)]+[I("s_nop 1")]
        L+=corr_prep(2+T)+corr_mfma(a,False)+[SKIP]*13
        L+=[I(f"v_max_f32 v{a+r}, 0, v{a+r}") for r in range(16)]
        L+=[I(f"v_cvt_pk_bf16_f32 v{a+e}, v{a+2*e}, v{a+2*e+1}") for e in range(8)]
        if T<2:
            for half in range(2):
                L.append(DS(f"ds_write_b128 v15, v[{a+4*half}:{a+4*half+3}] offset:{(HST[T]-HST[0])+half*1024}",f"hw{T}"))
        else:
            def cond_store():
                Ls=g.newlab("NOT2")
                g.I(f"s_cmp_eq_u32 s{sNT}, 3"); g.I(f"s_cbranch_scc0 {Ls}")
                g.I(f"s_add_u32 s96, s{sAHo}, 4096")
                for half in range(2):
                    g.vmem(f"buffer_store_dwordx4 v[{a+4*half}:{a+4*half+3}], v7, {sWS}, s96 offen offset:{half*1024} sc1",tag="hst2",cond=True)
                g.lab(Ls)
            L.append(cond_store)
        return L
    aQ=tacc[3]
    qep=(chk(1,32,2)+sj_read(5,SJ4)+[SKIP]*8+[I(f"v_add_f32 v{aQ+r}, v{aQ+r}, v{ACC[1]+r}") for r in range(16)]+corr_prep(5)+corr_mfma(aQ,False)+[I("v_mov_b32 v60, 0x3eb8aa3b"), I(f"v_mul_f32 v60, v{RI}, v60"),
         I(f"s_lshl_b32 s72, s{sW}, 11"), I(f"s_add_u32 s72, s72, {QL}"), I("v_add_u32 v9, s72, v7")]+[SKIP]*10
         +[I(f"v_mul_f32 v{aQ+r}, v{aQ+r}, v60") for r in range(16)]+[I(f"v_cvt_pk_bf16_f32 v{aQ+e}, v{aQ+2*e}, v{aQ+2*e+1}") for e in range(8)]
         +[DS(f"ds_write_b128 v9, v[{aQ+4*hh}:{aQ+4*hh+3}] offset:{hh*1024}") for hh in range(2)])
    def hep_tail(T):
        a=tacc[T]
        return ([I(f"v_max_f32 v{a+r}, 0, v{a+r}") for r in range(16)]+[I(f"v_cvt_pk_bf16_f32 v{a+e}, v{a+2*e}, v{a+2*e+1}") for e in range(8)]
                +[DS(f"ds_write_b128 v15, v[{a+4*half}:{a+4*half+3}] offset:{(HST[T]-HST[0])+half*1024}",f"hw{T}") for half in range(2)])
    fill[1]=(chk(1,32,1)+sj_read(2,SJ4)+[SKIP]*10+corr_prep(2)+corr_mfma(tacc[0],False)+[SKIP]*2+sj_read(3,SJ4)+[SKIP]*10+corr_prep(3)+corr_mfma(tacc[1],False)+[SKIP]*2
             +hep_tail(0)+mark(3)+hep_tail(1)+mark(4))
    fill[2]=qep+mark(5)
    N=len(steps); rd=0; ex=0; passed=set(); fq=[]
    rq=[]
    defer=[False]
    def issue(n):
        for r_ in steps[n]["pre_rd"]: g.I(r_)
        for r_ in steps[n]["rd"]:
            if defer[0]: rq.append((r_,f"s{n}"))
            else: g.ds(r_,tag=f"s{n}")
    def flush_rq(k=99):
        while rq and k>0:
            r_,t_=rq.pop(0); g.ds(r_,tag=t_); k-=1
    def try_issue():
        nonlocal rd
        budget=2
        while rd<N and rd-ex<steps[rd]["lag"] and budget>0:
            if steps[rd]["bar"] and rd not in passed:
                if rd-ex<=(0 if rd==32 else steps[rd]["lag"]-steps[rd]["hold"]):
                    idx=steps[rd]["idx"]
                    if rd==32:
                        for t_ in diag: g.I(t_)
                        g.lg0()
                    if idx>8:
                        g.wait_lg(f"lp{idx}")
                        g.lts(idx-8)
                        lspin(g,1,0,idx-8+1,2,first_done=True)
                        g.lts(idx)
                        passed.add(rd)
                        issue(rd); rd+=1; budget-=1
                        continue
                    g.ts(idx,2)
                    if idx>=8: g.ts(idx-8,3)
                    g.I("s_barrier"); passed.add(rd)
                    if idx>=8: g.lts(idx)
                    if idx>=8: g.ts(idx,3)
                    if idx==8:
                        for f_ in stf0: f_()
                    if idx==8: g.ts(2)
                    if idx==0: g.ts(1)
                else: break
            if rd+3<N and steps[rd+3]["bar"] and steps[rd+3]["idx"]>8:
                g.ds(f"ds_read_b32 v2, v1", tag=f"lp{steps[rd+3]['idx']}")
            issue(rd); rd+=1; budget-=1
    while ex<N:
        st=steps[ex]
        if rd<=ex: try_issue()
        if "T" in st and st["s"]==0: fq+=fill[st["T"]]
        if "T" in st and st["T"]==1 and st["s"]==32:
            assert not any(f is not None for f in fq), "t0/t1 epilogues must be finished before t2 reuses their accumulators"
        if "T" in st and st["T"]==1 and st["s"]==OPT.get("qs",34): fq+=fill[2]
        g.wait_lg(f"s{ex}")
        if "T" in st and (ex-32)%16==15:
            g.I(f"v_mov_b32 v5, {(ex-32)//16+1}"); g.ds("ds_write_b32 v1, v5 offset:64")
        if OPT["ts"]==6 and ex>=32+OPT.get("st0",0) and (ex-32-OPT.get("st0",0))%OPT.get("sts",4)==0 and (ex-32-OPT.get("st0",0))//OPT.get("sts",4)<16:
            i_=(ex-32-OPT.get("st0",0))//OPT.get("sts",4)
            g.I(f"s_memtime s[{g.LP[i_]}:{g.LP[i_]+1}]")
        if "T" not in st and ex+1<32 and not (rd<N and steps[rd]["bar"] and rd not in passed):
            ex+=1; defer[0]=True; try_issue(); defer[0]=False; ex-=1
            ms=st["mf"]+st["post"]
            for m in ms:
                g.I(m); flush_rq(2)
            flush_rq()
            ex+=1
            continue
        for m in st["mf"]:
            if not (OPT.get("halft") and "T" in st and ex%2==1): g.I(m)
        for m in st["post"]: g.I(m)
        ex+=1
        try_issue()
        if "T" in st:
            rem=N-ex+1
            k=OPT["nfill0"] if st["T"]==0 else OPT["nfill1"]
            if OPT.get("nofill"): k=0
            while k>0 and fq:
                f=fq.pop(0)
                if f is not None: f()
                k-=1
    for f in fq:
        if f is not None: f()
        else: g.I("s_nop 0")
    g.lg0()
    g.ts(9)
    g.I("v_and_b32 v8, 3, v0"); g.I("v_lshlrev_b32 v8, 3, v8"); g.I(f"v_add_u32 v8, {SY+64}, v8")
    g.lts(0)
    lspin(g,8,0,8,2)
    lspin(g,1,32,3,2)
    g.lts_dump()
    g.ts(3)
    PF=OPT["pf3"]; NS=8
    AHR=128; WSR=[16,24]; PA=192; vWd=10; vWr=[12,9]; XR=64; RR=72
    sT=80
    NH=22; NO=8; NT=NH+NO
    def stepinfo(i):
        if i>=NH: return (2, 4*(i-NH), 3)
        c = 0 if i<8 else (1 if i<16 else 2); ii = i-8*c
        cf = c
        if ii<=5: return (0, 2*(6*ii+c), cf)
        return (1, 2*(11+4*ii+c), cf)
    def w_issue1(i,k):
        kind,ks,c=stepinfo(i); srd=sW2 if kind<2 else sWO
        g.I(f"s_add_u32 m0, s{sRG}, {(i%NS)*2048+k*1024}")
        g.I(f"s_add_u32 s{sT}, s{sWb[kind]}, {ks*16384+k*8192}")
        g.vmem(f"buffer_load_dwordx4 v{vWd}, {srd}, s{sT} offen lds", tag=f"w{i}")
    def a_issue1(i,k):
        kind,ks,c=stepinfo(i); b=AHR+(i%8)*8+4*k
        g.I(f"s_add_u32 s{sT}, s{sA[kind]}, {ks*1024+k*NSTEP*1024}")
        g.vmem(f"buffer_load_dwordx4 v[{b}:{b+3}], v{vL16}, {sWS}, s{sT} offen sc1", tag=f"a{i}")
    def w_issue(i): w_issue1(i,0); w_issue1(i,1)
    def a_issue(i): a_issue1(i,0); a_issue1(i,1)
    spoll_issue(g,sFH,16)
    g.I(f"v_xor_b32 v{vWr[1]}, 64, v{vWr[0]}")
    for i in range(PF): w_issue(i)
    spoll(g,sFH,16,0x201,13,issued=True)
    g.ts(4)
    for i in range(PF): a_issue(i)
    g.I("v_and_b32 v5, 31, v0"); g.I("v_lshlrev_b32 v5, 2, v5"); g.I(f"s_lshl_b32 s81, s{sA3}, 7"); g.I(f"s_add_u32 s81, s81, {STR}")
    g.vmem(f"buffer_load_dword v{RR}, v5, {sWS}, s81 offen sc1", tag="rr")
    g.vmem(f"buffer_load_dword v{RR+1}, v5, {sWS}, s81 offen offset:128 sc1", tag="rr")
    g.I(f"s_lshl_b32 s{sXo}, s{sA3}, 15"); g.I(f"s_lshl_b32 s81, s{sCT}, 7"); g.I(f"s_add_u32 s{sXo}, s{sXo}, s81"); g.I(f"s_add_u32 s{sXo+1}, s{sXo}, 32768")
    g.vmem(f"buffer_load_dwordx4 v[{XR}:{XR+3}], v11, {sX}, s{sXo} offen", tag="xr")
    g.vmem(f"buffer_load_dwordx4 v[{XR+4}:{XR+7}], v11, {sX}, s{sXo+1} offen", tag="xr")
    def fh2_publish():
        g.wait_vm("hst2")
        g.I(f"v_mov_b32 v3, {CNT}"); g.I("v_mov_b32 v4, 1")
        g.I("s_mov_b64 exec, 1")
        g.I("ds_add_rtn_u32 v5, v3, v4"); g.I("s_waitcnt lgkmcnt(0)"); g.lg=[]
        g.I("v_readfirstlane_b32 s81, v5"); g.I("s_mov_b64 exec, -1")
        Lno=g.newlab("NOFH")
        g.I("s_cmp_eq_u32 s81, 3"); g.I(f"s_cbranch_scc0 {Lno}")
        flag_store16(g,FH+0x10000,3,4,st=96)
        g.lab(Lno)
    def w_read(i):
        slot=i%NS; ws_=WSR[i%2]
        for tn in range(2):
            g.ds(f"ds_read_b64_tr_b16 v[{ws_+4*tn}:{ws_+4*tn+1}], v{vWr[tn]} offset:{slot*2048}",tag=f"r{i}")
            g.ds(f"ds_read_b64_tr_b16 v[{ws_+4*tn+2}:{ws_+4*tn+3}], v{vWr[tn]} offset:{slot*2048+1024}",tag=f"r{i}")
    def p3m(i,tn,ti):
        ws_=WSR[i%2]; b=AHR+(i%8)*8; a=PA+(tn*2+ti)*16
        g.I(f"v_mfma_f32_32x32x16_bf16 v[{a}:{a+15}], v[{ws_+4*tn}:{ws_+4*tn+3}], v[{b+4*ti}:{b+4*ti+3}], {'0' if i==0 else f'v[{a}:{a+15}]'}")
    GAP=6
    for f in hep(2):
        if f is not None: f()
        else: g.I("s_nop 0")
    f3=[]
    fin=[I("v_and_b32 v2, 31, v0"), I("v_lshlrev_b32 v3, 8, v2"), I(f"v_add_u32 v3, s{sRG}, v3"), I("v_and_b32 v4, 7, v0"), I("v_lshrrev_b32 v5, 5, v0")]
    for q in range(4): fin+=[I(f"v_add_u32 v6, {2*q}, v5"), I("v_xor_b32 v6, v6, v4"), I(f"v_lshl_add_u32 v{32+q}, v6, 4, v3")]
    fin+=[I(f"s_lshl_b32 s81, s{sW}, 3"), I("v_lshrrev_b32 v3, 3, v0"), I("v_add_u32 v3, s81, v3"), I("v_and_b32 v4, 7, v3"), I("v_and_b32 v5, 7, v0"), I("v_lshlrev_b32 v5, 1, v5"),
          I("v_xor_b32 v6, v5, v4"), I("v_or_b32 v5, 1, v5"), I("v_xor_b32 v5, v5, v4"), I("v_lshlrev_b32 v3, 8, v3"), I(f"v_add_u32 v3, {RING}, v3"),
          I("v_lshl_add_u32 v36, v6, 4, v3"), I("v_lshl_add_u32 v37, v5, 4, v3")]
    LPP=[0,2,4,6,70,98,100,72,74,76,8,8]
    g.wait_vm("a0","w0"); w_read(0)
    clsaddr={1:(sFH,0x8000),2:(sFH,0x10000),3:(sFO,0)}
    ia=PF; iw=PF
    for i in range(NT):
        if i==NH:
            g.ts(5)
            g.wait_vm("rr")
            g.nop(10)
            for tn in range(2):
                for ti in range(2):
                    a=PA+(tn*2+ti)*16
                    for r in range(16): g.I(f"v_mul_f32 v{a+r}, v{a+r}, v{RR+ti}")
            g.I("s_nop 1")
        if OPT["ts"]==9 and OPT.get("i0",0)<=i<OPT.get("i0",0)+12:
            g.I(f"s_memtime s[{LPP[i-OPT.get('i0',0)]}:{LPP[i-OPT.get('i0',0)]+1}]")
        k=i+PF
        if k<NT and stepinfo(k)[2]!=stepinfo(k-1)[2]:
            c_=stepinfo(k)[2]
            Lok=g.newlab("CLOK")
            g.I("s_waitcnt lgkmcnt(0)"); g.lg=[]
            spoll_test(g,16); g.I(f"s_cbranch_scc0 {Lok}")
            spoll(g,97,16,0x210+c_,13)
            g.lab(Lok); g.lg=[]
            if c_==3: g.ts(6)
        nxt=i+1
        if nxt<NT:
            if not (OPT.get("fasth") and 6<=nxt<NH): g.wait_vm(f"a{nxt}",f"w{nxt}")
            w_read(nxt)
        g.wait_lg(f"r{i}")
        todo=[]
        lima = i+PF if i<NH-PF else min(i+7,NT-1)
        while ia<=min(lima,NT-1):
            if not (OPT.get("fasth") and 6<=ia<NH): todo+= [(lambda x=ia: a_issue1(x,0)), (lambda x=ia: a_issue1(x,1))]
            ia+=1
        limw = i+PF if i<NH-PF-3 else min(i+7,NT-1)
        while iw<=min(limw,NT-1):
            if not (OPT.get("fasth") and 6<=iw<NH): todo+= [(lambda x=iw: w_issue1(x,0)), (lambda x=iw: w_issue1(x,1))]
            iw+=1
        nf=OPT.get("nf3",10)
        def fillers(n):
            while n>0 and f3:
                f=f3.pop(0)
                if f is not None: f()
                n-=1
        if i==NH-1:
            Ls=g.newlab("SKIPM")
            g.I(f"s_cmp_ge_u32 s{sW}, 2"); g.I(f"s_cbranch_scc1 {Ls}")
            for tn in range(2):
                for ti in range(2): p3m(i,tn,ti)
            g.lab(Ls)
            for f in todo: f()
        else:
            q=0
            per=(len(todo)+3)//4
            for tn in range(2):
                for ti in range(2):
                    p3m(i,tn,ti)
                    for _ in range(per):
                        if todo: todo.pop(0)()
                    fillers((nf+3-q)//4)
                    q+=1
        if i==OPT.get("fh2i",3): fh2_publish()
        if i==OPT.get("fh2i",3)+1: f3+=fin
        k2=k+OPT.get("ppd",2)
        if k2<NT and stepinfo(k2)[2]!=stepinfo(k2-1)[2]:
            r_,o_=clsaddr[stepinfo(k2)[2]]
            g.I(f"s_add_u32 s97, s{r_}, {o_}")
            spoll_issue(g,97,16)
    assert not f3
    g.ts(7)
    if OPT["ts"]==9:
        g.lg0()
        for i_ in range(12):
            g.I(f"v_mov_b32 v5, s{LPP[i_]}"); g.vmem(f"buffer_store_dword v5, off, {sWS}, s92 offset:{i_*4}"); g.I("s_nop 1")
    g.nop(10)
    for tn in range(2):
        for ti in range(2):
            a=PA+(tn*2+ti)*16
            for q in range(4):
                if not OPT.get("nofin"): g.ds(f"ds_write_b128 v{32+q}, v[{a+4*q}:{a+4*q+3}] offset:{ti*8192+tn*128}")
    g.lg0()
    g.I("s_barrier")
    R=128
    for p in range(2):
        for k in range(4):
            for e in range(2):
                b=R+(p*8+k*2+e)*4
                g.ds(f"ds_read_b128 v[{b}:{b+3}], v{36+e} offset:{p*8192+k*16384}",tag=f"f{p}")
    g.wait_vm("xr")
    for p in range(2):
        g.wait_lg(f"f{p}")
        for k in range(1,4):
            for e in range(2):
                for c in range(4):
                    b0=R+(p*8+0+e)*4+c
                    g.I(f"v_add_f32 v{b0}, v{b0}, v{R+(p*8+k*2+e)*4+c}")
        for e4 in range(4):
            xr=XR+4*p+e4
            g.I(f"v_lshlrev_b32 v{20+2*e4}, 16, v{xr}"); g.I(f"v_and_b32 v{21+2*e4}, 0xffff0000, v{xr}")
        for e4 in range(4):
            o0=R+(p*8+(e4>>1))*4+2*(e4&1)
            g.I(f"v_add_f32 v{o0}, v{o0}, v{20+2*e4}"); g.I(f"v_add_f32 v{o0+1}, v{o0+1}, v{21+2*e4}")
        for e4 in range(4):
            o0=R+(p*8+(e4>>1))*4+2*(e4&1)
            g.I(f"v_cvt_pk_bf16_f32 v{40+4*p+e4}, v{o0}, v{o0+1}")
        g.vmem(f"buffer_store_dwordx4 v[{40+4*p}:{43+4*p}], v11, {sOUT}, s{sXo+p} offen{['',' sc1',' nt',' sc0 sc1'][OPT.get('ost',0)]}")
    g.ts(8)

def build():
    g=G()
    prologue(g)
    vm0=list(g.vm)
    hwave(g)
    g.vm=vm0; g.lg=[]
    gwave(g)
    g.lab("L_END")
    g.I("s_endpgm")
    return g.L

HEAD=f"""; fused persistent kernel: LN + QKV/W1 GEMM + sliding-window attention + W2/WO GEMM
; @launch grid=(256,1,1) block=(512,1,1) lds={LDS_TOTAL}
.amdgcn_target "amdgcn-amd-amdhsa--gfx950"
.text
.globl {KNAME}
.p2align 8
.type {KNAME},@function
{KNAME}:
"""
TAIL=f""".section .rodata,"a"
.p2align 6
.amdhsa_kernel {KNAME}
  .amdhsa_next_free_vgpr 256
  .amdhsa_next_free_sgpr 102
  .amdhsa_accum_offset 256
  .amdhsa_group_segment_fixed_size 0
  .amdhsa_kernarg_size 72
  .amdhsa_user_sgpr_count 2
  .amdhsa_user_sgpr_kernarg_segment_ptr 1
  .amdhsa_system_sgpr_workgroup_id_x 1
  .amdhsa_float_denorm_mode_32 3
.end_amdhsa_kernel
"""
if __name__=="__main__":
    out=sys.argv[1] if len(sys.argv)>1 else "k.s"
    for a in sys.argv[2:]:
        k,_,val=a.partition("="); OPT[k]=int(val,0) if val else True
    L=build()
    errs=lint(L)
    for e in errs[:60]: print("LINT:",e)
    print(len(errs),"lint errors;",len(L),"lines")
    open(out,"w").write(HEAD+"\n".join(L)+"\n"+TAIL)
```
